```python
import torch

def _softmax(x, axis=-1):
    return torch.softmax(x, dim=axis)
def _gelu(x):
    return torch.nn.functional.gelu(x, approximate="tanh")
def _silu(x):
    return torch.nn.functional.silu(x)
def _sigmoid(x):
    return torch.sigmoid(x)
def _layernorm(x, axis=-1, eps=1e-5):
    m = x.mean(dim=axis, keepdim=True)
    v = x.var(dim=axis, keepdim=True, unbiased=False)
    return (x - m) / torch.sqrt(v + eps)
def _scatter_add(tgt, idx, src, axis=0):
    return tgt.clone().index_add_(axis, idx, src)
def _segment_sum(src, seg, n):
    out = torch.zeros((n,) + src.shape[1:], dtype=src.dtype)
    return out.index_add_(0, seg, src)
def _pad(x, pw):
    flat = tuple(v for pair in reversed(pw) for v in pair)
    return torch.nn.functional.pad(x, flat)

kernel_name = 'parallel_sum__sliding_block_cached__glu_gated_reglu__decode'

def setup_inputs():

    _w = (lambda a: (lambda t: t.to(torch.bfloat16) if t.is_floating_point() else t)(torch.as_tensor(a)))
    def _A_setup():
        B, Sq, D = 2, 1, 512
        Hq, Hkv, Sk, Dh = 32, 8, 32768, 128
        assert Hq % Hkv == 0, (Hq, Hkv)
        return {
            "x": _w((lambda *s: torch.randn(*s, dtype=torch.bfloat16) * 0.05)(B, Sq, D)),
            "k_cache": _w((lambda *s: torch.randn(*s, dtype=torch.bfloat16) * 1.6)(B, Hkv, Sk, Dh)),
            "v_cache": _w((lambda *s: torch.randn(*s, dtype=torch.bfloat16) * 0.8)(B, Hkv, Sk, Dh)),
            "wq": _w((lambda *s: torch.randn(*s, dtype=torch.bfloat16) * 1.6)(D, Hq * Dh) * (D ** -0.5)),
            "wo": _w((lambda *s: torch.randn(*s, dtype=torch.bfloat16) * 0.8)(Hq * Dh, D) * ((Hq * Dh) ** -0.5)),
        }
    _A_in = _A_setup()

    def _B_setup():
        B, S, D, F = 2, 1, 512, 1792
        return {
            "x": _w((lambda *s: torch.randn(*s, dtype=torch.bfloat16) * 0.05)(B, S, D)),
            "W_gate": _w((lambda *s: torch.randn(*s, dtype=torch.bfloat16) * 0.4)(D, F) * (2.0 / D) ** 0.5),
            "W_up": _w((lambda *s: torch.randn(*s, dtype=torch.bfloat16) * 0.4)(D, F) * (2.0 / D) ** 0.5),
            "W_down": _w((lambda *s: torch.randn(*s, dtype=torch.bfloat16) * 0.4)(F, D) * (1.0 / F) ** 0.5),
        }
    _B_in = _B_setup()

    return {
        "A_x": _A_in["x"],
        "A_k_cache": _A_in["k_cache"],
        "A_v_cache": _A_in["v_cache"],
        "A_wq": _A_in["wq"],
        "A_wo": _A_in["wo"],
        "B_x": _B_in["x"],
        "B_W_gate": _B_in["W_gate"],
        "B_W_up": _B_in["W_up"],
        "B_W_down": _B_in["W_down"],
    }

def reference(A_x, A_k_cache, A_v_cache, A_wq, A_wo, B_x, B_W_gate, B_W_up, B_W_down):
    def _A_ref(x, k_cache, v_cache, wq, wo):
        B, Sq, D = x.shape
        Hq, Dh = 32, 128
        Hkv, Sk = k_cache.shape[1], k_cache.shape[2]
        W = min(4096, max(256, Sk // 4))
        rep = Hq // Hkv
        q = (lambda x, *d: x.permute(*d))((x @ wq).reshape(B, Sq, Hq, Dh), 0, 2, 1, 3)
        k = (lambda x, n, axis: torch.repeat_interleave(x, n, dim=axis))(k_cache[:, :, Sk - W:, :], rep, axis=1)
        v = (lambda x, n, axis: torch.repeat_interleave(x, n, dim=axis))(v_cache[:, :, Sk - W:, :], rep, axis=1)
        scores = torch.einsum("bhqd,bhkd->bhqk", q, k) * (Dh ** -0.5)
        p = _softmax(scores, axis=-1)
        o = torch.einsum("bhqk,bhkd->bhqd", p, v)
        return (lambda x, *d: x.permute(*d))(o, 0, 2, 1, 3).reshape(B, Sq, Hq * Dh) @ wo

    def _B_ref(x, W_gate, W_up, W_down):
        gate = torch.einsum("bsd,df->bsf", x, W_gate)
        up = torch.einsum("bsd,df->bsf", x, W_up)
        gate = gate * (lambda x, dt: x.to(dt))(gate > 0, gate.dtype)
        h = gate * up
        return torch.einsum("bsf,fd->bsd", h, W_down)

    x = A_x
    xn = _layernorm(x, axis=-1)
    return x + _A_ref(xn, A_k_cache, A_v_cache, A_wq, A_wo) + _B_ref(xn, B_W_gate, B_W_up, B_W_down)
```

```python
import re

TRANS = ("v_exp_f32", "v_log_f32", "v_rcp_f32", "v_rsq_f32", "v_sqrt_f32", "v_sin_f32", "v_cos_f32")

def regs_of(op):
    op = op.strip()
    op = op.lstrip("-")
    m = re.fullmatch(r"abs\((.*)\)", op)
    if m: op = m.group(1)
    m = re.fullmatch(r"\|(.*)\|", op)
    if m: op = m.group(1)
    m = re.fullmatch(r"([vsa])(\d+)", op)
    if m: return {m.group(1) + m.group(2)}
    m = re.fullmatch(r"([vsa])\[(\d+):(\d+)\]", op)
    if m: return {m.group(1) + str(i) for i in range(int(m.group(2)), int(m.group(3)) + 1)}
    if op in ("vcc", "vcc_lo", "vcc_hi"): return {"vcc"}
    if op in ("exec", "exec_lo", "exec_hi"): return {"exec"}
    if op == "m0": return {"m0"}
    return set()

class Ins:
    __slots__ = ("text", "mn", "kind", "w", "r", "srcc", "states", "dpp", "passes", "sdata", "srcab")
    def __init__(self, text):
        self.text = text
        t = text.split(";")[0].strip()
        parts = t.split(None, 1)
        self.mn = mn = parts[0]
        rest = parts[1] if len(parts) > 1 else ""
        ops = []; depth = 0; cur = ""
        for ch in rest:
            if ch in "[(": depth += 1
            if ch in "])": depth -= 1
            if ch == "," and depth == 0:
                ops.append(cur); cur = ""
            else: cur += ch
        if cur.strip(): ops.append(cur)
        mods = ""
        if ops:
            lp = ops[-1].strip().split(None, 1)
            ops[-1] = lp[0]
            mods = lp[1] if len(lp) > 1 else ""
        ops = [o.strip() for o in ops]
        self.w = set(); self.r = set(); self.srcc = set(); self.sdata = set(); self.srcab = set()
        self.states = 1; self.dpp = False; self.passes = 0
        R = regs_of
        if mn == "s_nop":
            self.kind = "nop"; self.states = int(ops[0], 0) + 1
        elif mn.startswith("v_mfma"):
            self.kind = "mfma"
            self.w = R(ops[0]); self.srcab = R(ops[1]) | R(ops[2]); self.srcc = R(ops[3])
            self.r = self.srcab | self.srcc
            self.passes = 8 if "32x32" in mn else 4
        elif mn.startswith("v_"):
            self.kind = "valu"
            self.dpp = mn.endswith("_dpp") or "row_" in mods or "quad_perm" in mods
            base = mn.replace("_dpp", "").replace("_e32", "").replace("_e64", "").replace("_sdwa", "")
            if base.startswith("v_permlane"):
                self.kind = "permlane"
                self.w = R(ops[0]) | R(ops[1]); self.r = set(self.w)
            elif base in ("v_readfirstlane_b32", "v_readlane_b32"):
                self.kind = "readlane"
                self.w = R(ops[0])
                for o in ops[1:]: self.r |= R(o)
            elif base.startswith("v_cmpx"):
                self.w = R(ops[0]) | {"exec"}
                for o in ops[1:]: self.r |= R(o)
            elif base in ("v_add_co_u32", "v_sub_co_u32", "v_addc_co_u32", "v_subb_co_u32"):
                self.w = R(ops[0]) | R(ops[1])
                for o in ops[2:]: self.r |= R(o)
            else:
                self.w = R(ops[0])
                for o in ops[1:]: self.r |= R(o)
                if base in ("v_fmac_f32", "v_dot2c_f32_bf16", "v_pk_fmac_f32") or self.dpp:
                    self.r |= R(ops[0])
                if base in TRANS: self.kind = "trans"
        elif mn.startswith("global_store") or mn.startswith("global_atomic"):
            self.kind = "vmem"
            for o in ops: self.r |= R(o)
            if "x3" in mn or "x4" in mn: self.sdata = R(ops[1])
        elif mn.startswith("buffer_store"):
            self.kind = "vmem"
            for o in ops: self.r |= R(o)
            if "x3" in mn or "x4" in mn: self.sdata = R(ops[0])
        elif mn.startswith("global_load_lds") or (mn.startswith("buffer_load") and re.search(r"\blds\b", mods)):
            self.kind = "vmem"
            for o in ops: self.r |= R(o)
            self.r |= {"m0"}
        elif mn in ("buffer_wbl2", "buffer_inv"):
            self.kind = "vmem"
        elif mn.startswith("global_load") or mn.startswith("buffer_load"):
            self.kind = "vmem"
            self.w = R(ops[0])
            for o in ops[1:]: self.r |= R(o)
        elif mn.startswith("ds_write") or mn.startswith("ds_add") or mn.startswith("ds_max"):
            self.kind = "ds"
            for o in ops: self.r |= R(o)
        elif mn.startswith("ds_"):
            self.kind = "ds"
            self.w = R(ops[0])
            for o in ops[1:]: self.r |= R(o)
        elif mn.startswith("s_"):
            self.kind = "salu"
            if mn.startswith(("s_cmp", "s_cbranch", "s_branch", "s_waitcnt", "s_barrier", "s_endpgm", "s_sleep", "s_setprio", "s_bitcmp")):
                for o in ops: self.r |= R(o)
            else:
                if ops: self.w = R(ops[0])
                for o in ops[1:]: self.r |= R(o)
                if "saveexec" in mn: self.w |= {"exec"}
        else:
            raise ValueError("unknown instruction " + text)

VALUISH = ("valu", "trans", "permlane", "readlane")

def need(p, c):
    n = 0
    pv = p.kind in VALUISH
    cv = c.kind in VALUISH
    pw_v = {x for x in p.w if x[0] in "va" and x != "vcc"}
    pw_s = {x for x in p.w if x[0] == "s" or x == "vcc"}
    if pv:
        if c.dpp and (pw_v & c.r): n = max(n, 2)
        if c.kind == "permlane" and (pw_v & c.r): n = max(n, 2)
        if c.kind == "readlane" and (pw_v & c.r): n = max(n, 1)
        if c.kind == "mfma" and (pw_v & c.r): n = max(n, 2)
        if c.kind == "vmem" and (pw_s & c.r): n = max(n, 5)
        if (cv or c.kind == "mfma") and (pw_s & c.r): n = max(n, 2)
        if c.kind == "readlane" and (pw_s & c.r): n = max(n, 4)
        if c.kind == "salu" and (pw_s & c.r): n = max(n, 1)
        if "exec" in p.w:
            if c.dpp: n = max(n, 5)
            if c.kind in ("readlane", "permlane", "mfma"): n = max(n, 4)
        if p.kind == "trans" and (cv or c.kind == "mfma") and (pw_v & c.r): n = max(n, 1)
        if "sdwa" in p.mn and cv and (pw_v & (c.r | c.w)): n = max(n, 1)
    if p.kind == "salu":
        if "m0" in p.w and c.kind == "vmem" and "m0" in c.r: n = max(n, 1)
    if p.kind == "vmem" and p.sdata and (p.sdata & c.w): n = max(n, 2 if cv else 1)
    if p.kind == "mfma":
        big = {4: 8, 8: 12}[p.passes]
        if c.kind == "mfma":
            if p.w & c.srcab: n = max(n, big)
            if p.w & c.srcc:
                if not (p.w == c.srcc and p.passes == c.passes): n = max(n, {4: 6, 8: 10}[p.passes])
            elif p.w & c.w: n = max(n, big)
        elif cv or c.kind in ("vmem", "ds"):
            if p.w & (c.r | c.w): n = max(n, big)
        if cv and (p.srcc & c.w): n = max(n, {4: 3, 8: 7}[p.passes])
    return n

def maxneed(p):
    if p.kind == "mfma": return {4: 8, 8: 12}[p.passes]
    if p.kind in VALUISH:
        if any(x[0] == "s" or x in ("vcc", "exec") for x in p.w): return 5
        return 2
    if p.kind == "salu" and "m0" in p.w: return 1
    if p.kind == "vmem" and p.sdata: return 2
    return 0

class Asm:
    def __init__(self):
        self.lines = []
        self.hists = [[]]
        self.pending = {}
        self.defined = set()
        self.nops = 0
    def raw(self, s):
        self.lines.append(s)
    def comment(self, s):
        self.lines.append("    ; " + s)
    def _push(self, ins):
        self.lines.append("    " + ins.text)
        self.hists = [(h + [ins])[-24:] for h in self.hists]
        if len(self.hists) > 1:
            uniq = []
            for h in self.hists:
                tot = 0; k = len(h)
                while k > 0 and tot < 14:
                    k -= 1; tot += h[k].states
                hh = h[k:]
                if not any(len(u) == len(hh) and all(a is b for a, b in zip(u, hh)) for u in uniq): uniq.append(hh)
            self.hists = uniq
    def _req(self, fn):
        req = 0
        for h in self.hists:
            d = 0
            for p in reversed(h):
                n = fn(p)
                if n - d > req: req = n - d
                d += p.states
                if d > 14: break
        return req
    def __call__(self, text):
        for line in text.strip().split("\n"):
            line = line.strip()
            if not line or line.startswith(";"):
                if line: self.lines.append("    " + line)
                continue
            if line.endswith(":"):
                self.label(line[:-1]); continue
            ins = Ins(line)
            req = self._req(lambda p: need(p, ins))
            isbr = ins.mn.startswith("s_cbranch") or ins.mn == "s_branch"
            if isbr:
                tgt = line.split(";")[0].split()[-1]
                if tgt in self.defined:
                    req = max(req, self._req(maxneed) - 1)
            if req > 0:
                self._push(Ins(f"s_nop {req-1}")); self.nops += 1
            self._push(ins)
            if isbr:
                if tgt not in self.defined:
                    self.pending.setdefault(tgt, []).extend([list(h) for h in self.hists])
                if ins.mn == "s_branch":
                    self.hists = []
            if ins.mn == "s_endpgm":
                self.hists = []
    def label(self, name):
        self.lines.append(name + ":")
        self.defined.add(name)
        self.hists = self.hists + self.pending.pop(name, [])
        if not self.hists: self.hists = [[]]
    def text(self):
        assert not self.pending, self.pending.keys()
        return "\n".join(self.lines) + "\n"
```

```python
import sys, argparse
from asmgen import Asm
NAME = "parallel_sum__sliding_block_cached__glu_gated_reglu__decode"

QP = 0x10000; GP = 0x30000; OP = 0x50000; ST = 0x90000; FP = 0xA0000
STAMP = 0x1000000
LW = 131072
def R(j): return LW + 8192 * j + 6144
MAXB = R(2) + 512; LSUM = R(2) + 768; PB = R(3)
SPIN = 40000
LOG2E = 0x3fb8aa3b
SCALE = 0x3db504f3
DPPM = "row_mask:0xf bank_mask:0xf"

HEADER = open("cdna_kernels/%s.s.ref" % NAME).read().split("; Override launch")[0]

def gen(stamps=False, rotmul=37, stageA=6, opt=None):
    opt = opt or {}
    a = Asm()
    nst = [0]
    def stamp(name):
        if not stamps: return
        i = nst[0]; nst[0] += 1
        assert i < 14
        a(f"s_memrealtime s[{72+2*i}:{73+2*i}]")
        a("s_waitcnt lgkmcnt(0)")
    def setstamp(i): nst[0] = i

    def reduce5(v, t, op="v_add_f32"):
        a(f"{op}_dpp v{v}, v{v}, v{v} quad_perm:[2,3,0,1] {DPPM}")
        a(f"{op}_dpp v{v}, v{v}, v{v} row_ror:4 {DPPM}")
        a(f"{op}_dpp v{v}, v{v}, v{v} row_ror:8 {DPPM}")
        reduce_g(v, t, op)
    def reduce_g(v, t, op="v_add_f32"):
        a(f"v_mov_b32 v{t}, v{v}")
        a(f"v_permlane16_swap_b32 v{v}, v{t}")
        a(f"{op} v{v}, v{v}, v{t}")
        a(f"v_mov_b32 v{t}, v{v}")
        a(f"v_permlane32_swap_b32 v{v}, v{t}")
        a(f"{op} v{v}, v{v}, v{t}")

    a.raw(HEADER.rstrip())
    a.raw("; @launch grid=(256,1,1) block=(512,1,1) lds=163840")
    a.raw('.amdgcn_target "amdgcn-amd-amdhsa--gfx950"')
    a.raw(".text")
    a.raw(f".globl {NAME}_kernel")
    a.raw(".p2align 8")
    a.raw(f".type {NAME}_kernel,@function")
    a.raw(f"{NAME}_kernel:")
    if stamps: a("s_memrealtime s[70:71]")
    a(f"""
    s_cmp_ge_u32 s2, 256
    s_cbranch_scc1 L_end
    s_load_dwordx16 s[8:23], s[0:1], 0
    s_load_dwordx8 s[24:31], s[0:1], 64
    v_lshrrev_b32 v3, 6, v0
    v_and_b32 v0, 63, v0
    v_readfirstlane_b32 s3, v3
    v_and_b32 v1, 15, v0
    v_lshrrev_b32 v2, 4, v0
    s_and_b32 s4, s2, 7
    s_lshr_b32 s5, s2, 3
    s_lshr_b32 s6, s5, 4
    s_and_b32 s7, s5, 15
    s_lshr_b32 s32, s5, 2
    s_and_b32 s33, s5, 3
    s_lshl_b32 s34, s4, 3
    s_add_u32 s34, s34, s32
    s_mov_b32 s43, 0x20000
    s_mov_b32 s47, 0x20000
    s_mov_b32 s51, 0x20000
    s_mov_b32 s55, 0x20000
    s_cmp_ge_u32 s3, 4
    s_cbranch_scc0 L_service
    """)
    a(f"""
    s_sub_u32 s56, s3, 4
    s_lshl_b32 s57, s56, 2
    v_add_u32 v4, s57, v2
    v_xor_b32 v4, v4, v1
    v_lshlrev_b32 v4, 4, v4
    v_lshl_add_u32 v4, v2, 8, v4
    s_and_b32 s57, s57, 4
    v_add_u32 v5, s57, v2
    v_lshlrev_b32 v5, 1, v5
    v_xor_b32 v5, v5, v1
    v_lshlrev_b32 v5, 4, v5
    v_lshl_add_u32 v5, v2, 8, v5
    s_lshl_b32 s58, s6, 3
    s_add_u32 s58, s58, s4
    s_lshl_b32 s58, s58, 23
    s_lshl_b32 s59, s7, 16
    s_add_u32 s58, s58, s59
    s_add_u32 s58, s58, 0x700000
    s_mul_i32 s59, s2, {rotmul}
    s_add_u32 s59, s59, s56
    s_and_b32 s59, s59, 63
    s_lshl_b32 s59, s59, 10
    s_lshl_b32 s60, s56, 10
    s_mov_b32 s42, 0x10000
    s_mov_b32 s46, 0x10000
    s_waitcnt lgkmcnt(0)
    s_add_u32 s40, s10, s58
    s_addc_u32 s41, s11, 0
    s_add_u32 s44, s12, s58
    s_addc_u32 s45, s13, 0
    L_kloop:
    s_mov_b32 m0, s60
    s_add_u32 s60, s60, 4096
    buffer_load_dwordx4 v4, s[40:43], s59 offen nt lds
    s_add_u32 s59, s59, 4096
    s_and_b32 s59, s59, 0xffff
    s_cmp_lt_u32 s60, 65536
    s_cbranch_scc1 L_kloop
    L_vloop:
    s_mov_b32 m0, s60
    s_add_u32 s60, s60, 4096
    buffer_load_dwordx4 v5, s[44:47], s59 offen nt lds
    s_add_u32 s59, s59, 4096
    s_and_b32 s59, s59, 0xffff
    s_cmp_lt_u32 s60, 131072
    s_cbranch_scc1 L_vloop
    """)
    setstamp(0); stamp("L issue done")
    a("s_waitcnt vmcnt(16)")
    stamp("L K landed")
    a("s_branch L_common")

    a("L_service:")
    a(f"""
    s_movk_i32 s56, 3584
    s_cmp_lt_u32 s3, 2
    s_cselect_b32 s56, 8192, s56
    v_and_b32 v3, 1, v0
    v_lshlrev_b32 v3, 10, v3
    v_lshrrev_b32 v4, 1, v0
    v_lshl_add_u32 v4, v4, 5, v3
    v_lshrrev_b32 v5, 2, v1
    v_lshl_add_u32 v5, v5, 6, v3
    v_lshl_add_u32 v5, v2, 4, v5
    s_lshl_b32 s57, s33, 8
    v_add_u32 v5, s57, v5
    v_lshrrev_b32 v6, 2, v0
    v_mul_u32_u24 v6, s56, v6
    v_lshrrev_b32 v7, 5, v0
    v_lshlrev_b32 v7, 1, v7
    v_and_b32 v8, 3, v0
    v_xor_b32 v7, v7, v8
    v_lshl_add_u32 v6, v7, 4, v6
    v_lshrrev_b32 v7, 8, v3
    s_lshl_b32 s57, s2, 3
    v_add_u32 v7, s57, v7
    s_lshl_b32 s57, s33, 7
    s_mul_i32 s57, s57, s56
    s_lshl_b32 s58, s4, 10
    s_lshl_b32 s59, s32, 7
    s_add_u32 s58, s58, s59
    s_lshl_b32 s59, s3, 6
    s_add_u32 s58, s58, s59
    s_mul_i32 s59, s4, 7
    s_add_u32 s59, s59, s32
    s_lshl_b32 s59, s59, 6
    s_cmp_lt_u32 s3, 2
    s_cselect_b32 s58, s58, s59
    s_add_u32 s57, s57, s58
    s_lshl_b32 s58, s56, 4
    s_cmp_eq_u32 s32, 7
    s_cselect_b32 s42, 0, 0x1c0000
    s_cmp_lt_u32 s3, 2
    s_cselect_b32 s42, 0x400000, s42
    s_lshl_b32 s60, s3, 13
    s_add_u32 s60, s60, {LW}
    s_add_u32 s61, s60, 8192
    s_waitcnt lgkmcnt(0)
    global_load_dwordx4 v[8:11], v4, s[8:9]
    global_load_dwordx4 v[12:15], v4, s[8:9] offset:16
    global_load_dwordx4 v[16:19], v5, s[8:9]
    global_load_dword v120, v7, s[8:9]
    s_load_dword s35, s[30:31], 0
    s_cmp_eq_u32 s3, 2
    s_cselect_b32 s40, s20, s22
    s_cselect_b32 s41, s21, s23
    s_cmp_lt_u32 s3, 2
    s_cselect_b32 s40, s14, s40
    s_cselect_b32 s41, s15, s41
    L_tloop:
    s_mov_b32 m0, s60
    s_add_u32 s60, s60, 1024
    buffer_load_dwordx4 v6, s[40:43], s57 offen nt lds
    s_add_u32 s57, s57, s58
    s_cmp_lt_u32 s60, s61
    s_cbranch_scc1 L_tloop
    """)
    a(f"""
    s_cmp_lg_u32 s3, 0
    s_cbranch_scc1 L_noclear
    s_lshl_b32 s57, s4, 1
    s_add_u32 s57, s57, s6
    s_lshl_b32 s58, s57, 14
    s_lshl_b32 s59, s7, 7
    s_add_u32 s58, s58, s59
    s_add_u32 s58, s58, {OP}
    v_lshrrev_b32 v20, 3, v0
    v_lshlrev_b32 v20, 11, v20
    v_and_b32 v21, 7, v0
    v_lshl_add_u32 v20, v21, 4, v20
    v_add_u32 v20, s58, v20
    v_mov_b32 v24, -1
    v_mov_b32 v25, -1
    v_mov_b32 v26, -1
    v_mov_b32 v27, -1
    global_store_dwordx4 v20, v[24:27], s[30:31] sc1
    s_lshl_b32 s58, s57, 9
    s_lshl_b32 s59, s7, 2
    s_add_u32 s58, s58, s59
    s_add_u32 s58, s58, {ST}
    v_and_b32 v21, 3, v0
    v_lshlrev_b32 v21, 7, v21
    v_add_u32 v21, s58, v21
    s_mov_b64 exec, 15
    global_store_dword v21, v24, s[30:31] sc1
    s_mov_b64 exec, -1
    s_waitcnt vmcnt(12)
    s_branch L_ln
    L_noclear:
    s_waitcnt vmcnt(10)
    L_ln:
    """)
    setstamp(0); stamp("S x landed")
    a("s_mov_b32 s62, 0xffff0000")
    for i in range(8):
        a(f"v_lshlrev_b32 v{32+2*i}, 16, v{8+i}")
        a(f"v_and_b32 v{33+2*i}, s62, v{8+i}")
    for i in range(4):
        a(f"v_pk_add_f32 v[{48+2*i}:{49+2*i}], v[{32+4*i}:{33+4*i}], v[{34+4*i}:{35+4*i}]")
    a("v_pk_add_f32 v[48:49], v[48:49], v[50:51]")
    a("v_pk_add_f32 v[52:53], v[52:53], v[54:55]")
    a("v_pk_add_f32 v[48:49], v[48:49], v[52:53]")
    a("v_add_f32 v48, v48, v49")
    reduce5(48, 49)
    a("v_mul_f32 v48, 0x3b000000, v48")
    for i in range(16):
        a(f"v_sub_f32 v{32+i}, v{32+i}, v48")
    a("v_pk_mul_f32 v[50:51], v[32:33], v[32:33]")
    a("v_pk_mul_f32 v[52:53], v[34:35], v[34:35]")
    for i in range(2, 8):
        d = 50 + 2 * (i & 1)
        a(f"v_pk_fma_f32 v[{d}:{d+1}], v[{32+2*i}:{33+2*i}], v[{32+2*i}:{33+2*i}], v[{d}:{d+1}]")
    a("v_pk_add_f32 v[50:51], v[50:51], v[52:53]")
    a("v_add_f32 v50, v50, v51")
    reduce5(50, 49)
    a(f"""
    v_mul_f32 v50, 0x3b000000, v50
    v_cvt_pk_bf16_f32 v49, v48, v50
    v_lshlrev_b32 v48, 16, v49
    v_and_b32 v50, s62, v49
    v_add_f32 v50, 0x3727c5ac, v50
    v_cvt_pk_bf16_f32 v50, v50, v50
    v_and_b32 v50, s62, v50
    v_sqrt_f32 v50, v50
    v_cvt_pk_bf16_f32 v50, v50, v50
    v_and_b32 v50, s62, v50
    v_rcp_f32 v50, v50
    """)
    a("s_waitcnt vmcnt(9)")
    for i in range(4):
        a(f"v_lshlrev_b32 v{32+2*i}, 16, v{16+i}")
        a(f"v_and_b32 v{33+2*i}, s62, v{16+i}")
    for i in range(8):
        a(f"v_sub_f32 v{32+i}, v{32+i}, v48")
    for i in range(4):
        a(f"v_cvt_pk_bf16_f32 v{16+i}, v{32+2*i}, v{33+2*i}")
    for i in range(4):
        a(f"v_lshlrev_b32 v{32+2*i}, 16, v{16+i}")
        a(f"v_and_b32 v{33+2*i}, s62, v{16+i}")
    for i in range(8):
        a(f"v_mul_f32 v{32+i}, v{32+i}, v50")
    for i in range(4):
        a(f"v_cvt_pk_bf16_f32 v{16+i}, v{32+2*i}, v{33+2*i}")
    for jj in range(1, 4):
        for i in range(4):
            a(f"v_mov_b32_dpp v{16+4*jj+i}, v{16+i} row_ror:{16-4*jj} {DPPM}")
    a(f"""
    v_lshrrev_b32 v8, 2, v1
    v_lshlrev_b32 v8, 6, v8
    v_lshl_add_u32 v8, v2, 9, v8
    v_and_b32 v9, 3, v1
    v_lshl_add_u32 v8, v9, 3, v8
    v_and_b32 v9, 1, v2
    v_lshl_add_u32 v8, v9, 5, v8
    s_sub_u32 s60, s61, 8192
    v_add_u32 v8, s60, v8
    v_xor_b32 v9, 32, v8
    s_cmp_lt_u32 s3, 2
    s_cselect_b32 s57, 13, 7
    v_and_b32 v10, 1, v1
    v_lshlrev_b32 v10, s57, v10
    v_lshrrev_b32 v11, 1, v1
    v_lshl_add_u32 v10, v11, 6, v10
    v_lshl_add_u32 v10, v2, 4, v10
    s_lshl_b32 s57, s4, 14
    s_lshl_b32 s58, s32, 8
    s_add_u32 s57, s57, s58
    s_lshl_b32 s58, s3, 7
    s_add_u32 s57, s57, s58
    s_add_u32 s57, s57, {QP}
    s_lshr_b32 s58, s34, 2
    s_lshl_b32 s58, s58, 13
    s_and_b32 s59, s34, 3
    s_lshl_b32 s59, s59, 9
    s_add_u32 s63, s58, s59
    s_add_u32 s63, s63, {GP}
    s_lshl_b32 s59, s3, 8
    s_add_u32 s58, s63, s59
    s_sub_u32 s58, s58, 512
    s_cmp_lt_u32 s3, 2
    s_cselect_b32 s57, s57, s58
    s_lshl_b32 s58, s33, 11
    s_add_u32 s57, s57, s58
    v_add_u32 v10, s57, v10
    v_mov_b32 v11, 0xff
    s_waitcnt lgkmcnt(0)
    s_add_u32 s35, s35, 0x01010101
    s_lshr_b32 s36, s35, 8
    s_lshr_b32 s37, s35, 16
    s_lshr_b32 s38, s35, 24
    """)
    stamp("S LN done")
    a("s_waitcnt vmcnt(0)")
    stamp("S tile landed")
    for cb in range(2):
        for jj in range(4):
            for e in range(2):
                d = 48 + 16 * cb + 4 * jj + 2 * e
                a(f"ds_read_b64_tr_b16 v[{d}:{d+1}], v{8+cb} offset:{jj*2048+e*256}")
    a("s_waitcnt lgkmcnt(8)")
    for jj in range(4):
        a(f"v_mfma_f32_16x16x32_bf16 v[80:83], v[{48+4*jj}:{51+4*jj}], v[{16+4*jj}:{19+4*jj}], {'0' if jj==0 else 'v[80:83]'}")
    a("s_waitcnt lgkmcnt(0)")
    for jj in range(4):
        a(f"v_mfma_f32_16x16x32_bf16 v[84:87], v[{64+4*jj}:{67+4*jj}], v[{16+4*jj}:{19+4*jj}], {'0' if jj==0 else 'v[84:87]'}")
    a("v_cmp_lt_u32 vcc, 1, v1")
    for i in range(4):
        a(f"v_cndmask_b32 v{80+i}, v{80+i}, v{84+i}, vcc")
    for i in range(4):
        a(f"v_bfi_b32 v{80+i}, v11, s{35+i}, v{80+i}")
    a(f"""
    s_mov_b32 s64, 0x000f000f
    s_mov_b32 s65, 0x000f000f
    s_mov_b64 exec, s[64:65]
    global_store_dwordx4 v10, v[80:83], s[30:31] sc1
    s_mov_b64 exec, -1
    """)
    stamp("S published")
    a(f"""
    s_cmp_eq_u32 s3, 3
    s_cbranch_scc1 L_common
    s_cmp_eq_u32 s3, 2
    s_cselect_b32 s57, 31, 63
    v_and_b32 v12, s57, v0
    s_lshl_b32 s57, s4, 14
    s_lshl_b32 s58, s6, 13
    s_add_u32 s57, s57, s58
    s_lshl_b32 s58, s3, 10
    s_add_u32 s57, s57, s58
    s_add_u32 s57, s57, {QP}
    s_cmp_eq_u32 s3, 2
    s_cselect_b32 s57, s63, s57
    s_add_u32 s57, s57, 4096
    v_lshlrev_b32 v13, 4, v12
    v_add_u32 v13, s57, v13
    s_mov_b32 s58, 0x0c0c0400
    s_mov_b32 s59, 0x04000c0c
    s_mov_b32 s57, 0
    L_qpoll:
    """)
    for c in range(4):
        a(f"global_load_dwordx4 v[{32+4*c}:{35+4*c}], v13, s[30:31] offset:{c*2048-4096} sc1")
    a("s_waitcnt vmcnt(0)")
    for c in range(4):
        a(f"v_perm_b32 v{48+2*c}, v{33+4*c}, v{32+4*c}, s58")
        a(f"v_perm_b32 v{49+2*c}, v{35+4*c}, v{34+4*c}, s59")
        a(f"v_or_b32 v{48+2*c}, v{48+2*c}, v{49+2*c}")
        a(f"v_xor_b32 v{48+2*c}, s35, v{48+2*c}")
    a(f"""
    v_or3_b32 v48, v48, v50, v52
    v_or_b32 v48, v48, v54
    v_cmp_ne_u32 vcc, 0, v48
    s_add_u32 s57, s57, 1
    s_mov_b64 exec, vcc
    s_cbranch_execz L_qdone
    s_cmp_lt_u32 s57, {SPIN}
    s_cbranch_scc1 L_qpoll
    L_qdone:
    s_mov_b64 exec, -1
    s_movk_i32 s58, 0xff00
    """)
    for i in range(16):
        a(f"v_and_b32 v{32+i}, s58, v{32+i}")
    a(f"""
    v_pk_add_f32 v[32:33], v[32:33], v[36:37]
    v_pk_add_f32 v[34:35], v[34:35], v[38:39]
    v_pk_add_f32 v[40:41], v[40:41], v[44:45]
    v_pk_add_f32 v[42:43], v[42:43], v[46:47]
    v_pk_add_f32 v[32:33], v[32:33], v[40:41]
    v_pk_add_f32 v[34:35], v[34:35], v[42:43]
    v_cvt_pk_bf16_f32 v32, v32, v33
    v_cvt_pk_bf16_f32 v33, v34, v35
    s_add_u32 s60, s60, 6144
    v_lshlrev_b32 v12, 3, v12
    v_add_u32 v12, s60, v12
    ds_write_b64 v12, v[32:33]
    """)
    if stamps:
        a("s_mov_b32 s69, s57")
    stamp("S gathered")

    a("L_common:")
    a(f"""
    s_mov_b32 s62, 0xffff0000
    s_mov_b32 s64, 0x000f000f
    s_mov_b32 s65, 0x000f000f
    s_mov_b32 s48, s16
    s_mov_b32 s49, s17
    s_mov_b32 s50, 0x400000
    s_mov_b32 s52, s24
    s_mov_b32 s53, s25
    s_cmp_eq_u32 s32, 7
    s_cselect_b32 s54, 0, 0x1c0000
    s_lshl_b32 s56, s3, 1
    s_and_b32 s56, s56, 4
    v_or_b32 v3, s56, v2
    v_lshlrev_b32 v3, 1, v3
    v_xor_b32 v3, v3, v1
    v_lshlrev_b32 v3, 4, v3
    s_lshl_b32 s56, s3, 2
    v_add_u32 v4, s56, v2
    v_lshl_add_u32 v3, v4, 10, v3
    s_lshl_b32 s56, s34, 16
    s_lshl_b32 s59, s33, 8
    s_add_u32 s56, s56, s59
    s_mul_i32 s57, s4, 7
    s_add_u32 s57, s57, s32
    s_lshl_b32 s57, s57, 15
    s_add_u32 s57, s57, s59
    s_lshr_b32 s58, s3, 1
    s_lshl_b32 s58, s58, 13
    s_and_b32 s59, s3, 1
    s_lshl_b32 s59, s59, 10
    s_add_u32 s58, s58, s59
    s_add_u32 s58, s58, {LW}
    v_xor_b32 v4, v2, v1
    v_lshlrev_b32 v4, 4, v4
    v_lshl_add_u32 v4, v1, 8, v4
    s_lshl_b32 s59, s3, 13
    v_add_u32 v4, s59, v4
    v_xor_b32 v5, 64, v4
    v_xor_b32 v6, 0x80, v4
    v_xor_b32 v7, 0xc0, v4
    v_and_b32 v8, 2, v1
    v_lshlrev_b32 v8, 12, v8
    v_and_b32 v9, 1, v1
    v_lshl_add_u32 v8, v9, 8, v8
    v_lshl_add_u32 v8, v2, 4, v8
    v_add_u32 v8, {R(0)}, v8
    v_and_b32 v9, 3, v1
    v_lshlrev_b32 v11, 5, v9
    v_add_u32 v11, {MAXB}, v11
    s_lshl_b32 s59, s3, 2
    v_add_u32 v10, s59, v11
    v_lshlrev_b32 v12, 4, v9
    v_lshl_add_u32 v12, v2, 6, v12
    v_add_u32 v12, {PB}, v12
    s_lshl_b32 s59, s3, 8
    v_add_u32 v13, s59, v12
    v_lshrrev_b32 v14, 2, v1
    v_lshl_add_u32 v14, v2, 2, v14
    v_and_b32 v15, 7, v14
    v_xor_b32 v15, s3, v15
    v_lshlrev_b32 v15, 5, v15
    v_lshl_add_u32 v14, v14, 8, v15
    v_lshl_add_u32 v14, v9, 3, v14
    v_add_u32 v14, 0x10000, v14
    s_lshl_b32 s59, s4, 1
    s_add_u32 s59, s59, s6
    s_lshl_b32 s60, s59, 14
    s_lshr_b32 s61, s3, 2
    s_lshl_b32 s61, s61, 11
    s_add_u32 s60, s60, s61
    s_lshl_b32 s61, s7, 7
    s_add_u32 s60, s60, s61
    s_and_b32 s61, s3, 3
    s_lshl_b32 s61, s61, 5
    s_add_u32 s60, s60, s61
    s_add_u32 s60, s60, {OP}
    v_lshlrev_b32 v15, 12, v9
    v_lshl_add_u32 v15, v2, 3, v15
    v_add_u32 v15, s60, v15
    s_lshl_b32 s60, s59, 9
    s_lshl_b32 s61, s7, 2
    s_add_u32 s60, s60, s61
    s_add_u32 s60, s60, {ST}
    v_lshlrev_b32 v121, 7, v9
    v_add_u32 v121, s60, v121
    s_waitcnt lgkmcnt(0)
    s_barrier
    """)
    setstamp(5); stamp("B1")
    for j in range(4):
        a(f"ds_read_b128 v[{16+4*j}:{19+4*j}], v8 offset:{64*j}")
    for blk in range(2):
        for j in range(4):
            d = 48 + 16 * blk + 4 * j
            a(f"ds_read_b128 v[{d}:{d+3}], v{4+j} offset:{4096*blk}")
    a(f"""
    s_mov_b32 m0, s58
    s_add_u32 s58, s58, 2048
    buffer_load_dwordx4 v3, s[48:51], s56 offen nt lds
    s_add_u32 s56, s56, 32768
    s_waitcnt lgkmcnt(4)
    """)
    for j in range(4):
        a(f"v_mfma_f32_16x16x32_bf16 v[80:83], v[{48+4*j}:{51+4*j}], v[{16+4*j}:{19+4*j}], {'0' if j==0 else 'v[80:83]'}")
    a("s_waitcnt lgkmcnt(0)")
    for j in range(4):
        a(f"v_mfma_f32_16x16x32_bf16 v[84:87], v[{64+4*j}:{67+4*j}], v[{16+4*j}:{19+4*j}], {'0' if j==0 else 'v[84:87]'}")
    a(f"s_mov_b32 s59, {SCALE}")
    for i in range(4):
        a(f"v_cvt_pk_bf16_f32 v{40+i}, v{80+2*i}, v{81+2*i}")
    for i in range(4):
        a(f"v_lshlrev_b32 v{32+2*i}, 16, v{40+i}")
        a(f"v_and_b32 v{33+2*i}, s62, v{40+i}")
    for i in range(8):
        a(f"v_mul_f32 v{32+i}, s59, v{32+i}")
    for i in range(4):
        a(f"v_cvt_pk_bf16_f32 v{40+i}, v{32+2*i}, v{33+2*i}")
    for i in range(4):
        a(f"v_lshlrev_b32 v{32+2*i}, 16, v{40+i}")
        a(f"v_and_b32 v{33+2*i}, s62, v{40+i}")
    a("""
    v_max3_f32 v40, v32, v33, v34
    v_max3_f32 v41, v35, v36, v37
    v_max3_f32 v40, v40, v38, v39
    v_max_f32 v40, v40, v41
    """)
    reduce_g(40, 41, "v_max_f32")
    a("""
    ds_write_b32 v10, v40
    s_waitcnt lgkmcnt(0)
    s_barrier
    """)
    stamp("B2")
    a(f"""
    ds_read_b128 v[40:43], v11
    ds_read_b128 v[44:47], v11 offset:16
    s_mov_b32 m0, s58
    s_add_u32 s58, s58, 2048
    buffer_load_dwordx4 v3, s[48:51], s56 offen nt lds
    s_mov_b32 s59, {LOG2E}
    s_waitcnt lgkmcnt(0)
    v_max3_f32 v40, v40, v41, v42
    v_max3_f32 v44, v44, v45, v46
    v_max3_f32 v40, v40, v43, v47
    v_max_f32 v40, v40, v44
    """)
    for i in range(8):
        a(f"v_sub_f32 v{32+i}, v{32+i}, v40")
    for i in range(8):
        a(f"v_mul_f32 v{32+i}, s59, v{32+i}")
    for i in range(8):
        a(f"v_exp_f32 v{32+i}, v{32+i}")
    a("v_mul_f32 v122, s59, v40")
    for i in range(4):
        a(f"v_cvt_pk_bf16_f32 v{44+i}, v{32+2*i}, v{33+2*i}")
    a(f"""
    ds_write_b128 v13, v[44:47]
    v_pk_add_f32 v[32:33], v[32:33], v[34:35]
    v_pk_add_f32 v[36:37], v[36:37], v[38:39]
    v_pk_add_f32 v[32:33], v[32:33], v[36:37]
    v_add_f32 v32, v32, v33
    """)
    reduce_g(32, 33)
    a(f"""
    ds_write_b32 v10, v32 offset:{LSUM-MAXB}
    s_mov_b32 m0, s58
    s_nop 0
    buffer_load_dwordx4 v3, s[52:55], s57 offen nt lds
    s_waitcnt vmcnt({3 + 16 - 2*stageA}) lgkmcnt(0)
    s_barrier
    """)
    stamp("B3")
    a(f"""
    ds_read_b128 v[40:43], v11 offset:{LSUM-MAXB}
    ds_read_b128 v[44:47], v11 offset:{LSUM-MAXB+16}
    """)
    for u in range(8):
        a(f"ds_read_b128 v[{48+4*u}:{51+4*u}], v12 offset:{256*u}")
    a("s_waitcnt lgkmcnt(8)")
    a("""
    v_pk_add_f32 v[40:41], v[40:41], v[42:43]
    v_pk_add_f32 v[44:45], v[44:45], v[46:47]
    v_pk_add_f32 v[40:41], v[40:41], v[44:45]
    v_add_f32 v40, v40, v41
    v_log_f32 v41, v40
    v_rcp_f32 v123, v40
    """)
    a("s_waitcnt lgkmcnt(0)")
    for u in range(stageA):
        for e in range(2):
            d = 88 + 4 * u + 2 * e
            a(f"ds_read_b64_tr_b16 v[{d}:{d+1}], v14 offset:{8192*u+4096*e}")
    a(f"""
    v_add_f32 v41, v41, v122
    s_cmp_lg_u32 s3, 3
    s_cbranch_scc1 L_nostat
    s_mov_b64 exec, 15
    global_store_dword v121, v41, s[30:31] sc1
    s_mov_b64 exec, -1
    L_nostat:
    """)
    for u in range(stageA):
        a(f"s_waitcnt lgkmcnt({2*(stageA-1-u)})")
        a(f"v_mfma_f32_16x16x32_bf16 v[80:83], v[{88+4*u}:{91+4*u}], v[{48+4*u}:{51+4*u}], {'0' if u==0 else 'v[80:83]'}")
    a(f"""
    s_cmp_ge_u32 s3, 4
    s_cbranch_scc1 L_lwait
    """)
    a(f"""
    s_and_b32 s56, s3, 1
    s_lshl_b32 s57, s56, 6
    v_lshlrev_b32 v4, 4, v2
    v_add_u32 v5, s57, v4
    v_add_u32 v5, {R(2)}, v5
    ds_read_b128 v[16:19], v5
    ds_read_b128 v[20:23], v5 offset:128
    s_lshl_b32 s57, s4, 1
    s_add_u32 s57, s57, s56
    s_lshl_b32 s58, s57, 14
    s_lshl_b32 s59, s32, 11
    s_add_u32 s58, s58, s59
    s_add_u32 s58, s58, {OP}
    v_lshl_add_u32 v6, v1, 7, v4
    v_add_u32 v6, s58, v6
    s_lshl_b32 s58, s57, 9
    s_lshr_b32 s59, s32, 1
    s_lshl_b32 s59, s59, 7
    s_add_u32 s58, s58, s59
    s_add_u32 s58, s58, {ST}
    v_add_u32 v7, s58, v4
    v_lshrrev_b32 v8, 2, v1
    v_and_b32 v10, 1, v2
    v_lshl_add_u32 v10, v10, 2, v8
    s_lshl_b32 s58, s3, 1
    s_and_b32 s58, s58, 4
    v_xor_b32 v10, s58, v10
    v_lshlrev_b32 v10, 5, v10
    v_lshl_add_u32 v8, v8, 8, v10
    v_lshl_add_u32 v8, v9, 3, v8
    v_lshl_add_u32 v8, v2, 13, v8
    v_add_u32 v8, {LW}, v8
    v_xor_b32 v9, 32, v8
    v_xor_b32 v10, 64, v8
    v_xor_b32 v11, 0x60, v8
    v_lshrrev_b32 v12, 1, v2
    v_and_b32 v13, 1, v2
    v_lshl_add_u32 v12, v13, 1, v12
    v_lshrrev_b32 v13, 2, v1
    v_lshl_add_u32 v12, v12, 2, v13
    v_lshlrev_b32 v12, 11, v12
    v_and_b32 v13, 3, v1
    v_lshl_add_u32 v12, v13, 3, v12
    s_lshl_b32 s58, s56, 18
    s_lshl_b32 s59, s33, 16
    s_add_u32 s58, s58, s59
    s_lshr_b32 s59, s3, 1
    s_lshl_b32 s59, s59, 15
    s_add_u32 s58, s58, s59
    s_lshl_b32 s59, s34, 5
    s_add_u32 s58, s58, s59
    s_add_u32 s58, s58, {FP}
    v_add_u32 v12, s58, v12
    s_lshl_b32 s58, s2, 11
    s_add_u32 s58, s58, {FP}
    v_lshlrev_b32 v13, 4, v0
    v_add_u32 v13, s58, v13
    s_waitcnt lgkmcnt(0)
    """)
    for i in range(4):
        a(f"v_lshlrev_b32 v{32+2*i}, 16, v{16+i}")
        a(f"v_and_b32 v{33+2*i}, s62, v{16+i}")
        a(f"v_lshlrev_b32 v{40+2*i}, 16, v{20+i}")
        a(f"v_and_b32 v{41+2*i}, s62, v{20+i}")
    for i in range(8):
        a(f"v_max_f32 v{32+i}, 0, v{32+i}")
    for i in range(8):
        a(f"v_mul_f32 v{32+i}, v{32+i}, v{40+i}")
    a("v_cmp_eq_u32 vcc, 0, v1")
    for i in range(4):
        a(f"v_cvt_pk_bf16_f32 v{28+i}, v{32+2*i}, v{33+2*i}")
    for i in range(4):
        a(f"v_cndmask_b32 v{28+i}, 0, v{28+i}, vcc")
    a("""
    s_branch L_b5
    L_lwait:
    s_waitcnt vmcnt(3)
    L_b5:
    s_barrier
    """)
    stamp("B5")
    for u in range(stageA, 8):
        for e in range(2):
            d = 88 + 4 * u + 2 * e
            a(f"ds_read_b64_tr_b16 v[{d}:{d+1}], v14 offset:{8192*u+4096*e}")
    for u in range(stageA, 8):
        a(f"s_waitcnt lgkmcnt({2*(7-u)})")
        a(f"v_mfma_f32_16x16x32_bf16 v[80:83], v[{88+4*u}:{91+4*u}], v[{48+4*u}:{51+4*u}], {'0' if u==0 else 'v[80:83]'}")
    for i in range(4):
        a(f"v_mul_f32 v{80+i}, v{80+i}, v123")
    a("""
    v_cvt_pk_bf16_f32 v80, v80, v81
    v_cvt_pk_bf16_f32 v81, v82, v83
    s_mov_b64 exec, s[64:65]
    global_store_dwordx2 v15, v[80:81], s[30:31] sc1
    s_mov_b64 exec, -1
    """)
    stamp("o published")
    a("""
    s_cmp_ge_u32 s3, 4
    s_cbranch_scc0 L_stage2
    s_waitcnt vmcnt(1)
    s_barrier
    """)
    a("s_branch L_fin" if stamps else "s_endpgm")
    a("L_stage2:")
    a("""
    global_load_dwordx4 v[16:19], v6, s[30:31] sc1
    global_load_dwordx4 v[20:23], v6, s[30:31] offset:64 sc1
    global_load_dwordx4 v[24:27], v7, s[30:31] sc1
    s_waitcnt vmcnt(4)
    s_barrier
    """)
    stamp("B6")
    for q in range(4):
        for e in range(2):
            d = 88 + 4 * q + 2 * e
            a(f"ds_read_b64_tr_b16 v[{d}:{d+1}], v{8+q} offset:{(4+e)*1024}")
    a("s_waitcnt lgkmcnt(0)")
    for ks in range(2):
        for q in range(4):
            for e in range(2):
                d = 48 + 16 * ks + 4 * q + 2 * e
                a(f"ds_read_b64_tr_b16 v[{d}:{d+1}], v{8+q} offset:{(2*ks+e)*1024}")
            if ks == 0:
                a(f"v_mfma_f32_16x16x32_bf16 v[{32+4*q}:{35+4*q}], v[28:31], v[{88+4*q}:{91+4*q}], 0")
        if ks == 0:
            a("s_waitcnt lgkmcnt(7)")
    a(f"""
    s_mov_b32 s57, 0
    s_branch L_ocheck
    L_opoll:
    global_load_dwordx4 v[16:19], v6, s[30:31] sc1
    global_load_dwordx4 v[20:23], v6, s[30:31] offset:64 sc1
    global_load_dwordx4 v[24:27], v7, s[30:31] sc1
    L_ocheck:
    s_waitcnt vmcnt(0)
    v_max3_u32 v84, v16, v17, v18
    v_max3_u32 v85, v19, v20, v21
    v_max3_u32 v86, v22, v23, v24
    v_max3_u32 v87, v25, v26, v27
    v_max3_u32 v84, v84, v85, v86
    v_max_u32 v84, v84, v87
    v_cmp_eq_u32 vcc, -1, v84
    s_add_u32 s57, s57, 1
    s_mov_b64 exec, vcc
    s_cbranch_execz L_odone
    s_cmp_lt_u32 s57, {SPIN}
    s_cbranch_scc1 L_opoll
    L_odone:
    s_mov_b64 exec, -1
    s_waitcnt lgkmcnt(0)
    """)
    if stamps: a("s_mov_b32 s68, s57")
    stamp("o gathered")
    for ks in range(2):
        for q in range(4):
            a(f"v_mfma_f32_16x16x32_bf16 v[{104+4*q}:{107+4*q}], v[{16+4*ks}:{19+4*ks}], v[{48+16*ks+4*q}:{51+16*ks+4*q}], {'0' if ks==0 else f'v[{104+4*q}:{107+4*q}]'}")
    a("""
    v_max3_f32 v84, v24, v25, v26
    v_max_f32 v84, v84, v27
    """)
    reduce_g(84, 85, "v_max_f32")
    for i in range(4):
        a(f"v_sub_f32 v{24+i}, v{24+i}, v84")
    for i in range(4):
        a(f"v_exp_f32 v{24+i}, v{24+i}")
    a("""
    v_add_f32 v84, v24, v25
    v_add_f32 v85, v26, v27
    v_add_f32 v84, v84, v85
    """)
    reduce_g(84, 85)
    a("v_rcp_f32 v84, v84")
    for i in range(4):
        a(f"v_mul_f32 v{24+i}, v{24+i}, v84")
    for i in range(4):
        for q in range(4):
            a(f"v_fmac_f32 v{32+4*q}, v{24+i}, v{104+4*q+i}")
    a("""
    v_permlane32_swap_b32 v32, v36
    v_permlane32_swap_b32 v40, v44
    v_add_f32 v32, v32, v36
    v_add_f32 v40, v40, v44
    v_mov_b32 v33, s35
    v_permlane16_swap_b32 v32, v40
    v_add_f32 v32, v32, v40
    global_store_dwordx2 v12, v[32:33], s[30:31] sc1
    """)
    stamp("final published")
    a(f"""
    s_cmp_lg_u32 s3, 0
    s_cbranch_scc1 {'L_fin' if stamps else 'L_end'}
    s_mov_b32 s57, 0
    L_fpoll:
    global_load_dwordx4 v[16:19], v13, s[30:31] sc1
    global_load_dwordx4 v[20:23], v13, s[30:31] offset:1024 sc1
    s_waitcnt vmcnt(0)
    v_xor_b32 v24, s35, v17
    v_xor_b32 v25, s35, v19
    v_xor_b32 v26, s35, v21
    v_xor_b32 v27, s35, v23
    v_or3_b32 v24, v24, v25, v26
    v_or_b32 v24, v24, v27
    v_cmp_ne_u32 vcc, 0, v24
    s_add_u32 s57, s57, 1
    s_mov_b64 exec, vcc
    s_cbranch_execz L_fdone
    s_cmp_lt_u32 s57, {SPIN}
    s_cbranch_scc1 L_fpoll
    L_fdone:
    s_mov_b64 exec, -1
    v_add_f32 v16, v16, v20
    v_add_f32 v18, v18, v22
    """)
    if stamps: a("s_mov_b32 s67, s57")
    for m in ("quad_perm:[2,3,0,1]", "row_ror:4", "row_ror:8"):
        a(f"v_add_f32_dpp v16, v16, v16 {m} {DPPM}")
        a(f"v_add_f32_dpp v18, v18, v18 {m} {DPPM}")
    a("""
    v_lshlrev_b32 v20, 16, v120
    v_and_b32 v21, s62, v120
    v_permlane16_swap_b32 v16, v18
    v_add_f32 v16, v16, v18
    v_mov_b32 v17, v16
    v_permlane32_swap_b32 v16, v17
    v_add_f32 v16, v16, v17
    v_mov_b32 v17, v16
    v_permlane16_swap_b32 v16, v17
    v_add_f32 v16, v16, v20
    v_add_f32 v17, v17, v21
    v_cvt_pk_bf16_f32 v16, v16, v17
    s_lshl_b32 s58, s2, 3
    v_lshlrev_b32 v18, 2, v0
    v_add_u32 v18, s58, v18
    s_mov_b64 exec, 3
    global_store_dword v18, v16, s[26:27]
    s_cmp_lg_u32 s2, 0
    """)
    a(f"s_cbranch_scc1 {'L_fin0' if stamps else 'L_end'}")
    a("""
    s_mov_b64 exec, 1
    v_mov_b32 v19, 0
    global_store_dword v19, v33, s[30:31]
    """)
    if stamps:
        a("L_fin0:")
        a("s_mov_b64 exec, -1")
        stamp("out stored")
        a("L_fin:")
        a("s_memrealtime s[66:67]" if False else "s_nop 0")
        a("s_getreg_b32 s66, hwreg(HW_REG_XCC_ID)")
        a("v_mov_b32 v32, s70")
        for i in range(14):
            a(f"v_mov_b32 v{33+i}, s{72+2*i}")
        a("v_mov_b32 v47, s66")
        a("v_mov_b32 v48, s69")
        a("v_mov_b32 v49, s68")
        a("v_mov_b32 v50, s67")
        a("v_mov_b32 v51, 0")
        a(f"""
        s_lshl_b32 s58, s2, 10
        s_lshl_b32 s59, s3, 7
        s_add_u32 s58, s58, s59
        s_add_u32 s58, s58, {STAMP}
        v_mov_b32 v3, s58
        s_mov_b64 exec, 1
        """)
        for j in range(5):
            a(f"global_store_dwordx4 v3, v[{32+4*j}:{35+4*j}], s[30:31] offset:{16*j}")
    a("L_end:")
    a("s_endpgm")
    a.raw('.section .rodata,"a"')
    a.raw(".p2align 6")
    a.raw(f".amdhsa_kernel {NAME}_kernel")
    a.raw("  .amdhsa_next_free_vgpr 128")
    a.raw("  .amdhsa_next_free_sgpr 102")
    a.raw("  .amdhsa_accum_offset 128")
    a.raw("  .amdhsa_group_segment_fixed_size 0")
    a.raw("  .amdhsa_kernarg_size 96")
    a.raw("  .amdhsa_user_sgpr_count 2")
    a.raw("  .amdhsa_user_sgpr_kernarg_segment_ptr 1")
    a.raw("  .amdhsa_system_sgpr_workgroup_id_x 1")
    a.raw("  .amdhsa_float_denorm_mode_32 3")
    a.raw(".end_amdhsa_kernel")
    return a.text()

if __name__ == "__main__":
    ap = argparse.ArgumentParser()
    ap.add_argument("-o", default="k.s")
    ap.add_argument("--stamps", action="store_true")
    ap.add_argument("--rotmul", type=int, default=37)
    ap.add_argument("--stageA", type=int, default=6)
    args = ap.parse_args()
    open(args.o, "w").write(gen(args.stamps, args.rotmul, args.stageA))
```

```python
import sys, argparse
from asmgen import Asm
NAME = "parallel_sum__sliding_block_cached__glu_gated_reglu__decode"

EX = 0x40000
QP = 0x0; ST = 0x4000; FL = 0x5000; GP = 0x8000; OP = 0x10000; FP = 0x20000
STAMP = 0x1000000
LW = 131072
def R(j): return LW + 8192 * j + 6144
MLB = R(2); PB = R(3); MODEB = 512
SPIN0 = 40000
LOG2E = 0x3fb8aa3b
SCALE = 0x3db504f3
DPPM = "row_mask:0xf bank_mask:0xf"
EINC = 0x08010101

HEADER = open("cdna_kernels/%s.s.ref" % NAME).read().split("; Override launch")[0]

def gen(stamps=False, opt=None):
    opt = opt or {}
    a0 = Asm()
    class W:
        raw = a0.raw; comment = a0.comment; text = a0.text
        def __call__(self, t): a0(t.replace('@PUB@', '; ' if opt.get('nopub') else ''))
    a = W()
    SPIN = opt.get('spin', SPIN0)
    rotmul = opt.get('rotmul', 37)
    kpre = opt.get('kpre', 4)
    vpre = opt.get('vpre', 8)
    NFAST = opt.get('nfast', 12)
    thr = opt.get('thr', 6)
    LF = opt.get('lf', 'sc1 nt')
    L1F = opt.get('l1f', 'sc1 nt').replace('none', '')
    thr2 = opt.get('thr2', 8); OT = opt.get('otouch', 1); OTF = opt.get('otf', 'sc1 nt'); vthr = opt.get('vthr', 4)
    TOUCH = opt.get('touch', 0)
    nst = [0]
    def stamp(name, i=None):
        if not stamps: return
        if i is not None: nst[0] = i
        i = nst[0]; nst[0] += 1
        assert i < 14
        a(f"s_memrealtime s[{72+2*i}:{73+2*i}]")
        a("s_waitcnt lgkmcnt(0)")
    def dpp(op, v, m): a(f"{op}_dpp v{v}, v{v}, v{v} {m} {DPPM}")
    def reduce_g(v, t, op="v_add_f32"):
        a(f"v_mov_b32 v{t}, v{v}")
        a(f"v_permlane16_swap_b32 v{v}, v{t}")
        a(f"{op} v{v}, v{v}, v{t}")
        a(f"v_mov_b32 v{t}, v{v}")
        a(f"v_permlane32_swap_b32 v{v}, v{t}")
        a(f"{op} v{v}, v{v}, v{t}")
    def reduce5(v, t, op="v_add_f32"):
        dpp(op, v, "quad_perm:[2,3,0,1]"); dpp(op, v, "row_ror:4"); dpp(op, v, "row_ror:8")
        reduce_g(v, t, op)
    def reduce4(v, t, op="v_add_f32"):
        dpp(op, v, "row_ror:4"); dpp(op, v, "row_ror:8")
        reduce_g(v, t, op)

    a.raw(HEADER.rstrip())
    a.raw("; @launch grid=(256,1,1) block=(512,1,1) lds=163840")
    a.raw('.amdgcn_target "amdgcn-amd-amdhsa--gfx950"')
    a.raw(".text")
    a.raw(f".globl {NAME}_kernel")
    a.raw(".p2align 12")
    a.raw(".p2align 8")
    a.raw(f".type {NAME}_kernel,@function")
    a.raw(f"{NAME}_kernel:")
    if stamps: a("s_memrealtime s[70:71]")
    a(f"""
    s_cmp_ge_u32 s2, 256
    s_cbranch_scc1 L_end
    s_load_dwordx16 s[8:23], s[0:1], 0
    s_load_dwordx8 s[24:31], s[0:1], 64
    v_lshrrev_b32 v3, 6, v0
    v_and_b32 v0, 63, v0
    v_readfirstlane_b32 s3, v3
    s_getpc_b64 s[56:57]
    s_lshr_b32 s5, s2, 3
    """)
    if not opt.get('nopf'):
        a(f"""
        s_and_b32 s58, s5, 15
        s_lshl_b32 s58, s58, 3
        s_add_u32 s58, s58, s3
        s_lshl_b32 s58, s58, 6
        s_min_u32 s58, s58, L_end-{NAME}_kernel-64
        s_load_dword s39, s[56:57], s58
        """)
    a(f"""
    v_and_b32 v1, 15, v0
    v_lshrrev_b32 v2, 4, v0
    s_and_b32 s4, s2, 7
    s_lshr_b32 s6, s5, 4
    s_and_b32 s7, s5, 15
    s_lshr_b32 s32, s5, 2
    s_and_b32 s33, s5, 3
    s_lshl_b32 s34, s4, 3
    s_add_u32 s34, s34, s32
    s_mov_b32 s43, 0x20000
    s_mul_i32 s63, s4, 7
    s_add_u32 s63, s63, 1
    s_and_b32 s63, s63, 0xfe
    s_add_u32 s63, s63, s32
    s_lshr_b32 s59, s32, 1
    s_and_b32 s60, s4, 1
    s_add_u32 s59, s59, s60
    s_cmp_lt_u32 s59, 4
    s_cselect_b32 s54, 0x1c0000, 0
    s_lshl_b32 s66, s4, 18
    s_add_u32 s66, s66, {EX}
    v_lshrrev_b32 v6, 3, v0
    v_and_b32 v7, 1, v2
    v_lshlrev_b32 v7, 1, v7
    v_and_b32 v8, 7, v0
    v_xor_b32 v7, v7, v8
    v_lshlrev_b32 v7, 4, v7
    v_lshl_add_u32 v28, v6, 13, v7
    v_xor_b32 v29, 64, v28
    s_lshl_b32 s57, s33, 20
    s_lshl_b32 s58, s3, 17
    s_add_u32 s57, s57, s58
    s_lshl_b32 s58, s34, 7
    s_add_u32 s57, s57, s58
    s_add_u32 s58, s57, 0x10000
    s_lshl_b32 s60, s3, 11
    s_add_u32 s60, s60, {LW}
    s_mov_b32 s50, 0x400000
    s_mov_b32 s51, 0x20000
    s_cmp_ge_u32 s3, 4
    s_cbranch_scc1 L_loader
    """)
    WQ = """
    s_add_u32 s28, s30, s66
    s_addc_u32 s29, s31, 0
    s_mov_b32 s48, s14
    s_mov_b32 s49, s15
    s_mov_b32 m0, s60
    s_add_u32 s60, s60, 1024
    buffer_load_dwordx4 v28, s[48:51], s57 offen nt lds
    s_mov_b32 m0, s60
    s_nop 0
    buffer_load_dwordx4 v29, s[48:51], s58 offen nt lds
    """
    a(f"""
    v_and_b32 v3, 1, v0
    v_lshlrev_b32 v3, 10, v3
    v_lshrrev_b32 v4, 1, v0
    v_lshl_add_u32 v4, v4, 5, v3
    s_and_b32 s59, s32, 1
    s_lshl_b32 s62, s59, 7
    s_cmp_lt_u32 s3, 2
    s_cselect_b32 s61, 3, 1
    s_cselect_b32 s62, 0, s62
    v_lshrrev_b32 v5, 2, v1
    v_and_b32 v5, s61, v5
    v_lshl_add_u32 v5, v5, 6, v3
    v_lshl_add_u32 v5, v2, 4, v5
    s_lshl_b32 s61, s33, 8
    s_add_u32 s61, s61, s62
    v_add_u32 v5, s61, v5
    v_mul_u32_u24 v30, 3584, v6
    v_add_u32 v31, v30, v7
    v_xor_b32 v7, 64, v7
    v_add_u32 v30, v30, v7
    s_lshl_b32 s56, s33, 1
    s_add_u32 s56, s56, s59
    s_mul_i32 s56, s56, {64*3584}
    s_lshr_b32 s59, s63, 1
    s_lshl_b32 s59, s59, 7
    s_add_u32 s56, s56, s59
    s_mov_b32 s42, s54
    s_lshl_b32 s59, s7, 7
    s_lshl_b32 s62, s6, 15
    s_add_u32 s62, s62, s59
    s_lshl_b32 s64, s3, 14
    s_add_u32 s62, s62, s64
    s_add_u32 s62, s62, {OP}
    v_lshlrev_b32 v20, 11, v6
    v_lshlrev_b32 v21, 4, v8
    v_add3_u32 v144, s62, v20, v21
    s_lshl_b32 s62, s6, 11
    s_add_u32 s62, s62, s59
    s_add_u32 s62, s62, {ST}
    v_add_u32 v145, s62, v21
    v_mov_b32 v24, -1
    v_mov_b32 v25, -1
    v_mov_b32 v26, -1
    v_mov_b32 v27, -1
    s_lshl_b32 s61, s3, 13
    s_add_u32 s61, s61, {LW+8192}
    s_waitcnt lgkmcnt(0)
    global_load_dwordx4 v[8:11], v4, s[8:9]
    global_load_dwordx4 v[12:15], v4, s[8:9] offset:16
    global_load_dwordx4 v[16:19], v5, s[8:9]
    {WQ}
    s_load_dword s35, s[30:31], 0
    s_cmp_lt_u32 s3, 2
    s_cbranch_scc1 L_sx0
    s_cmp_eq_u32 s3, 2
    s_cselect_b32 s40, s20, s22
    s_cselect_b32 s41, s21, s23
    s_cselect_b32 s64, 0, {24*128}
    s_sub_u32 s60, s61, 8192
    s_mul_i32 s62, s5, {48*128}
    s_add_u32 s62, s62, s64
    v_min_u32 v20, 23, v0
    v_lshlrev_b32 v20, 7, v20
    v_add_u32 v20, s62, v20
    s_barrier
    {'global_load_dword v94, v20, s[28:29] sc1' if TOUCH == 1 else ''}
    L_tloop:
    s_mov_b32 m0, s60
    s_add_u32 s60, s60, 1024
    buffer_load_dwordx4 v31, s[40:43], s56 offen nt lds
    s_add_u32 s56, s56, {8*3584}
    s_mov_b32 m0, s60
    s_add_u32 s60, s60, 1024
    buffer_load_dwordx4 v30, s[40:43], s56 offen nt lds
    s_add_u32 s56, s56, {8*3584}
    s_cmp_lt_u32 s60, s61
    s_cbranch_scc1 L_tloop
    s_waitcnt vmcnt({9 if TOUCH == 1 else 8})
    s_barrier
    s_barrier
    s_branch L_service
    L_sx0:
    {'' if opt.get('noclear') else 'global_store_dwordx4 v144, v[24:27], s[28:29]'}
    s_mov_b64 exec, 0xff
    {'' if opt.get('noclear') else 'global_store_dwordx4 v145, v[24:27], s[28:29]'}
    s_mov_b64 exec, -1
    s_barrier
    s_branch L_service
    """)
    a("L_loader:")
    FT = "\n".join(f"s_load_dword s38, s[36:37], {64*t} glc" for t in range(8)) if TOUCH == 3 else ""
    a(f"""
    s_sub_u32 s56, s3, 4
    s_lshl_b32 s36, s56, 2
    v_add_u32 v3, s36, v2
    v_xor_b32 v4, v3, v1
    v_lshlrev_b32 v4, 4, v4
    v_lshl_add_u32 v4, v2, 8, v4
    v_and_b32 v5, 7, v3
    v_lshlrev_b32 v5, 1, v5
    v_xor_b32 v5, v5, v1
    v_lshlrev_b32 v5, 4, v5
    v_lshl_add_u32 v3, v3, 10, v5
    v_lshl_add_u32 v5, v2, 8, v5
    s_lshl_b32 s36, s6, 3
    s_add_u32 s36, s36, s4
    s_lshl_b32 s36, s36, 23
    s_lshl_b32 s59, s7, 16
    s_add_u32 s36, s36, s59
    s_add_u32 s36, s36, 0x700000
    s_mul_i32 s59, s2, {rotmul}
    s_add_u32 s59, s59, s56
    s_and_b32 s59, s59, 63
    s_lshl_b32 s59, s59, 10
    s_mov_b32 s42, 0x10000
    s_mov_b32 s46, 0x10000
    s_mov_b32 s47, 0x20000
    s_waitcnt lgkmcnt(0)
    {WQ}
    s_add_u32 s40, s10, s36
    s_addc_u32 s41, s11, 0
    s_lshl_b32 s60, s56, 10
    s_barrier
    L_kloop0:
    s_mov_b32 m0, s60
    s_add_u32 s60, s60, 4096
    buffer_load_dwordx4 v4, s[40:43], s59 offen nt lds
    s_add_u32 s59, s59, 4096
    s_and_b32 s59, s59, 0xffff
    s_cmp_lt_u32 s60, {4096*kpre}
    s_cbranch_scc1 L_kloop0
    s_add_u32 s44, s12, s36
    s_addc_u32 s45, s13, 0
    s_mov_b32 s48, s16
    s_mov_b32 s49, s17
    s_lshl_b32 s57, s33, 8
    s_lshl_b32 s61, s34, 16
    s_add_u32 s61, s61, s57
    s_waitcnt vmcnt({kpre})
    s_barrier
    s_barrier
    L_kloop:
    s_waitcnt vmcnt({thr-1})
    s_mov_b32 m0, s60
    s_add_u32 s60, s60, 4096
    buffer_load_dwordx4 v4, s[40:43], s59 offen nt lds
    s_add_u32 s59, s59, 4096
    s_and_b32 s59, s59, 0xffff
    s_cmp_lt_u32 s60, 65536
    s_cbranch_scc1 L_kloop
    L_vloop:
    s_waitcnt vmcnt({thr-1})
    s_mov_b32 m0, s60
    s_add_u32 s60, s60, 4096
    buffer_load_dwordx4 v5, s[44:47], s59 offen nt lds
    s_add_u32 s59, s59, 4096
    s_and_b32 s59, s59, 0xffff
    s_cmp_lt_u32 s60, {65536 + 4096*min(vthr, vpre)}
    s_cbranch_scc1 L_vloop
    """)
    if vthr < vpre:
        a(f"""
    L_vloop1:
    s_waitcnt vmcnt({thr2-1})
    s_mov_b32 m0, s60
    s_add_u32 s60, s60, 4096
    buffer_load_dwordx4 v5, s[44:47], s59 offen nt lds
    s_add_u32 s59, s59, 4096
    s_and_b32 s59, s59, 0xffff
    s_cmp_lt_u32 s60, {65536 + 4096*vpre}
    s_cbranch_scc1 L_vloop1
    """)
    stamp("L pre issue", 0)
    a(f"s_waitcnt vmcnt({vpre}) lgkmcnt(0)")
    stamp("L K landed")
    a("s_barrier")
    stamp("B1", 5)
    tp = opt.get('tp', 14)
    nA = (tp - thr2) // 2
    nB = (20 - thr2) // 2
    def vloop(lbl, end):
        a(f"""
        {lbl}:
        s_waitcnt vmcnt({thr2-1})
        s_mov_b32 m0, s60
        s_add_u32 s60, s60, 4096
        buffer_load_dwordx4 v5, s[44:47], s59 offen nt lds
        s_add_u32 s59, s59, 4096
        s_and_b32 s59, s59, 0xffff
        s_cmp_lt_u32 s60, {65536 + 4096*end}
        s_cbranch_scc1 {lbl}
        """)
    vloop("L_vloop2", tp)
    a(f"s_waitcnt vmcnt({tp - 2*nA})")
    stamp("L at Bp", 2)
    a("s_barrier")
    stamp("Bp", 7)
    if tp < 16: vloop("L_vloop3", 16)
    a(f"""
    s_lshl_b32 s60, s56, 13
    s_add_u32 s60, s60, {LW}
    """)
    for t in range(4):
        a(f"""
        s_add_u32 m0, s60, {t*1024}
        s_waitcnt vmcnt({thr2-1})
        buffer_load_dwordx4 v3, s[48:51], s61 offen nt lds
        s_add_u32 s61, s61, 16384
        """)
    a(f"s_waitcnt vmcnt({20 - 2*nB})")
    stamp("L at Bq", 3)
    a("s_barrier")
    a("s_waitcnt vmcnt(4)")
    stamp("L V landed", 4)
    a("s_barrier")
    stamp("BB", 8)
    a("s_waitcnt vmcnt(0)")
    stamp("L wo landed", 9)
    a("s_barrier")
    a("s_branch L_fin" if stamps else "s_endpgm")

    a("L_service:")
    a(f"""
    s_lshl_b32 s67, s4, 5
    s_add_u32 s67, s67, s5
    s_lshl_b32 s59, s7, 7
    s_mov_b32 s62, 0xffff0000
    s_mov_b32 s64, 0x000f000f
    s_mov_b32 s65, 0x000f000f
    v_and_b32 v4, 3, v1
    v_lshrrev_b32 v5, 2, v1
    v_and_b32 v6, 1, v2
    s_lshl_b32 s57, s3, 2
    v_add_u32 v95, s57, v2
    v_and_b32 v7, 7, v95
    v_lshlrev_b32 v7, 1, v7
    v_xor_b32 v7, v7, v1
    v_lshlrev_b32 v7, 4, v7
    v_lshl_add_u32 v95, v95, 10, v7
    s_lshl_b32 s50, s63, 15
    s_lshl_b32 s57, s33, 8
    s_add_u32 s50, s50, s57
    s_mov_b32 s52, s24
    s_mov_b32 s53, s25
    s_mov_b32 s55, 0x20000
    v_lshrrev_b32 v96, 3, v1
    v_lshl_add_u32 v96, v6, 1, v96
    v_lshlrev_b32 v96, 5, v96
    v_lshl_add_u32 v96, v5, 7, v96
    v_lshl_add_u32 v96, v2, 10, v96
    v_lshl_add_u32 v96, v4, 3, v96
    s_sub_u32 s60, s61, 8192
    s_lshl_b32 s57, s3, 6
    s_movk_i32 s58, 0x2000
    s_cmp_lt_u32 s3, 2
    s_cselect_b32 s57, s57, 0
    s_cselect_b32 s56, {LW}, s60
    s_cselect_b32 s58, s58, 64
    v_xor_b32 v96, s57, v96
    v_add_u32 v96, s56, v96
    v_xor_b32 v97, 32, v96
    v_xor_b32 v92, s58, v96
    v_xor_b32 v93, 32, v92
    s_cselect_b32 s57, 13, 8
    v_and_b32 v98, 1, v1
    v_lshlrev_b32 v98, s57, v98
    v_lshrrev_b32 v7, 1, v1
    v_lshl_add_u32 v98, v7, 6, v98
    v_lshl_add_u32 v98, v2, 4, v98
    s_lshl_b32 s57, s32, 8
    s_lshl_b32 s58, s3, 7
    s_add_u32 s57, s57, s58
    s_add_u32 s57, s57, {QP}
    s_lshr_b32 s63, s32, 1
    s_lshl_b32 s63, s63, 13
    s_add_u32 s63, s63, {GP}
    s_and_b32 s56, s32, 1
    s_lshl_b32 s58, s56, 10
    s_add_u32 s58, s58, s63
    s_lshl_b32 s56, s56, 7
    s_add_u32 s63, s63, s56
    s_lshl_b32 s56, s3, 9
    s_add_u32 s58, s58, s56
    s_sub_u32 s58, s58, 1024
    s_cmp_lt_u32 s3, 2
    s_cselect_b32 s57, s57, s58
    s_lshl_b32 s58, s33, 11
    s_add_u32 s57, s57, s58
    v_add_u32 v98, s57, v98
    s_lshl_b32 s57, s6, 13
    s_lshl_b32 s58, s3, 10
    s_add_u32 s57, s57, s58
    s_add_u32 s57, s57, {QP+4096}
    v_lshlrev_b32 v99, 4, v0
    v_add_u32 v99, s57, v99
    s_add_u32 s60, s60, 6144
    v_lshlrev_b32 v100, 3, v0
    v_add_u32 v100, s60, v100
    s_lshl_b32 s58, s6, 11
    s_add_u32 s58, s58, s59
    s_add_u32 s58, s58, {ST}
    v_lshlrev_b32 v118, 2, v0
    v_add_u32 v118, s58, v118
    v_mov_b32 v121, 0xff
    s_getreg_b32 s68, hwreg(HW_REG_XCC_ID)
    s_and_b32 s68, s68, 7
    s_cmp_lt_u32 s3, 2
    s_cbranch_scc0 L_ln
    s_waitcnt vmcnt({2 if opt.get('noclear') else 4})
    L_ln:
    """)
    stamp("S x landed", 0)
    for i in range(8):
        a(f"v_lshlrev_b32 v{32+2*i}, 16, v{8+i}")
        a(f"v_and_b32 v{33+2*i}, s62, v{8+i}")
    for i in range(4):
        a(f"v_pk_add_f32 v[{48+2*i}:{49+2*i}], v[{32+4*i}:{33+4*i}], v[{34+4*i}:{35+4*i}]")
    a("v_pk_add_f32 v[48:49], v[48:49], v[50:51]")
    a("v_pk_add_f32 v[52:53], v[52:53], v[54:55]")
    a("v_pk_add_f32 v[48:49], v[48:49], v[52:53]")
    a("v_add_f32 v48, v48, v49")
    reduce5(48, 49)
    a("v_mul_f32 v48, 0xbb000000, v48")
    a("v_mov_b32 v49, v48")
    for i in range(8):
        a(f"v_pk_add_f32 v[{32+2*i}:{33+2*i}], v[{32+2*i}:{33+2*i}], v[48:49]")
    a("v_pk_mul_f32 v[50:51], v[32:33], v[32:33]")
    a("v_pk_mul_f32 v[52:53], v[34:35], v[34:35]")
    for i in range(2, 8):
        d = 50 + 2 * (i & 1)
        a(f"v_pk_fma_f32 v[{d}:{d+1}], v[{32+2*i}:{33+2*i}], v[{32+2*i}:{33+2*i}], v[{d}:{d+1}]")
    a("v_pk_add_f32 v[50:51], v[50:51], v[52:53]")
    a("v_add_f32 v50, v50, v51")
    a("""
    v_cvt_pk_bf16_f32 v48, v48, v48
    v_and_b32 v48, s62, v48
    v_mov_b32 v49, v48
    """)
    dpp("v_add_f32", 50, "quad_perm:[2,3,0,1]")
    fr = []
    for i in range(4):
        fr.append(f"v_lshlrev_b32 v{32+2*i}, 16, v{16+i}")
        fr.append(f"v_and_b32 v{33+2*i}, s62, v{16+i}")
    for i in range(4):
        fr.append(f"v_pk_add_f32 v[{32+2*i}:{33+2*i}], v[{32+2*i}:{33+2*i}], v[48:49]")
    for i in range(4):
        fr.append(f"v_cvt_pk_bf16_f32 v{16+i}, v{32+2*i}, v{33+2*i}")
    for i in range(4):
        fr.append(f"v_lshlrev_b32 v{32+2*i}, 16, v{16+i}")
        fr.append(f"v_and_b32 v{33+2*i}, s62, v{16+i}")
    ch = [f"v_add_f32_dpp v50, v50, v50 row_ror:4 {DPPM}", None, None,
          f"v_add_f32_dpp v50, v50, v50 row_ror:8 {DPPM}", "v_mov_b32 v51, v50", None, None,
          "v_permlane16_swap_b32 v50, v51", "v_add_f32 v50, v50, v51", "v_mov_b32 v51, v50", None, None,
          "v_permlane32_swap_b32 v50, v51", "v_add_f32 v50, v50, v51",
          "v_mul_f32 v50, 0x3b000000, v50", "v_cvt_pk_bf16_f32 v50, v50, v50", "v_and_b32 v50, s62, v50",
          "v_add_f32 v50, 0x3727c5ac, v50", "v_cvt_pk_bf16_f32 v50, v50, v50", "v_and_b32 v50, s62, v50",
          "v_sqrt_f32 v50, v50", None, "v_cvt_pk_bf16_f32 v50, v50, v50", "v_and_b32 v50, s62, v50",
          "v_rcp_f32 v50, v50", None]
    for c in ch:
        a(c if c else fr.pop(0))
    a("v_mov_b32 v51, v50")
    for x in fr: a(x)
    for i in range(4):
        a(f"v_pk_mul_f32 v[{32+2*i}:{33+2*i}], v[{32+2*i}:{33+2*i}], v[50:51]")
    for i in range(4):
        a(f"v_cvt_pk_bf16_f32 v{16+i}, v{32+2*i}, v{33+2*i}")
    for jj in range(1, 4):
        for i in range(4):
            a(f"v_mov_b32_dpp v{16+4*jj+i}, v{16+i} row_ror:{16-4*jj} {DPPM}")
    a(f"""
    s_waitcnt lgkmcnt(0)
    s_add_u32 s35, s35, {EINC}
    s_lshr_b32 s36, s35, 8
    s_lshr_b32 s37, s35, 16
    s_lshr_b32 s38, s35, 24
    s_and_b32 s38, s38, 0xf8
    s_or_b32 s38, s38, s68
    s_and_b32 s39, s35, 0x00ffffff
    s_lshl_b32 s57, s38, 24
    s_or_b32 s39, s39, s57
    v_cmp_lt_u32 vcc, 1, v1
    """)
    stamp("S LN done")
    a(f"""
    s_cmp_lt_u32 s3, 2
    s_waitcnt vmcnt(0)
    s_cbranch_scc0 L_w3
    s_barrier
    L_w3:
    """)
    stamp("S tile landed")
    TA = [96, 97, 92, 93]
    for aa in range(4):
        for ss in range(2):
            for e in range(2):
                d = 48 + 8 * aa + 4 * ss + 2 * e
                a(f"ds_read_b64_tr_b16 v[{d}:{d+1}], v{TA[aa]} offset:{ss*4096+e*512}")
    def p1mfma(aa):
        for ss in range(2):
            bi = 16 + 4 * (2 * (aa >> 1) + ss)
            a(f"v_mfma_f32_16x16x32_bf16 v[{32+4*aa}:{35+4*aa}], v[{48+8*aa+4*ss}:{51+8*aa+4*ss}], v[{bi}:{bi+3}], {'0' if ss==0 else f'v[{32+4*aa}:{35+4*aa}]'}")
    a("s_waitcnt lgkmcnt(8)")
    p1mfma(0); p1mfma(1)
    a("""
    s_waitcnt lgkmcnt(0)
    s_cbranch_scc0 L_w4
    s_barrier
    L_w4:
    """)
    p1mfma(2); p1mfma(3)
    for i in range(4):
        a(f"v_cndmask_b32 v{32+i}, v{32+i}, v{36+i}, vcc")
    for i in range(4):
        a(f"v_cndmask_b32 v{40+i}, v{40+i}, v{44+i}, vcc")
    a("s_mov_b64 exec, s[64:65]")
    a("s_cbranch_scc1 L_w5")
    for i in range(4):
        a(f"v_bfi_b32 v{40+i}, v121, s{35+i}, v{40+i}")
    a("""
    @PUB@global_store_dwordx4 v98, v[40:43], s[28:29] offset:128
    s_branch L_w6
    L_w5:
    v_pk_add_f32 v[32:33], v[32:33], v[40:41]
    v_pk_add_f32 v[34:35], v[34:35], v[42:43]
    L_w6:
    """)
    for i in range(4):
        a(f"v_bfi_b32 v{32+i}, v121, s{35+i}, v{32+i}")
    a(f"""
    @PUB@global_store_dwordx4 v98, v[32:35], s[28:29]
    s_mov_b64 exec, -1
    """)
    stamp("S published")
    a("""
    s_sub_u32 m0, s61, 4096
    s_add_u32 s51, s50, 16384
    buffer_load_dwordx4 v95, s[52:55], s50 offen nt lds
    s_sub_u32 m0, s61, 3072
    s_nop 0
    buffer_load_dwordx4 v95, s[52:55], s51 offen nt lds
    """)
    a(f"""
    v_xor_b32 v101, v2, v1
    v_lshlrev_b32 v101, 4, v101
    v_lshl_add_u32 v101, v1, 8, v101
    s_lshl_b32 s59, s3, 14
    v_add_u32 v101, s59, v101
    v_xor_b32 v102, 64, v101
    v_xor_b32 v103, 0x80, v101
    v_xor_b32 v104, 0xc0, v101
    v_and_b32 v105, 2, v1
    v_lshlrev_b32 v105, 12, v105
    v_and_b32 v7, 1, v1
    v_lshl_add_u32 v105, v7, 8, v105
    v_lshl_add_u32 v105, v2, 4, v105
    v_add_u32 v105, {R(0)}, v105
    v_lshrrev_b32 v106, 1, v5
    v_lshlrev_b32 v106, 8, v106
    v_lshl_add_u32 v106, v2, 6, v106
    v_lshl_add_u32 v106, v4, 4, v106
    v_and_b32 v8, 1, v5
    v_lshl_add_u32 v106, v8, 3, v106
    s_lshl_b32 s59, s3, 9
    s_add_u32 s59, s59, {PB}
    v_add_u32 v106, s59, v106
    v_lshlrev_b32 v122, 5, v4
    v_add_u32 v122, {MLB}, v122
    s_lshl_b32 s59, s3, 2
    v_add_u32 v107, s59, v122
    s_and_b32 s56, s3, 1
    v_lshlrev_b32 v108, 10, v5
    v_and_b32 v8, 2, v1
    v_lshl_add_u32 v108, v8, 8, v108
    v_lshl_add_u32 v108, v7, 6, v108
    v_lshl_add_u32 v108, v2, 4, v108
    s_lshl_b32 s59, s56, 8
    s_add_u32 s59, s59, s63
    s_add_u32 s59, s59, 2048
    v_add_u32 v108, s59, v108
    s_mov_b32 s57, s56
    s_lshl_b32 s58, s57, 15
    s_lshl_b32 s59, s32, 12
    s_add_u32 s58, s58, s59
    s_add_u32 s58, s58, {OP}
    v_lshlrev_b32 v123, 7, v1
    v_lshl_add_u32 v109, v2, 4, v123
    v_add_u32 v109, s58, v109
    s_lshl_b32 s58, s57, 11
    s_add_u32 s59, s58, {FL}
    v_add_u32 v123, s59, v123
    s_lshr_b32 s59, s32, 1
    s_lshl_b32 s59, s59, 2
    s_add_u32 s58, s58, s59
    s_add_u32 s58, s58, {ST}
    v_lshlrev_b32 v110, 9, v2
    v_add_u32 v110, s58, v110
    v_lshl_add_u32 v8, v6, 2, v5
    s_lshl_b32 s58, s3, 1
    s_and_b32 s58, s58, 4
    v_xor_b32 v8, s58, v8
    v_lshlrev_b32 v8, 5, v8
    v_lshl_add_u32 v111, v5, 8, v8
    v_lshl_add_u32 v111, v4, 3, v111
    v_lshl_add_u32 v111, v2, 13, v111
    v_add_u32 v111, {LW}, v111
    v_xor_b32 v112, 32, v111
    v_xor_b32 v113, 64, v111
    v_xor_b32 v114, 0x60, v111
    v_lshrrev_b32 v115, 1, v2
    v_lshl_add_u32 v115, v6, 1, v115
    v_lshlrev_b32 v117, 1, v115
    v_lshl_add_u32 v115, v115, 4, v1
    v_lshlrev_b32 v115, 2, v115
    s_lshl_b32 s58, s56, 20
    s_lshl_b32 s59, s33, 18
    s_add_u32 s58, s58, s59
    s_lshr_b32 s59, s3, 1
    s_lshl_b32 s59, s59, 14
    s_add_u32 s58, s58, s59
    s_lshl_b32 s59, s34, 8
    s_add_u32 s58, s58, s59
    s_add_u32 s58, s58, {FP+EX}
    v_add_u32 v115, s58, v115
    s_lshl_b32 s58, s67, 3
    v_add_u32 v120, s58, v117
    v_lshlrev_b32 v117, 3, v4
    v_lshrrev_b32 v117, v117, s35
    s_lshl_b32 s58, s6, 14
    s_lshl_b32 s59, s7, 4
    s_add_u32 s58, s58, s59
    s_add_u32 s58, s58, {FP}
    v_lshlrev_b32 v116, 8, v0
    v_add_u32 v116, s58, v116
    v_lshlrev_b32 v250, 4, v4
    v_lshl_add_u32 v250, v2, 6, v250
    v_add_u32 v250, {PB}, v250
    v_lshl_add_u32 v248, v2, 2, v5
    v_and_b32 v249, 7, v248
    s_lshl_b32 s58, s3, 1
    v_xor_b32 v249, s58, v249
    v_lshlrev_b32 v249, 5, v249
    v_lshl_add_u32 v248, v248, 8, v249
    v_lshl_add_u32 v248, v4, 3, v248
    v_add_u32 v248, 0x10000, v248
    v_xor_b32 v249, 32, v248
    s_lshl_b32 s58, s6, 15
    s_lshl_b32 s59, s3, 11
    s_add_u32 s58, s58, s59
    s_lshl_b32 s59, s7, 7
    s_add_u32 s58, s58, s59
    s_add_u32 s58, s58, {OP}
    v_lshlrev_b32 v251, 13, v4
    v_lshl_add_u32 v251, v2, 4, v251
    v_add_u32 v251, s58, v251
    s_mov_b32 s58, 0x0c0c0400
    s_mov_b32 s59, 0x04000c0c
    s_mov_b32 s61, 0xf8ffffff
    global_load_ushort v119, v120, s[8:9]
    s_cmp_ge_u32 s3, {0 if opt.get('nogather') else 2}
    s_cbranch_scc1 L_qskip
    {'global_load_dword v144, v144, s[28:29] ' + OTF if OT == 1 else ''}
    {'global_load_dword v145, v145, s[28:29] ' + OTF if OT == 1 else ''}
    {'s_sleep ' + str(opt['qdelay']) if opt.get('qdelay') else ''}
    s_mov_b32 s57, 0
    """)
    for c in range(4):
        a(f"global_load_dwordx4 v[{32+4*c}:{35+4*c}], v99, s[28:29] offset:{c*2048-4096} @L1@")
    a("s_branch L_qchk")
    a("L_qpoll:")
    for c in range(4):
        a(f"global_load_dwordx4 v[{32+4*c}:{35+4*c}], v99, s[28:29] offset:{c*2048-4096} @LF@")
    a("L_qchk:")
    a("s_waitcnt vmcnt(0)")
    for c in range(4):
        a(f"v_perm_b32 v{48+2*c}, v{33+4*c}, v{32+4*c}, s58")
        a(f"v_perm_b32 v{49+2*c}, v{35+4*c}, v{34+4*c}, s59")
        a(f"v_or_b32 v{48+2*c}, v{48+2*c}, v{49+2*c}")
        a(f"v_xor_b32 v{48+2*c}, s39, v{48+2*c}")
    a(f"""
    v_or3_b32 v48, v48, v50, v52
    v_or_b32 v56, v48, v54
    v_and_b32 v48, s61, v56
    v_cmp_ne_u32 vcc, 0, v48
    s_add_u32 s57, s57, 1
    s_mov_b64 exec, vcc
    s_cbranch_execz L_qdone
    s_cmp_lt_u32 s57, {NFAST}
    s_cbranch_scc1 L_qpoll
    buffer_wbl2 sc1
    buffer_inv sc1
    s_waitcnt vmcnt(0)
    s_cmp_lt_u32 s57, {SPIN}
    s_cbranch_scc1 L_qpoll
    L_qdone:
    s_mov_b64 exec, -1
    v_cmp_ne_u32 vcc, 0, v56
    s_movk_i32 s56, 0xff00
    """)
    for i in range(16):
        a(f"v_and_b32 v{32+i}, s56, v{32+i}")
    a(f"""
    s_or_b32 s56, vcc_lo, vcc_hi
    v_pk_add_f32 v[32:33], v[32:33], v[36:37]
    v_pk_add_f32 v[34:35], v[34:35], v[38:39]
    v_pk_add_f32 v[40:41], v[40:41], v[44:45]
    v_pk_add_f32 v[42:43], v[42:43], v[46:47]
    v_pk_add_f32 v[32:33], v[32:33], v[40:41]
    v_pk_add_f32 v[34:35], v[34:35], v[42:43]
    v_cvt_pk_bf16_f32 v32, v32, v33
    v_cvt_pk_bf16_f32 v33, v34, v35
    v_mov_b32 v34, s56
    v_mov_b32 v35, s60
    ds_write_b64 v100, v[32:33]
    ds_write_b32 v35, v34 offset:{MODEB}
    """)
    if stamps: a("s_mov_b32 s69, s57")
    stamp("S gathered")
    a(f"""
    L_qskip:
    v_mov_b32 v10, {R(0)+MODEB}
    s_waitcnt vmcnt(0) lgkmcnt(0)
    s_barrier
    """)
    stamp("B1", 5)
    a("""
    ds_read_b32 v8, v10
    ds_read_b32 v9, v10 offset:8192
    """)
    for j in range(4):
        a(f"ds_read_b128 v[{16+4*j}:{19+4*j}], v105 offset:{64*j}")
    def kread(blk):
        for j in range(4):
            d = 32 + 16 * blk + 4 * j
            a(f"ds_read_b128 v[{d}:{d+3}], v{101+j} offset:{4096*blk}")
    kread(0); kread(1)
    a("global_load_dwordx4 v[124:127], v108, s[28:29] offset:-2048 @L1@")
    a("global_load_dwordx4 v[12:15], v108, s[28:29] offset:2048 @L1@")
    if OT == 2:
        a(f"""
        s_cmp_ge_u32 s3, 2
        s_cbranch_scc1 L_not
        global_load_dword v144, v144, s[28:29] {OTF}
        global_load_dword v145, v145, s[28:29] {OTF}
        L_not:
        """)
    for blk in range(4):
        a(f"s_waitcnt lgkmcnt({4 if blk < 3 else 0})")
        for j in range(4):
            d = 32 + 16 * blk + 4 * j
            ac = 128 + 4 * blk
            a(f"v_mfma_f32_16x16x32_bf16 v[{ac}:{ac+3}], v[{d}:{d+3}], v[{16+4*j}:{19+4*j}], {'0' if j==0 else f'v[{ac}:{ac+3}]'}")
        if blk + 2 < 4: kread(blk + 2)
        if blk == 0:
            a("v_or_b32 v8, v8, v9")
            a("v_cmp_eq_u32 s[44:45], 1, v5")
            a("v_cmp_eq_u32 s[46:47], 2, v5")
            a("v_cmp_eq_u32 s[48:49], 3, v5")
            a("v_readfirstlane_b32 s60, v8")
            if opt.get('nogather'): a("s_mov_b32 s60, 0")
    a(f"s_mov_b32 s56, {SCALE}")
    a(f"s_mov_b32 s57, {LOG2E}")
    for blk in range(1, 4):
        for i in range(4):
            a(f"v_cndmask_b32 v{128+i}, v{128+i}, v{128+4*blk+i}, s[{42+2*blk}:{43+2*blk}]")
    a("""
    v_cvt_pk_bf16_f32 v40, v128, v129
    v_cvt_pk_bf16_f32 v41, v130, v131
    v_lshlrev_b32 v32, 16, v40
    v_and_b32 v33, s62, v40
    v_lshlrev_b32 v34, 16, v41
    v_and_b32 v35, s62, v41
    """)
    for i in range(4): a(f"v_mul_f32 v{32+i}, s56, v{32+i}")
    a("""
    v_cvt_pk_bf16_f32 v40, v32, v33
    v_cvt_pk_bf16_f32 v41, v34, v35
    v_lshlrev_b32 v32, 16, v40
    v_and_b32 v33, s62, v40
    v_lshlrev_b32 v34, 16, v41
    v_and_b32 v35, s62, v41
    v_max3_f32 v40, v32, v33, v34
    v_max_f32 v40, v40, v35
    """)
    reduce4(40, 41, "v_max_f32")
    for i in range(4): a(f"v_sub_f32 v{32+i}, v{32+i}, v40")
    for i in range(4): a(f"v_mul_f32 v{32+i}, s57, v{32+i}")
    for i in range(4): a(f"v_exp_f32 v{32+i}, v{32+i}")
    a("""
    v_mul_f32 v40, s57, v40
    v_cvt_pk_bf16_f32 v44, v32, v33
    v_cvt_pk_bf16_f32 v45, v34, v35
    ds_write_b64 v106, v[44:45]
    ds_write_b32 v107, v40
    v_add_f32 v32, v32, v33
    v_add_f32 v34, v34, v35
    v_add_f32 v32, v32, v34
    """)
    reduce4(32, 33)
    a("""
    ds_write_b32 v107, v32 offset:16
    s_cmp_eq_u32 s60, 0
    s_cbranch_scc1 L_nowb
    buffer_wbl2 sc1
    L_nowb:
    """)
    stamp("S softmax done", 6)
    a("""
    s_waitcnt lgkmcnt(0)
    s_barrier
    """)
    stamp("Bp", 7)
    PF = 148; VF = 180; AC = 212; AL = 244
    def rd(u):
        for q in range(2):
            for e in range(2):
                d = VF + 8 * (u % 4) + 4 * q + 2 * e
                a(f"ds_read_b64_tr_b16 v[{d}:{d+1}], v{248+q} offset:{8192*u+4096*e}")
    def pvm(u):
        for q in range(2):
            d = VF + 8 * (u % 4) + 4 * q
            ac = AC + 8 * (u >> 1) + 4 * q
            a(f"v_mfma_f32_16x16x32_bf16 v[{ac}:{ac+3}], v[{d}:{d+3}], v[{PF+4*u}:{PF+3+4*u}], {'0' if u % 2 == 0 else f'v[{ac}:{ac+3}]'}")
    a("""
    ds_read_b128 v[40:43], v122
    ds_read_b128 v[44:47], v122 offset:16
    """)
    for u in range(8):
        a(f"ds_read_b128 v[{PF+4*u}:{PF+3+4*u}], v250 offset:{256*u}")
    a("""
    s_waitcnt lgkmcnt(8)
    v_max3_f32 v48, v40, v41, v42
    v_max_f32 v48, v48, v43
    """)
    for i in range(4): a(f"v_sub_f32 v{40+i}, v{40+i}, v48")
    for i in range(4): a(f"v_exp_f32 v{40+i}, v{40+i}")
    a("""
    v_mul_f32 v49, v40, v44
    v_fmac_f32 v49, v41, v45
    v_fmac_f32 v49, v42, v46
    v_fmac_f32 v49, v43, v47
    v_log_f32 v50, v49
    v_rcp_f32 v49, v49
    s_cmp_lg_u32 s3, 3
    s_cbranch_scc1 L_nostat
    v_add_f32 v52, v50, v48
    s_mov_b32 exec_hi, 0
    global_store_dword v118, v52, s[28:29]
    s_mov_b64 exec, -1
    L_nostat:
    s_waitcnt lgkmcnt(0)
    """)
    assert nA <= 4 and nB - nA <= 4
    for u in range(nA): rd(u)
    for i in range(4): a(f"v_mul_f32 v{AL+i}, v{40+i}, v49")
    for u in range(nA):
        a(f"s_waitcnt lgkmcnt({min(15, 4*(nA-1-u))})")
        pvm(u)
    for q in range(4):
        for e in range(2):
            d = 80 + 4 * q + 2 * e
            a(f"ds_read_b64_tr_b16 v[{d}:{d+1}], v{111+q} offset:{(4+e)*1024}")
    a("""
    s_cbranch_scc1 L_nostat1
    s_waitcnt vmcnt(1)
    s_branch L_nostat2
    L_nostat1:
    s_waitcnt vmcnt(0)
    L_nostat2:
    """)
    a(f"""
    s_mov_b32 s57, 0
    s_branch L_gcheck
    L_gpoll:
    s_cmp_eq_u32 s60, 0
    s_cbranch_scc1 L_gload
    buffer_inv sc1
    s_waitcnt vmcnt(0)
    L_gload:
    global_load_dwordx4 v[124:127], v108, s[28:29] offset:-2048 @LF@
    global_load_dwordx4 v[12:15], v108, s[28:29] offset:2048 @LF@
    s_waitcnt vmcnt(0)
    L_gcheck:
    v_perm_b32 v48, v125, v124, s58
    v_perm_b32 v49, v127, v126, s59
    v_perm_b32 v50, v13, v12, s58
    v_perm_b32 v51, v15, v14, s59
    v_or_b32 v48, v48, v49
    v_or_b32 v50, v50, v51
    v_xor_b32 v48, s39, v48
    v_xor_b32 v50, s39, v50
    v_or_b32 v48, v48, v50
    v_and_b32 v48, s61, v48
    v_cmp_ne_u32 vcc, 0, v48
    s_add_u32 s57, s57, 1
    s_mov_b64 exec, vcc
    s_cbranch_execz L_gdone
    s_cmp_lt_u32 s57, {SPIN}
    s_cbranch_scc1 L_gpoll
    L_gdone:
    s_mov_b64 exec, -1
    s_movk_i32 s56, 0xff00
    """)
    for i in range(4): a(f"v_and_b32 v{124+i}, s56, v{124+i}")
    for i in range(4): a(f"v_and_b32 v{12+i}, s56, v{12+i}")
    a("v_pk_add_f32 v[124:125], v[124:125], v[12:13]")
    a("v_pk_add_f32 v[126:127], v[126:127], v[14:15]")
    for m in ("row_ror:4", "row_ror:8"):
        for i in range(4): dpp("v_add_f32", 124 + i, m)
    a("""
    v_cvt_pk_bf16_f32 v48, v124, v125
    v_cvt_pk_bf16_f32 v49, v126, v127
    v_lshlrev_b32 v124, 16, v48
    v_and_b32 v125, s62, v48
    v_lshlrev_b32 v126, 16, v49
    v_and_b32 v127, s62, v49
    """)
    for i in range(4): a(f"v_max_f32 v{48+i}, 0, v{124+i}")
    for i in range(4): a(f"v_mul_f32_dpp v{48+i}, v{124+i}, v{48+i} quad_perm:[2,3,0,1] {DPPM}")
    a("""
    v_cmp_eq_u32 s[44:45], 0, v1
    v_cmp_eq_u32 s[46:47], 1, v1
    v_cvt_pk_bf16_f32 v48, v48, v49
    v_cvt_pk_bf16_f32 v49, v50, v51
    v_cndmask_b32 v28, 0, v48, s[44:45]
    v_cndmask_b32 v29, 0, v49, s[44:45]
    v_cndmask_b32 v30, 0, v48, s[46:47]
    v_cndmask_b32 v31, 0, v49, s[46:47]
    s_waitcnt lgkmcnt(0)
    """)
    for q in range(4):
        a(f"v_mfma_f32_16x16x32_bf16 v[{32+4*q}:{35+4*q}], v[28:31], v[{80+4*q}:{83+4*q}], 0")
    SG = """
    global_load_dword v24, v110, s[28:29] @TF@
    global_load_dword v25, v110, s[28:29] offset:128 @TF@
    global_load_dword v26, v110, s[28:29] offset:256 @TF@
    global_load_dword v27, v110, s[28:29] offset:384 @TF@
    """
    OG = """
    global_load_dwordx4 v[16:19], v109, s[28:29] @TF@
    global_load_dwordx4 v[20:23], v109, s[28:29] offset:2048 @TF@
    """
    def weights():
        a("""
        v_max3_f32 v124, v24, v25, v26
        v_max_f32 v124, v124, v27
        """)
        reduce_g(124, 125, "v_max_f32")
        for i in range(4): a(f"v_sub_f32 v{8+i}, v{24+i}, v124")
        for i in range(4): a(f"v_exp_f32 v{8+i}, v{8+i}")
        a("""
        v_add_f32 v124, v8, v9
        v_add_f32 v125, v10, v11
        v_add_f32 v124, v124, v125
        """)
        reduce_g(124, 125)
        a("v_rcp_f32 v124, v124")
        for i in range(4): a(f"v_mul_f32 v{8+i}, v{8+i}, v124")
    for q in range(4):
        a(f"v_add_f32 v{32+4*q}, v{32+4*q}, v{33+4*q}")
    a("v_mov_b32 v33, s35")
    a("s_barrier")
    for u in range(nA, nB): rd(u)
    for u in range(nA, nB):
        a(f"s_waitcnt lgkmcnt({4*(nB-1-u)})")
        pvm(u)
    nW = nB // 2
    for i in range(8): a(f"v_mul_f32 v{AC+i}, v{AC+i}, v{AL}")
    for w_ in range(1, nW):
        for i in range(8): a(f"v_fmac_f32 v{AC+i}, v{AC+8*w_+i}, v{AL+w_}")
    a("s_barrier")
    stamp("BB", 8)
    for u in range(nB, 8): rd(u)
    a(SG)
    for u in range(nB, 8):
        a(f"s_waitcnt lgkmcnt({4*(7-u)})")
        pvm(u)
    for w_ in range(nW, 4):
        for i in range(8): a(f"v_fmac_f32 v{AC+i}, v{AC+8*w_+i}, v{AL+w_}")
    for i in range(4):
        a(f"v_cvt_pk_bf16_f32 v{AC+i}, v{AC+2*i}, v{AC+1+2*i}")
    a(f"""
    s_mov_b64 exec, s[64:65]
    global_store_dwordx4 v251, v[{AC}:{AC+3}], s[28:29]
    s_mov_b64 exec, -1
    s_cmp_eq_u32 s60, 0
    s_cbranch_scc1 L_sbc
    s_waitcnt vmcnt(0)
    L_sbc:
    s_barrier
    """)
    stamp("BC", 10)
    for ks in range(2):
        for q in range(4):
            for e in range(2):
                d = 48 + 16 * ks + 4 * q + 2 * e
                a(f"ds_read_b64_tr_b16 v[{d}:{d+1}], v{111+q} offset:{(2*ks+e)*1024}")
    a(f"""
    s_mov_b32 s57, 0
    s_cbranch_scc1 L_fast2
    s_cmp_lg_u32 s3, 0
    s_cbranch_scc1 L_slow2
    buffer_wbl2 sc1
    s_waitcnt vmcnt(0)
    v_add_u32 v34, {FL-ST}, v118
    s_mov_b64 exec, 1
    global_store_dword v34, v33, s[28:29] sc1
    s_mov_b64 exec, -1
    L_slow2:
    global_load_dword v34, v123, s[28:29] sc1
    s_waitcnt vmcnt(0)
    v_cmp_ne_u32 vcc, s35, v34
    s_add_u32 s57, s57, 1
    s_cbranch_vccz L_slow3
    s_cmp_lt_u32 s57, {SPIN}
    s_cbranch_scc1 L_slow2
    L_slow3:
    buffer_inv sc1
    s_waitcnt vmcnt(0)
    {SG}
    s_waitcnt vmcnt(0)
    L_fast2:
    """)
    stamp("og issue", 9); nst[0] = 11
    a(f"""
    {OG}
    s_waitcnt vmcnt(3)
    s_branch L_schk
    L_spoll:
    {SG}
    s_waitcnt vmcnt(0)
    L_schk:
    v_max3_u32 v124, v24, v25, v26
    v_max_u32 v124, v124, v27
    v_cmp_eq_u32 vcc, -1, v124
    s_add_u32 s57, s57, 1
    s_mov_b64 exec, vcc
    s_cbranch_execz L_sdone
    s_cmp_lt_u32 s57, {SPIN}
    s_cbranch_scc1 L_spoll
    L_sdone:
    s_mov_b64 exec, -1
    """)
    weights()
    if stamps: a("s_mov_b32 s69, s57")
    a(f"""
    s_mov_b32 s57, 0
    s_branch L_ochk
    L_opoll:
    {OG}
    L_ochk:
    s_waitcnt vmcnt(0)
    v_max3_u32 v124, v16, v17, v18
    v_max3_u32 v125, v19, v20, v21
    v_max3_u32 v124, v124, v22, v23
    v_max_u32 v124, v124, v125
    v_cmp_eq_u32 vcc, -1, v124
    s_add_u32 s57, s57, 1
    s_mov_b64 exec, vcc
    s_cbranch_execz L_odone
    s_cmp_lt_u32 s57, {SPIN}
    s_cbranch_scc1 L_opoll
    L_odone:
    s_mov_b64 exec, -1
    s_waitcnt lgkmcnt(0)
    """)
    if stamps: a("s_mov_b32 s68, s57")
    stamp("o gathered")
    for q in range(4):
        for ks in range(2):
            a(f"v_mfma_f32_16x16x32_bf16 v[{128+4*q}:{131+4*q}], v[{16+4*ks}:{19+4*ks}], v[{48+16*ks+4*q}:{51+16*ks+4*q}], {'0' if ks==0 else f'v[{128+4*q}:{131+4*q}]'}")
    for q in range(4):
        for i in range(4):
            a(f"v_fmac_f32 v{32+4*q}, v{8+i}, v{128+4*q+i}")
        if q == 2:
            a("v_permlane32_swap_b32 v32, v36")
            a("v_add_f32 v32, v32, v36")
    a("""
    v_permlane32_swap_b32 v40, v44
    v_add_f32 v40, v40, v44
    v_permlane16_swap_b32 v32, v40
    v_add_f32 v36, v32, v40
    v_bfi_b32 v36, v121, v117, v36
    s_mov_b32 s44, 0x11111111
    s_mov_b32 s45, 0x11111111
    """)
    for i in range(1, 4):
        a(f"v_mov_b32_dpp v{36+i}, v36 quad_perm:[{i},{i},{i},{i}] {DPPM}")
    a(f"""
    s_mov_b64 exec, s[44:45]
    global_store_dwordx4 v115, v[36:39], s[30:31] {opt.get('ffs', 'sc1')}
    s_mov_b64 exec, -1
    """)
    stamp("final published")
    if not opt.get('nofb'): a("s_barrier")
    a(f"""
    s_cmp_lg_u32 s3, 0
    s_cbranch_scc1 {'L_fin1' if stamps else 'L_end'}
    s_mov_b32 s57, 0
    v_lshlrev_b32 v28, 16, v119
    s_movk_i32 s56, 0xff00
    {'s_memrealtime s[74:75]' if stamps else ''}
    L_fpoll:
    global_load_dwordx4 v[16:19], v116, s[28:29] {opt.get('ffl', 'sc1')}
    s_waitcnt vmcnt(0)
    {'s_cmp_lg_u32 s57, 0' if stamps else ''}
    {'s_cbranch_scc1 L_fp1' if stamps else ''}
    {'s_memrealtime s[76:77]' if stamps else ''}
    {'L_fp1:' if stamps else ''}
    v_perm_b32 v24, v17, v16, s58
    v_perm_b32 v25, v19, v18, s59
    v_or_b32 v24, v24, v25
    v_cmp_ne_u32 vcc, s35, v24
    s_add_u32 s57, s57, 1
    s_mov_b64 exec, vcc
    s_cbranch_execz L_fdone
    s_cmp_lt_u32 s57, {SPIN}
    s_cbranch_scc1 L_fpoll
    L_fdone:
    s_mov_b64 exec, -1
    """)
    if stamps: a("s_mov_b32 s67, s57")
    for i in range(4): a(f"v_and_b32 v{16+i}, s56, v{16+i}")
    a("""
    v_permlane32_swap_b32 v16, v17
    v_permlane32_swap_b32 v18, v19
    v_add_f32 v16, v16, v17
    v_add_f32 v18, v18, v19
    s_mov_b32 s44, 0x00010001
    s_mov_b32 s45, 0x00010001
    v_permlane16_swap_b32 v16, v18
    v_add_f32 v16, v16, v18
    """)
    for m in ("quad_perm:[1,0,3,2]", "quad_perm:[2,3,0,1]", "row_ror:4", "row_ror:8"):
        dpp("v_add_f32", 16, m)
    a("""
    v_add_f32 v16, v16, v28
    v_cvt_pk_bf16_f32 v16, v16, v16
    s_mov_b64 exec, s[44:45]
    global_store_short v120, v16, s[26:27]
    s_cmp_lg_u32 s2, 0
    """)
    a(f"s_cbranch_scc1 {'L_fin0' if stamps else 'L_end'}")
    a("""
    s_mov_b64 exec, 1
    v_mov_b32 v19, 0
    global_store_dword v19, v33, s[30:31]
    """)
    if stamps:
        a("s_branch L_fin0")
        a("L_fin1:")
        a("s_waitcnt vmcnt(0)")
        a("L_fin0:")
        a("s_mov_b64 exec, -1")
        stamp("out stored")
        a("L_fin:")
        a("s_getreg_b32 s66, hwreg(HW_REG_XCC_ID)")
        a("v_mov_b32 v32, s70")
        for i in range(14):
            a(f"v_mov_b32 v{33+i}, s{72+2*i}")
        a("v_mov_b32 v47, s66")
        a("v_mov_b32 v48, s69")
        a("v_mov_b32 v49, s68")
        a("v_mov_b32 v50, s67")
        a("v_mov_b32 v51, 0")
        a(f"""
        s_lshl_b32 s58, s2, 10
        s_lshl_b32 s59, s3, 7
        s_add_u32 s58, s58, s59
        s_add_u32 s58, s58, {STAMP}
        v_mov_b32 v3, s58
        s_mov_b64 exec, 1
        """)
        for j in range(5):
            a(f"global_store_dwordx4 v3, v[{32+4*j}:{35+4*j}], s[30:31] offset:{16*j}")
    a("L_end:")
    a("s_endpgm")
    a.raw('.section .rodata,"a"')
    a.raw(".p2align 6")
    a.raw(f".amdhsa_kernel {NAME}_kernel")
    a.raw("  .amdhsa_next_free_vgpr 256")
    a.raw("  .amdhsa_next_free_sgpr 102")
    a.raw("  .amdhsa_accum_offset 256")
    a.raw("  .amdhsa_group_segment_fixed_size 0")
    a.raw("  .amdhsa_kernarg_size 96")
    a.raw("  .amdhsa_user_sgpr_count 2")
    a.raw("  .amdhsa_user_sgpr_kernarg_segment_ptr 1")
    a.raw("  .amdhsa_system_sgpr_workgroup_id_x 1")
    a.raw("  .amdhsa_float_denorm_mode_32 3")
    a.raw(".end_amdhsa_kernel")
    return a.text().replace('@LF@', LF).replace('@L1@', L1F).replace('@TF@', opt.get('tf', 'sc1 nt'))

def parse_opt(s):
    opt = {}
    for kv in s.split(","):
        if kv:
            k, _, v = kv.partition("=")
            opt[k] = (int(v) if v.lstrip('-').isdigit() else v.replace('+', ' ')) if v else 1
    return opt

if __name__ == "__main__":
    ap = argparse.ArgumentParser()
    ap.add_argument("-o", default="k.s")
    ap.add_argument("--stamps", action="store_true")
    ap.add_argument("--opt", default="")
    args = ap.parse_args()
    open(args.o, "w").write(gen(args.stamps, parse_opt(args.opt)))
```

```python
import sys, argparse
from asmgen import Asm
NAME = "parallel_sum__sliding_block_cached__glu_gated_reglu__decode"

EX = 0x40000
QP = 0x0; ST = 0x4000; FL = 0x5000; GP = 0x8000; OP = 0x10000; FP = 0x20000
STAMP = 0x1000000
LW = 131072
def R(j): return LW + 8192 * j + 6144
MLB = R(2); PB = R(3); MODEB = 512
SPIN0 = 40000
LOG2E = 0x3fb8aa3b
SCALE = 0x3db504f3
DPPM = "row_mask:0xf bank_mask:0xf"
EINC = 0x08010101

HEADER = open("cdna_kernels/%s.s.ref" % NAME).read().split("; Override launch")[0]

def gen(stamps=False, opt=None):
    opt = opt or {}
    a0 = Asm()
    class W:
        raw = a0.raw; comment = a0.comment; text = a0.text
        def __call__(self, t): a0(t.replace('@PUB@', '; ' if opt.get('nopub') else ''))
    a = W()
    SPIN = opt.get('spin', SPIN0)
    rotmul = opt.get('rotmul', 37)
    kpre = opt.get('kpre', 4)
    vpre = opt.get('vpre', 8)
    NFAST = opt.get('nfast', 12)
    thr = opt.get('thr', 6)
    LF = opt.get('lf', 'sc1 nt')
    L1F = opt.get('l1f', 'sc1 nt').replace('none', '')
    thr2 = opt.get('thr2', 8); OT = opt.get('otouch', 1); OTF = opt.get('otf', 'sc1 nt'); vthr = opt.get('vthr', 4)
    TOUCH = opt.get('touch', 0)
    nst = [0]
    def stamp(name, i=None):
        if not stamps: return
        if i is not None: nst[0] = i
        i = nst[0]; nst[0] += 1
        assert i < 14
        a(f"s_memrealtime s[{72+2*i}:{73+2*i}]")
        a("s_waitcnt lgkmcnt(0)")
    def dpp(op, v, m): a(f"{op}_dpp v{v}, v{v}, v{v} {m} {DPPM}")
    def reduce_g(v, t, op="v_add_f32"):
        a(f"v_mov_b32 v{t}, v{v}")
        a(f"v_permlane16_swap_b32 v{v}, v{t}")
        a(f"{op} v{v}, v{v}, v{t}")
        a(f"v_mov_b32 v{t}, v{v}")
        a(f"v_permlane32_swap_b32 v{v}, v{t}")
        a(f"{op} v{v}, v{v}, v{t}")
    def reduce5(v, t, op="v_add_f32"):
        dpp(op, v, "quad_perm:[2,3,0,1]"); dpp(op, v, "row_ror:4"); dpp(op, v, "row_ror:8")
        reduce_g(v, t, op)
    def reduce4(v, t, op="v_add_f32"):
        dpp(op, v, "row_ror:4"); dpp(op, v, "row_ror:8")
        reduce_g(v, t, op)

    a.raw(HEADER.rstrip())
    a.raw("; @launch grid=(256,1,1) block=(512,1,1) lds=163840")
    a.raw('.amdgcn_target "amdgcn-amd-amdhsa--gfx950"')
    a.raw(".text")
    a.raw(f".globl {NAME}_kernel")
    a.raw(".p2align 12")
    a.raw(".p2align 8")
    a.raw(f".type {NAME}_kernel,@function")
    a.raw(f"{NAME}_kernel:")
    if stamps: a("s_memrealtime s[70:71]")
    a(f"""
    s_cmp_ge_u32 s2, 256
    s_cbranch_scc1 L_end
    s_load_dwordx16 s[8:23], s[0:1], 0
    s_load_dwordx8 s[24:31], s[0:1], 64
    v_lshrrev_b32 v3, 6, v0
    v_and_b32 v0, 63, v0
    v_readfirstlane_b32 s3, v3
    s_getpc_b64 s[56:57]
    s_lshr_b32 s5, s2, 3
    """)
    if not opt.get('nopf'):
        a(f"""
        s_and_b32 s58, s5, 15
        s_lshl_b32 s58, s58, 3
        s_add_u32 s58, s58, s3
        s_lshl_b32 s58, s58, 6
        s_min_u32 s58, s58, L_end-{NAME}_kernel-64
        s_load_dword s39, s[56:57], s58
        """)
    a(f"""
    v_and_b32 v1, 15, v0
    v_lshrrev_b32 v2, 4, v0
    s_and_b32 s4, s2, 7
    s_lshr_b32 s6, s5, 4
    s_and_b32 s7, s5, 15
    s_lshr_b32 s32, s5, 2
    s_and_b32 s33, s5, 3
    s_lshl_b32 s34, s4, 3
    s_add_u32 s34, s34, s32
    s_mov_b32 s43, 0x20000
    s_mul_i32 s63, s4, 7
    s_add_u32 s63, s63, 1
    s_and_b32 s63, s63, 0xfe
    s_add_u32 s63, s63, s32
    s_lshr_b32 s59, s32, 1
    s_and_b32 s60, s4, 1
    s_add_u32 s59, s59, s60
    s_cmp_lt_u32 s59, 4
    s_cselect_b32 s54, 0x1c0000, 0
    s_lshl_b32 s66, s4, 18
    s_add_u32 s66, s66, {EX}
    v_lshrrev_b32 v6, 3, v0
    v_and_b32 v7, 1, v2
    v_lshlrev_b32 v7, 1, v7
    v_and_b32 v8, 7, v0
    v_xor_b32 v7, v7, v8
    v_lshlrev_b32 v7, 4, v7
    v_lshl_add_u32 v28, v6, 13, v7
    v_xor_b32 v29, 64, v28
    s_lshl_b32 s57, s33, 20
    s_lshl_b32 s58, s3, 17
    s_add_u32 s57, s57, s58
    s_lshl_b32 s58, s34, 7
    s_add_u32 s57, s57, s58
    s_add_u32 s58, s57, 0x10000
    s_lshl_b32 s60, s3, 11
    s_add_u32 s60, s60, {LW}
    s_mov_b32 s50, 0x400000
    s_mov_b32 s51, 0x20000
    s_cmp_ge_u32 s3, 4
    s_cbranch_scc1 L_loader
    """)
    WQ = """
    s_add_u32 s28, s30, s66
    s_addc_u32 s29, s31, 0
    s_mov_b32 s48, s14
    s_mov_b32 s49, s15
    s_mov_b32 m0, s60
    s_add_u32 s60, s60, 1024
    buffer_load_dwordx4 v28, s[48:51], s57 offen nt lds
    s_mov_b32 m0, s60
    s_nop 0
    buffer_load_dwordx4 v29, s[48:51], s58 offen nt lds
    """
    a(f"""
    v_and_b32 v3, 1, v0
    v_lshlrev_b32 v3, 10, v3
    v_lshrrev_b32 v4, 1, v0
    v_lshl_add_u32 v4, v4, 5, v3
    s_and_b32 s59, s32, 1
    s_lshl_b32 s62, s59, 7
    s_cmp_lt_u32 s3, 2
    s_cselect_b32 s61, 3, 1
    s_cselect_b32 s62, 0, s62
    v_lshrrev_b32 v5, 2, v1
    v_and_b32 v5, s61, v5
    v_lshl_add_u32 v5, v5, 6, v3
    v_lshl_add_u32 v5, v2, 4, v5
    s_lshl_b32 s61, s33, 8
    s_add_u32 s61, s61, s62
    v_add_u32 v5, s61, v5
    v_mul_u32_u24 v30, 3584, v6
    v_add_u32 v31, v30, v7
    v_xor_b32 v7, 64, v7
    v_add_u32 v30, v30, v7
    s_lshl_b32 s56, s33, 1
    s_add_u32 s56, s56, s59
    s_mul_i32 s56, s56, {64*3584}
    s_lshr_b32 s59, s63, 1
    s_lshl_b32 s59, s59, 7
    s_add_u32 s56, s56, s59
    s_mov_b32 s42, s54
    s_lshl_b32 s59, s7, 7
    s_lshl_b32 s62, s6, 15
    s_add_u32 s62, s62, s59
    s_lshl_b32 s64, s3, 14
    s_add_u32 s62, s62, s64
    s_add_u32 s62, s62, {OP}
    v_lshlrev_b32 v20, 11, v6
    v_lshlrev_b32 v21, 4, v8
    v_add3_u32 v144, s62, v20, v21
    s_lshl_b32 s62, s6, 11
    s_add_u32 s62, s62, s59
    s_add_u32 s62, s62, {ST}
    v_add_u32 v145, s62, v21
    v_mov_b32 v24, -1
    v_mov_b32 v25, -1
    v_mov_b32 v26, -1
    v_mov_b32 v27, -1
    s_lshl_b32 s61, s3, 13
    s_add_u32 s61, s61, {LW+8192}
    s_waitcnt lgkmcnt(0)
    global_load_dwordx4 v[8:11], v4, s[8:9]
    global_load_dwordx4 v[12:15], v4, s[8:9] offset:16
    global_load_dwordx4 v[16:19], v5, s[8:9]
    {WQ}
    s_load_dword s35, s[30:31], 0
    s_cmp_lt_u32 s3, 2
    s_cbranch_scc1 L_sx0
    s_cmp_eq_u32 s3, 2
    s_cselect_b32 s40, s20, s22
    s_cselect_b32 s41, s21, s23
    s_cselect_b32 s64, 0, {24*128}
    s_sub_u32 s60, s61, 8192
    s_mul_i32 s62, s5, {48*128}
    s_add_u32 s62, s62, s64
    v_min_u32 v20, 23, v0
    v_lshlrev_b32 v20, 7, v20
    v_add_u32 v20, s62, v20
    s_barrier
    {'global_load_dword v94, v20, s[28:29] sc1' if TOUCH == 1 else ''}
    L_tloop:
    s_mov_b32 m0, s60
    s_add_u32 s60, s60, 1024
    buffer_load_dwordx4 v31, s[40:43], s56 offen nt lds
    s_add_u32 s56, s56, {8*3584}
    s_mov_b32 m0, s60
    s_add_u32 s60, s60, 1024
    buffer_load_dwordx4 v30, s[40:43], s56 offen nt lds
    s_add_u32 s56, s56, {8*3584}
    s_cmp_lt_u32 s60, s61
    s_cbranch_scc1 L_tloop
    s_waitcnt vmcnt({9 if TOUCH == 1 else 8})
    s_barrier
    s_barrier
    s_branch L_service
    L_sx0:
    {'' if opt.get('noclear') else 'global_store_dwordx4 v144, v[24:27], s[28:29]'}
    s_mov_b64 exec, 0xff
    {'' if opt.get('noclear') else 'global_store_dwordx4 v145, v[24:27], s[28:29]'}
    s_mov_b64 exec, -1
    s_barrier
    s_branch L_service
    """)
    a("L_loader:")
    TLB = """
    s_lshl_b32 s37, s34, 16
    s_load_dword s38, s[12:13], s36
    s_load_dword s38, s[16:17], s37
    s_load_dword s38, s[24:25], 0
    s_load_dword s38, s[26:27], 0
    s_load_dword s38, s[10:11], s36
    s_load_dword s38, s[20:21], 0
    s_load_dword s38, s[22:23], 0
    """ if opt.get('tlb') else ""
    a(f"""
    s_sub_u32 s56, s3, 4
    s_lshl_b32 s36, s56, 2
    v_add_u32 v3, s36, v2
    v_xor_b32 v4, v3, v1
    v_lshlrev_b32 v4, 4, v4
    v_lshl_add_u32 v4, v2, 8, v4
    v_and_b32 v5, 7, v3
    v_lshlrev_b32 v5, 1, v5
    v_xor_b32 v5, v5, v1
    v_lshlrev_b32 v5, 4, v5
    v_lshl_add_u32 v3, v3, 10, v5
    v_lshl_add_u32 v5, v2, 8, v5
    s_lshl_b32 s36, s6, 3
    s_add_u32 s36, s36, s4
    s_lshl_b32 s36, s36, 23
    s_lshl_b32 s59, s7, 16
    s_add_u32 s36, s36, s59
    s_add_u32 s36, s36, 0x700000
    s_mul_i32 s59, s2, {rotmul}
    s_add_u32 s59, s59, s56
    s_and_b32 s59, s59, 63
    s_lshl_b32 s59, s59, 10
    s_mov_b32 s42, 0x10000
    s_mov_b32 s46, 0x10000
    s_mov_b32 s47, 0x20000
    s_waitcnt lgkmcnt(0)
    {WQ}
    s_add_u32 s40, s10, s36
    s_addc_u32 s41, s11, 0
    s_lshl_b32 s60, s56, 10
    {TLB}
    s_barrier
    L_kloop0:
    s_mov_b32 m0, s60
    s_add_u32 s60, s60, 4096
    buffer_load_dwordx4 v4, s[40:43], s59 offen nt lds
    s_add_u32 s59, s59, 4096
    s_and_b32 s59, s59, 0xffff
    s_cmp_lt_u32 s60, {4096*kpre}
    s_cbranch_scc1 L_kloop0
    s_add_u32 s44, s12, s36
    s_addc_u32 s45, s13, 0
    s_mov_b32 s48, s16
    s_mov_b32 s49, s17
    s_lshl_b32 s57, s33, 8
    s_lshl_b32 s61, s34, 16
    s_add_u32 s61, s61, s57
    s_waitcnt vmcnt({kpre})
    s_barrier
    s_barrier
    L_kloop:
    s_waitcnt vmcnt({thr-1})
    s_mov_b32 m0, s60
    s_add_u32 s60, s60, 4096
    buffer_load_dwordx4 v4, s[40:43], s59 offen nt lds
    s_add_u32 s59, s59, 4096
    s_and_b32 s59, s59, 0xffff
    s_cmp_lt_u32 s60, 65536
    s_cbranch_scc1 L_kloop
    L_vloop:
    s_waitcnt vmcnt({thr-1})
    s_mov_b32 m0, s60
    s_add_u32 s60, s60, 4096
    buffer_load_dwordx4 v5, s[44:47], s59 offen nt lds
    s_add_u32 s59, s59, 4096
    s_and_b32 s59, s59, 0xffff
    s_cmp_lt_u32 s60, {65536 + 4096*min(vthr, vpre)}
    s_cbranch_scc1 L_vloop
    """)
    if vthr < vpre:
        a(f"""
    L_vloop1:
    s_waitcnt vmcnt({thr2-1})
    s_mov_b32 m0, s60
    s_add_u32 s60, s60, 4096
    buffer_load_dwordx4 v5, s[44:47], s59 offen nt lds
    s_add_u32 s59, s59, 4096
    s_and_b32 s59, s59, 0xffff
    s_cmp_lt_u32 s60, {65536 + 4096*vpre}
    s_cbranch_scc1 L_vloop1
    """)
    stamp("L pre issue", 0)
    a(f"s_waitcnt vmcnt({vpre}) lgkmcnt(0)")
    stamp("L K landed")
    a("s_barrier")
    stamp("B1", 5)
    tp = opt.get('tp', 14)
    nA = (tp - thr2) // 2
    nB = (20 - thr2) // 2
    def vloop(lbl, end):
        a(f"""
        {lbl}:
        s_waitcnt vmcnt({thr2-1})
        s_mov_b32 m0, s60
        s_add_u32 s60, s60, 4096
        buffer_load_dwordx4 v5, s[44:47], s59 offen nt lds
        s_add_u32 s59, s59, 4096
        s_and_b32 s59, s59, 0xffff
        s_cmp_lt_u32 s60, {65536 + 4096*end}
        s_cbranch_scc1 {lbl}
        """)
    vloop("L_vloop2", tp)
    a(f"s_waitcnt vmcnt({tp - 2*nA})")
    stamp("L at Bp", 2)
    a("s_barrier")
    stamp("Bp", 7)
    if tp < 16: vloop("L_vloop3", 16)
    a(f"""
    s_lshl_b32 s60, s56, 13
    s_add_u32 s60, s60, {LW}
    """)
    for t in range(4):
        a(f"""
        s_add_u32 m0, s60, {t*1024}
        s_waitcnt vmcnt({thr2-1})
        buffer_load_dwordx4 v3, s[48:51], s61 offen nt lds
        s_add_u32 s61, s61, 16384
        """)
    a(f"s_waitcnt vmcnt({20 - 2*nB})")
    stamp("L at Bq", 3)
    a("s_barrier")
    a("s_waitcnt vmcnt(4)")
    stamp("L V landed", 4)
    a("s_barrier")
    stamp("BB", 8)
    a("s_waitcnt vmcnt(0)")
    stamp("L wo landed", 9)
    a("s_barrier")
    a("s_branch L_fin" if stamps else "s_endpgm")

    a("L_service:")
    a(f"""
    s_lshl_b32 s67, s4, 5
    s_add_u32 s67, s67, s5
    s_lshl_b32 s59, s7, 7
    s_mov_b32 s62, 0xffff0000
    s_mov_b32 s64, 0x000f000f
    s_mov_b32 s65, 0x000f000f
    v_and_b32 v4, 3, v1
    v_lshrrev_b32 v5, 2, v1
    v_and_b32 v6, 1, v2
    s_lshl_b32 s57, s3, 2
    v_add_u32 v95, s57, v2
    v_and_b32 v7, 7, v95
    v_lshlrev_b32 v7, 1, v7
    v_xor_b32 v7, v7, v1
    v_lshlrev_b32 v7, 4, v7
    v_lshl_add_u32 v95, v95, 10, v7
    s_lshl_b32 s50, s63, 15
    s_lshl_b32 s57, s33, 8
    s_add_u32 s50, s50, s57
    s_mov_b32 s52, s24
    s_mov_b32 s53, s25
    s_mov_b32 s55, 0x20000
    v_lshrrev_b32 v96, 3, v1
    v_lshl_add_u32 v96, v6, 1, v96
    v_lshlrev_b32 v96, 5, v96
    v_lshl_add_u32 v96, v5, 7, v96
    v_lshl_add_u32 v96, v2, 10, v96
    v_lshl_add_u32 v96, v4, 3, v96
    s_sub_u32 s60, s61, 8192
    s_lshl_b32 s57, s3, 6
    s_movk_i32 s58, 0x2000
    s_cmp_lt_u32 s3, 2
    s_cselect_b32 s57, s57, 0
    s_cselect_b32 s56, {LW}, s60
    s_cselect_b32 s58, s58, 64
    v_xor_b32 v96, s57, v96
    v_add_u32 v96, s56, v96
    v_xor_b32 v97, 32, v96
    v_xor_b32 v92, s58, v96
    v_xor_b32 v93, 32, v92
    s_cselect_b32 s57, 13, 8
    v_and_b32 v98, 1, v1
    v_lshlrev_b32 v98, s57, v98
    v_lshrrev_b32 v7, 1, v1
    v_lshl_add_u32 v98, v7, 6, v98
    v_lshl_add_u32 v98, v2, 4, v98
    s_lshl_b32 s57, s32, 8
    s_lshl_b32 s58, s3, 7
    s_add_u32 s57, s57, s58
    s_add_u32 s57, s57, {QP}
    s_lshr_b32 s63, s32, 1
    s_lshl_b32 s63, s63, 13
    s_add_u32 s63, s63, {GP}
    s_and_b32 s56, s32, 1
    s_lshl_b32 s58, s56, 10
    s_add_u32 s58, s58, s63
    s_lshl_b32 s56, s56, 7
    s_add_u32 s63, s63, s56
    s_lshl_b32 s56, s3, 9
    s_add_u32 s58, s58, s56
    s_sub_u32 s58, s58, 1024
    s_cmp_lt_u32 s3, 2
    s_cselect_b32 s57, s57, s58
    s_lshl_b32 s58, s33, 11
    s_add_u32 s57, s57, s58
    v_add_u32 v98, s57, v98
    s_lshl_b32 s57, s6, 13
    s_lshl_b32 s58, s3, 10
    s_add_u32 s57, s57, s58
    s_add_u32 s57, s57, {QP+4096}
    v_lshlrev_b32 v99, 4, v0
    v_add_u32 v99, s57, v99
    s_add_u32 s60, s60, 6144
    v_lshlrev_b32 v100, 3, v0
    v_add_u32 v100, s60, v100
    s_lshl_b32 s58, s6, 11
    s_add_u32 s58, s58, s59
    s_add_u32 s58, s58, {ST}
    v_lshlrev_b32 v118, 2, v0
    v_add_u32 v118, s58, v118
    v_mov_b32 v121, 0xff
    s_getreg_b32 s68, hwreg(HW_REG_XCC_ID)
    s_and_b32 s68, s68, 7
    s_cmp_lt_u32 s3, 2
    s_cbranch_scc0 L_ln
    s_waitcnt vmcnt({2 if opt.get('noclear') else 4})
    L_ln:
    """)
    stamp("S x landed", 0)
    for i in range(8):
        a(f"v_lshlrev_b32 v{32+2*i}, 16, v{8+i}")
        a(f"v_and_b32 v{33+2*i}, s62, v{8+i}")
    for i in range(4):
        a(f"v_pk_add_f32 v[{48+2*i}:{49+2*i}], v[{32+4*i}:{33+4*i}], v[{34+4*i}:{35+4*i}]")
    a("v_pk_add_f32 v[48:49], v[48:49], v[50:51]")
    a("v_pk_add_f32 v[52:53], v[52:53], v[54:55]")
    a("v_pk_add_f32 v[48:49], v[48:49], v[52:53]")
    a("v_add_f32 v48, v48, v49")
    reduce5(48, 49)
    a("v_mul_f32 v48, 0xbb000000, v48")
    a("v_mov_b32 v49, v48")
    for i in range(8):
        a(f"v_pk_add_f32 v[{32+2*i}:{33+2*i}], v[{32+2*i}:{33+2*i}], v[48:49]")
    a("v_pk_mul_f32 v[50:51], v[32:33], v[32:33]")
    a("v_pk_mul_f32 v[52:53], v[34:35], v[34:35]")
    for i in range(2, 8):
        d = 50 + 2 * (i & 1)
        a(f"v_pk_fma_f32 v[{d}:{d+1}], v[{32+2*i}:{33+2*i}], v[{32+2*i}:{33+2*i}], v[{d}:{d+1}]")
    a("v_pk_add_f32 v[50:51], v[50:51], v[52:53]")
    a("v_add_f32 v50, v50, v51")
    a("""
    v_cvt_pk_bf16_f32 v48, v48, v48
    v_and_b32 v48, s62, v48
    v_mov_b32 v49, v48
    """)
    dpp("v_add_f32", 50, "quad_perm:[2,3,0,1]")
    fr = []
    for i in range(4):
        fr.append(f"v_lshlrev_b32 v{32+2*i}, 16, v{16+i}")
        fr.append(f"v_and_b32 v{33+2*i}, s62, v{16+i}")
    for i in range(4):
        fr.append(f"v_pk_add_f32 v[{32+2*i}:{33+2*i}], v[{32+2*i}:{33+2*i}], v[48:49]")
    for i in range(4):
        fr.append(f"v_cvt_pk_bf16_f32 v{16+i}, v{32+2*i}, v{33+2*i}")
    for i in range(4):
        fr.append(f"v_lshlrev_b32 v{32+2*i}, 16, v{16+i}")
        fr.append(f"v_and_b32 v{33+2*i}, s62, v{16+i}")
    ch = [f"v_add_f32_dpp v50, v50, v50 row_ror:4 {DPPM}", None, None,
          f"v_add_f32_dpp v50, v50, v50 row_ror:8 {DPPM}", "v_mov_b32 v51, v50", None, None,
          "v_permlane16_swap_b32 v50, v51", "v_add_f32 v50, v50, v51", "v_mov_b32 v51, v50", None, None,
          "v_permlane32_swap_b32 v50, v51", "v_add_f32 v50, v50, v51",
          "v_mul_f32 v50, 0x3b000000, v50", "v_cvt_pk_bf16_f32 v50, v50, v50", "v_and_b32 v50, s62, v50",
          "v_add_f32 v50, 0x3727c5ac, v50", "v_cvt_pk_bf16_f32 v50, v50, v50", "v_and_b32 v50, s62, v50",
          "v_sqrt_f32 v50, v50", None, "v_cvt_pk_bf16_f32 v50, v50, v50", "v_and_b32 v50, s62, v50",
          "v_rcp_f32 v50, v50", None]
    for c in ch:
        a(c if c else fr.pop(0))
    a("v_mov_b32 v51, v50")
    for x in fr: a(x)
    for i in range(4):
        a(f"v_pk_mul_f32 v[{32+2*i}:{33+2*i}], v[{32+2*i}:{33+2*i}], v[50:51]")
    for i in range(4):
        a(f"v_cvt_pk_bf16_f32 v{16+i}, v{32+2*i}, v{33+2*i}")
    for jj in range(1, 4):
        for i in range(4):
            a(f"v_mov_b32_dpp v{16+4*jj+i}, v{16+i} row_ror:{16-4*jj} {DPPM}")
    a(f"""
    s_waitcnt lgkmcnt(0)
    s_add_u32 s35, s35, {EINC}
    s_lshr_b32 s36, s35, 8
    s_lshr_b32 s37, s35, 16
    s_lshr_b32 s38, s35, 24
    s_and_b32 s38, s38, 0xf8
    s_or_b32 s38, s38, s68
    s_and_b32 s39, s35, 0x00ffffff
    s_lshl_b32 s57, s38, 24
    s_or_b32 s39, s39, s57
    v_cmp_lt_u32 vcc, 1, v1
    """)
    stamp("S LN done")
    a(f"""
    s_cmp_lt_u32 s3, 2
    s_waitcnt vmcnt(0)
    s_cbranch_scc0 L_w3
    s_barrier
    L_w3:
    """)
    stamp("S tile landed")
    TA = [96, 97, 92, 93]
    for aa in range(4):
        for ss in range(2):
            for e in range(2):
                d = 48 + 8 * aa + 4 * ss + 2 * e
                a(f"ds_read_b64_tr_b16 v[{d}:{d+1}], v{TA[aa]} offset:{ss*4096+e*512}")
    def p1mfma(aa):
        for ss in range(2):
            bi = 16 + 4 * (2 * (aa >> 1) + ss)
            a(f"v_mfma_f32_16x16x32_bf16 v[{32+4*aa}:{35+4*aa}], v[{48+8*aa+4*ss}:{51+8*aa+4*ss}], v[{bi}:{bi+3}], {'0' if ss==0 else f'v[{32+4*aa}:{35+4*aa}]'}")
    a("s_waitcnt lgkmcnt(8)")
    p1mfma(0); p1mfma(1)
    a("""
    s_waitcnt lgkmcnt(0)
    s_cbranch_scc0 L_w4
    s_barrier
    L_w4:
    """)
    p1mfma(2); p1mfma(3)
    for i in range(4):
        a(f"v_cndmask_b32 v{32+i}, v{32+i}, v{36+i}, vcc")
    for i in range(4):
        a(f"v_cndmask_b32 v{40+i}, v{40+i}, v{44+i}, vcc")
    a("s_mov_b64 exec, s[64:65]")
    a("s_cbranch_scc1 L_w5")
    for i in range(4):
        a(f"v_bfi_b32 v{40+i}, v121, s{35+i}, v{40+i}")
    a("""
    @PUB@global_store_dwordx4 v98, v[40:43], s[28:29] offset:128
    s_branch L_w6
    L_w5:
    v_pk_add_f32 v[32:33], v[32:33], v[40:41]
    v_pk_add_f32 v[34:35], v[34:35], v[42:43]
    L_w6:
    """)
    for i in range(4):
        a(f"v_bfi_b32 v{32+i}, v121, s{35+i}, v{32+i}")
    a(f"""
    @PUB@global_store_dwordx4 v98, v[32:35], s[28:29]
    s_mov_b64 exec, -1
    """)
    stamp("S published")
    a("""
    s_sub_u32 m0, s61, 4096
    s_add_u32 s51, s50, 16384
    buffer_load_dwordx4 v95, s[52:55], s50 offen nt lds
    s_sub_u32 m0, s61, 3072
    s_nop 0
    buffer_load_dwordx4 v95, s[52:55], s51 offen nt lds
    """)
    a(f"""
    v_xor_b32 v101, v2, v1
    v_lshlrev_b32 v101, 4, v101
    v_lshl_add_u32 v101, v1, 8, v101
    s_lshl_b32 s59, s3, 14
    v_add_u32 v101, s59, v101
    v_xor_b32 v102, 64, v101
    v_xor_b32 v103, 0x80, v101
    v_xor_b32 v104, 0xc0, v101
    v_and_b32 v105, 2, v1
    v_lshlrev_b32 v105, 12, v105
    v_and_b32 v7, 1, v1
    v_lshl_add_u32 v105, v7, 8, v105
    v_lshl_add_u32 v105, v2, 4, v105
    v_add_u32 v105, {R(0)}, v105
    v_lshrrev_b32 v106, 1, v5
    v_lshlrev_b32 v106, 8, v106
    v_lshl_add_u32 v106, v2, 6, v106
    v_lshl_add_u32 v106, v4, 4, v106
    v_and_b32 v8, 1, v5
    v_lshl_add_u32 v106, v8, 3, v106
    s_lshl_b32 s59, s3, 9
    s_add_u32 s59, s59, {PB}
    v_add_u32 v106, s59, v106
    v_lshlrev_b32 v122, 5, v4
    v_add_u32 v122, {MLB}, v122
    s_lshl_b32 s59, s3, 2
    v_add_u32 v107, s59, v122
    s_and_b32 s56, s3, 1
    v_lshlrev_b32 v108, 10, v5
    v_and_b32 v8, 2, v1
    v_lshl_add_u32 v108, v8, 8, v108
    v_lshl_add_u32 v108, v7, 6, v108
    v_lshl_add_u32 v108, v2, 4, v108
    s_lshl_b32 s59, s56, 8
    s_add_u32 s59, s59, s63
    s_add_u32 s59, s59, 2048
    v_add_u32 v108, s59, v108
    s_mov_b32 s57, s56
    s_lshl_b32 s58, s57, 15
    s_lshl_b32 s59, s32, 12
    s_add_u32 s58, s58, s59
    s_add_u32 s58, s58, {OP}
    v_lshlrev_b32 v123, 7, v1
    v_lshl_add_u32 v109, v2, 4, v123
    v_add_u32 v109, s58, v109
    s_lshl_b32 s58, s57, 11
    s_add_u32 s59, s58, {FL}
    v_add_u32 v123, s59, v123
    s_lshr_b32 s59, s32, 1
    s_lshl_b32 s59, s59, 2
    s_add_u32 s58, s58, s59
    s_add_u32 s58, s58, {ST}
    v_lshlrev_b32 v110, 9, v2
    v_add_u32 v110, s58, v110
    v_lshl_add_u32 v8, v6, 2, v5
    s_lshl_b32 s58, s3, 1
    s_and_b32 s58, s58, 4
    v_xor_b32 v8, s58, v8
    v_lshlrev_b32 v8, 5, v8
    v_lshl_add_u32 v111, v5, 8, v8
    v_lshl_add_u32 v111, v4, 3, v111
    v_lshl_add_u32 v111, v2, 13, v111
    v_add_u32 v111, {LW}, v111
    v_xor_b32 v112, 32, v111
    v_xor_b32 v113, 64, v111
    v_xor_b32 v114, 0x60, v111
    v_lshrrev_b32 v115, 1, v2
    v_lshl_add_u32 v115, v6, 1, v115
    v_lshlrev_b32 v117, 1, v115
    v_lshl_add_u32 v115, v115, 4, v1
    v_lshlrev_b32 v115, 2, v115
    s_lshl_b32 s58, s56, 20
    s_lshl_b32 s59, s33, 18
    s_add_u32 s58, s58, s59
    s_lshr_b32 s59, s3, 1
    s_lshl_b32 s59, s59, 14
    s_add_u32 s58, s58, s59
    s_lshl_b32 s59, s34, 8
    s_add_u32 s58, s58, s59
    s_add_u32 s58, s58, {FP+EX}
    v_add_u32 v115, s58, v115
    s_lshl_b32 s58, s67, 3
    v_add_u32 v120, s58, v117
    v_lshlrev_b32 v117, 3, v4
    v_lshrrev_b32 v117, v117, s35
    s_lshl_b32 s58, s6, 14
    s_lshl_b32 s59, s7, 4
    s_add_u32 s58, s58, s59
    s_add_u32 s58, s58, {FP}
    v_lshlrev_b32 v116, 8, v0
    v_add_u32 v116, s58, v116
    v_lshlrev_b32 v250, 4, v4
    v_lshl_add_u32 v250, v2, 6, v250
    v_add_u32 v250, {PB}, v250
    v_lshl_add_u32 v248, v2, 2, v5
    v_and_b32 v249, 7, v248
    s_lshl_b32 s58, s3, 1
    v_xor_b32 v249, s58, v249
    v_lshlrev_b32 v249, 5, v249
    v_lshl_add_u32 v248, v248, 8, v249
    v_lshl_add_u32 v248, v4, 3, v248
    v_add_u32 v248, 0x10000, v248
    v_xor_b32 v249, 32, v248
    s_lshl_b32 s58, s6, 15
    s_lshl_b32 s59, s3, 11
    s_add_u32 s58, s58, s59
    s_lshl_b32 s59, s7, 7
    s_add_u32 s58, s58, s59
    s_add_u32 s58, s58, {OP}
    v_lshlrev_b32 v251, 13, v4
    v_lshl_add_u32 v251, v2, 4, v251
    v_add_u32 v251, s58, v251
    s_mov_b32 s58, 0x0c0c0400
    s_mov_b32 s59, 0x04000c0c
    s_mov_b32 s61, 0xf8ffffff
    global_load_ushort v119, v120, s[8:9]
    s_cmp_ge_u32 s3, {0 if opt.get('nogather') else 2}
    s_cbranch_scc1 L_qskip
    {'global_load_dword v144, v144, s[28:29] ' + OTF if OT == 1 else ''}
    {'global_load_dword v145, v145, s[28:29] ' + OTF if OT == 1 else ''}
    {'s_sleep ' + str(opt['qdelay']) if opt.get('qdelay') else ''}
    s_mov_b32 s57, 0
    """)
    for c in range(4):
        a(f"global_load_dwordx4 v[{32+4*c}:{35+4*c}], v99, s[28:29] offset:{c*2048-4096} @L1@")
    a("s_branch L_qchk")
    a("L_qpoll:")
    for c in range(4):
        a(f"global_load_dwordx4 v[{32+4*c}:{35+4*c}], v99, s[28:29] offset:{c*2048-4096} @LF@")
    a("L_qchk:")
    a("s_waitcnt vmcnt(0)")
    for c in range(4):
        a(f"v_perm_b32 v{48+2*c}, v{33+4*c}, v{32+4*c}, s58")
        a(f"v_perm_b32 v{49+2*c}, v{35+4*c}, v{34+4*c}, s59")
        a(f"v_or_b32 v{48+2*c}, v{48+2*c}, v{49+2*c}")
        a(f"v_xor_b32 v{48+2*c}, s39, v{48+2*c}")
    a(f"""
    v_or3_b32 v48, v48, v50, v52
    v_or_b32 v56, v48, v54
    v_and_b32 v48, s61, v56
    v_cmp_ne_u32 vcc, 0, v48
    s_add_u32 s57, s57, 1
    s_mov_b64 exec, vcc
    s_cbranch_execz L_qdone
    s_cmp_lt_u32 s57, {NFAST}
    s_cbranch_scc1 L_qpoll
    buffer_wbl2 sc1
    buffer_inv sc1
    s_waitcnt vmcnt(0)
    s_cmp_lt_u32 s57, {SPIN}
    s_cbranch_scc1 L_qpoll
    L_qdone:
    s_mov_b64 exec, -1
    v_cmp_ne_u32 vcc, 0, v56
    s_movk_i32 s56, 0xff00
    """)
    for i in range(16):
        a(f"v_and_b32 v{32+i}, s56, v{32+i}")
    a(f"""
    s_or_b32 s56, vcc_lo, vcc_hi
    v_pk_add_f32 v[32:33], v[32:33], v[36:37]
    v_pk_add_f32 v[34:35], v[34:35], v[38:39]
    v_pk_add_f32 v[40:41], v[40:41], v[44:45]
    v_pk_add_f32 v[42:43], v[42:43], v[46:47]
    v_pk_add_f32 v[32:33], v[32:33], v[40:41]
    v_pk_add_f32 v[34:35], v[34:35], v[42:43]
    v_cvt_pk_bf16_f32 v32, v32, v33
    v_cvt_pk_bf16_f32 v33, v34, v35
    v_mov_b32 v34, s56
    v_mov_b32 v35, s60
    ds_write_b64 v100, v[32:33]
    ds_write_b32 v35, v34 offset:{MODEB}
    """)
    if stamps: a("s_mov_b32 s69, s57")
    stamp("S gathered")
    a(f"""
    L_qskip:
    v_mov_b32 v10, {R(0)+MODEB}
    s_waitcnt vmcnt(0) lgkmcnt(0)
    s_barrier
    """)
    stamp("B1", 5)
    a("""
    ds_read_b32 v8, v10
    ds_read_b32 v9, v10 offset:8192
    """)
    for j in range(4):
        a(f"ds_read_b128 v[{16+4*j}:{19+4*j}], v105 offset:{64*j}")
    def kread(blk):
        for j in range(4):
            d = 32 + 16 * blk + 4 * j
            a(f"ds_read_b128 v[{d}:{d+3}], v{101+j} offset:{4096*blk}")
    kread(0); kread(1)
    a("global_load_dwordx4 v[124:127], v108, s[28:29] offset:-2048 @L1@")
    a("global_load_dwordx4 v[12:15], v108, s[28:29] offset:2048 @L1@")
    if OT == 2:
        a(f"""
        s_cmp_ge_u32 s3, 2
        s_cbranch_scc1 L_not
        global_load_dword v144, v144, s[28:29] {OTF}
        global_load_dword v145, v145, s[28:29] {OTF}
        L_not:
        """)
    for blk in range(4):
        a(f"s_waitcnt lgkmcnt({4 if blk < 3 else 0})")
        for j in range(4):
            d = 32 + 16 * blk + 4 * j
            ac = 128 + 4 * blk
            a(f"v_mfma_f32_16x16x32_bf16 v[{ac}:{ac+3}], v[{d}:{d+3}], v[{16+4*j}:{19+4*j}], {'0' if j==0 else f'v[{ac}:{ac+3}]'}")
        if blk + 2 < 4: kread(blk + 2)
        if blk == 0:
            a("v_or_b32 v8, v8, v9")
            a("v_cmp_eq_u32 s[44:45], 1, v5")
            a("v_cmp_eq_u32 s[46:47], 2, v5")
            a("v_cmp_eq_u32 s[48:49], 3, v5")
            a("v_readfirstlane_b32 s60, v8")
            if opt.get('nogather'): a("s_mov_b32 s60, 0")
    a(f"s_mov_b32 s56, {SCALE}")
    a(f"s_mov_b32 s57, {LOG2E}")
    for blk in range(1, 4):
        for i in range(4):
            a(f"v_cndmask_b32 v{128+i}, v{128+i}, v{128+4*blk+i}, s[{42+2*blk}:{43+2*blk}]")
    a("""
    v_cvt_pk_bf16_f32 v40, v128, v129
    v_cvt_pk_bf16_f32 v41, v130, v131
    v_lshlrev_b32 v32, 16, v40
    v_and_b32 v33, s62, v40
    v_lshlrev_b32 v34, 16, v41
    v_and_b32 v35, s62, v41
    """)
    for i in range(4): a(f"v_mul_f32 v{32+i}, s56, v{32+i}")
    a("""
    v_cvt_pk_bf16_f32 v40, v32, v33
    v_cvt_pk_bf16_f32 v41, v34, v35
    v_lshlrev_b32 v32, 16, v40
    v_and_b32 v33, s62, v40
    v_lshlrev_b32 v34, 16, v41
    v_and_b32 v35, s62, v41
    v_max3_f32 v40, v32, v33, v34
    v_max_f32 v40, v40, v35
    """)
    reduce4(40, 41, "v_max_f32")
    for i in range(4): a(f"v_sub_f32 v{32+i}, v{32+i}, v40")
    for i in range(4): a(f"v_mul_f32 v{32+i}, s57, v{32+i}")
    for i in range(4): a(f"v_exp_f32 v{32+i}, v{32+i}")
    a("""
    v_mul_f32 v40, s57, v40
    v_cvt_pk_bf16_f32 v44, v32, v33
    v_cvt_pk_bf16_f32 v45, v34, v35
    ds_write_b64 v106, v[44:45]
    ds_write_b32 v107, v40
    v_add_f32 v32, v32, v33
    v_add_f32 v34, v34, v35
    v_add_f32 v32, v32, v34
    """)
    reduce4(32, 33)
    a("""
    ds_write_b32 v107, v32 offset:16
    s_cmp_eq_u32 s60, 0
    s_cbranch_scc1 L_nowb
    buffer_wbl2 sc1
    L_nowb:
    """)
    stamp("S softmax done", 6)
    a("""
    s_waitcnt lgkmcnt(0)
    s_barrier
    """)
    stamp("Bp", 7)
    PF = 148; VF = 180; AC = 212; AL = 244
    def rd(u):
        for q in range(2):
            for e in range(2):
                d = VF + 8 * (u % 4) + 4 * q + 2 * e
                a(f"ds_read_b64_tr_b16 v[{d}:{d+1}], v{248+q} offset:{8192*u+4096*e}")
    def pvm(u):
        for q in range(2):
            d = VF + 8 * (u % 4) + 4 * q
            ac = AC + 8 * (u >> 1) + 4 * q
            a(f"v_mfma_f32_16x16x32_bf16 v[{ac}:{ac+3}], v[{d}:{d+3}], v[{PF+4*u}:{PF+3+4*u}], {'0' if u % 2 == 0 else f'v[{ac}:{ac+3}]'}")
    a("""
    ds_read_b128 v[40:43], v122
    ds_read_b128 v[44:47], v122 offset:16
    """)
    for u in range(8):
        a(f"ds_read_b128 v[{PF+4*u}:{PF+3+4*u}], v250 offset:{256*u}")
    a("""
    s_waitcnt lgkmcnt(8)
    v_max3_f32 v48, v40, v41, v42
    v_max_f32 v48, v48, v43
    """)
    for i in range(4): a(f"v_sub_f32 v{40+i}, v{40+i}, v48")
    for i in range(4): a(f"v_exp_f32 v{40+i}, v{40+i}")
    a("""
    v_mul_f32 v49, v40, v44
    v_fmac_f32 v49, v41, v45
    v_fmac_f32 v49, v42, v46
    v_fmac_f32 v49, v43, v47
    v_log_f32 v50, v49
    v_rcp_f32 v49, v49
    s_cmp_lg_u32 s3, 3
    s_cbranch_scc1 L_nostat
    v_add_f32 v52, v50, v48
    s_mov_b32 exec_hi, 0
    global_store_dword v118, v52, s[28:29]
    s_mov_b64 exec, -1
    L_nostat:
    s_waitcnt lgkmcnt(0)
    """)
    assert nA <= 4 and nB - nA <= 4
    for u in range(nA): rd(u)
    for i in range(4): a(f"v_mul_f32 v{AL+i}, v{40+i}, v49")
    for u in range(nA):
        a(f"s_waitcnt lgkmcnt({min(15, 4*(nA-1-u))})")
        pvm(u)
    for q in range(4):
        for e in range(2):
            d = 80 + 4 * q + 2 * e
            a(f"ds_read_b64_tr_b16 v[{d}:{d+1}], v{111+q} offset:{(4+e)*1024}")
    a("""
    s_cbranch_scc1 L_nostat1
    s_waitcnt vmcnt(1)
    s_branch L_nostat2
    L_nostat1:
    s_waitcnt vmcnt(0)
    L_nostat2:
    """)
    a(f"""
    s_mov_b32 s57, 0
    s_branch L_gcheck
    L_gpoll:
    s_cmp_eq_u32 s60, 0
    s_cbranch_scc1 L_gload
    buffer_inv sc1
    s_waitcnt vmcnt(0)
    L_gload:
    global_load_dwordx4 v[124:127], v108, s[28:29] offset:-2048 @LF@
    global_load_dwordx4 v[12:15], v108, s[28:29] offset:2048 @LF@
    s_waitcnt vmcnt(0)
    L_gcheck:
    v_perm_b32 v48, v125, v124, s58
    v_perm_b32 v49, v127, v126, s59
    v_perm_b32 v50, v13, v12, s58
    v_perm_b32 v51, v15, v14, s59
    v_or_b32 v48, v48, v49
    v_or_b32 v50, v50, v51
    v_xor_b32 v48, s39, v48
    v_xor_b32 v50, s39, v50
    v_or_b32 v48, v48, v50
    v_and_b32 v48, s61, v48
    v_cmp_ne_u32 vcc, 0, v48
    s_add_u32 s57, s57, 1
    s_mov_b64 exec, vcc
    s_cbranch_execz L_gdone
    s_cmp_lt_u32 s57, {SPIN}
    s_cbranch_scc1 L_gpoll
    L_gdone:
    s_mov_b64 exec, -1
    s_movk_i32 s56, 0xff00
    """)
    for i in range(4): a(f"v_and_b32 v{124+i}, s56, v{124+i}")
    for i in range(4): a(f"v_and_b32 v{12+i}, s56, v{12+i}")
    a("v_pk_add_f32 v[124:125], v[124:125], v[12:13]")
    a("v_pk_add_f32 v[126:127], v[126:127], v[14:15]")
    for m in ("row_ror:4", "row_ror:8"):
        for i in range(4): dpp("v_add_f32", 124 + i, m)
    a("""
    v_cvt_pk_bf16_f32 v48, v124, v125
    v_cvt_pk_bf16_f32 v49, v126, v127
    v_lshlrev_b32 v124, 16, v48
    v_and_b32 v125, s62, v48
    v_lshlrev_b32 v126, 16, v49
    v_and_b32 v127, s62, v49
    """)
    for i in range(4): a(f"v_max_f32 v{48+i}, 0, v{124+i}")
    for i in range(4): a(f"v_mul_f32_dpp v{48+i}, v{124+i}, v{48+i} quad_perm:[2,3,0,1] {DPPM}")
    a("""
    v_cmp_eq_u32 s[44:45], 0, v1
    v_cmp_eq_u32 s[46:47], 1, v1
    v_cvt_pk_bf16_f32 v48, v48, v49
    v_cvt_pk_bf16_f32 v49, v50, v51
    v_cndmask_b32 v28, 0, v48, s[44:45]
    v_cndmask_b32 v29, 0, v49, s[44:45]
    v_cndmask_b32 v30, 0, v48, s[46:47]
    v_cndmask_b32 v31, 0, v49, s[46:47]
    s_waitcnt lgkmcnt(0)
    """)
    for q in range(4):
        a(f"v_mfma_f32_16x16x32_bf16 v[{32+4*q}:{35+4*q}], v[28:31], v[{80+4*q}:{83+4*q}], 0")
    SG = """
    global_load_dword v24, v110, s[28:29] @TF@
    global_load_dword v25, v110, s[28:29] offset:128 @TF@
    global_load_dword v26, v110, s[28:29] offset:256 @TF@
    global_load_dword v27, v110, s[28:29] offset:384 @TF@
    """
    OG = """
    global_load_dwordx4 v[16:19], v109, s[28:29] @TF@
    global_load_dwordx4 v[20:23], v109, s[28:29] offset:2048 @TF@
    """
    def weights():
        a("""
        v_max3_f32 v124, v24, v25, v26
        v_max_f32 v124, v124, v27
        """)
        reduce_g(124, 125, "v_max_f32")
        for i in range(4): a(f"v_sub_f32 v{8+i}, v{24+i}, v124")
        for i in range(4): a(f"v_exp_f32 v{8+i}, v{8+i}")
        a("""
        v_add_f32 v124, v8, v9
        v_add_f32 v125, v10, v11
        v_add_f32 v124, v124, v125
        """)
        reduce_g(124, 125)
        a("v_rcp_f32 v124, v124")
        for i in range(4): a(f"v_mul_f32 v{8+i}, v{8+i}, v124")
    for q in range(4):
        a(f"v_add_f32 v{32+4*q}, v{32+4*q}, v{33+4*q}")
    a("v_mov_b32 v33, s35")
    a("s_barrier")
    for u in range(nA, nB): rd(u)
    for u in range(nA, nB):
        a(f"s_waitcnt lgkmcnt({4*(nB-1-u)})")
        pvm(u)
    nW = nB // 2
    for i in range(8): a(f"v_mul_f32 v{AC+i}, v{AC+i}, v{AL}")
    for w_ in range(1, nW):
        for i in range(8): a(f"v_fmac_f32 v{AC+i}, v{AC+8*w_+i}, v{AL+w_}")
    a("s_barrier")
    stamp("BB", 8)
    for u in range(nB, 8): rd(u)
    a(SG)
    for u in range(nB, 8):
        a(f"s_waitcnt lgkmcnt({4*(7-u)})")
        pvm(u)
    for w_ in range(nW, 4):
        for i in range(8): a(f"v_fmac_f32 v{AC+i}, v{AC+8*w_+i}, v{AL+w_}")
    for i in range(4):
        a(f"v_cvt_pk_bf16_f32 v{AC+i}, v{AC+2*i}, v{AC+1+2*i}")
    a(f"""
    s_mov_b64 exec, s[64:65]
    global_store_dwordx4 v251, v[{AC}:{AC+3}], s[28:29]
    s_mov_b64 exec, -1
    s_cmp_eq_u32 s60, 0
    s_cbranch_scc1 L_sbc
    s_waitcnt vmcnt(0)
    L_sbc:
    s_barrier
    """)
    stamp("BC", 10)
    for ks in range(2):
        for q in range(4):
            for e in range(2):
                d = 48 + 16 * ks + 4 * q + 2 * e
                a(f"ds_read_b64_tr_b16 v[{d}:{d+1}], v{111+q} offset:{(2*ks+e)*1024}")
    a(f"""
    s_mov_b32 s57, 0
    s_cbranch_scc1 L_fast2
    s_cmp_lg_u32 s3, 0
    s_cbranch_scc1 L_slow2
    buffer_wbl2 sc1
    s_waitcnt vmcnt(0)
    v_add_u32 v34, {FL-ST}, v118
    s_mov_b64 exec, 1
    global_store_dword v34, v33, s[28:29] sc1
    s_mov_b64 exec, -1
    L_slow2:
    global_load_dword v34, v123, s[28:29] sc1
    s_waitcnt vmcnt(0)
    v_cmp_ne_u32 vcc, s35, v34
    s_add_u32 s57, s57, 1
    s_cbranch_vccz L_slow3
    s_cmp_lt_u32 s57, {SPIN}
    s_cbranch_scc1 L_slow2
    L_slow3:
    buffer_inv sc1
    s_waitcnt vmcnt(0)
    {SG}
    s_waitcnt vmcnt(0)
    L_fast2:
    """)
    stamp("og issue", 9); nst[0] = 11
    a(f"""
    {OG}
    s_waitcnt vmcnt(3)
    s_branch L_schk
    L_spoll:
    {SG}
    s_waitcnt vmcnt(0)
    L_schk:
    v_max3_u32 v124, v24, v25, v26
    v_max_u32 v124, v124, v27
    v_cmp_eq_u32 vcc, -1, v124
    s_add_u32 s57, s57, 1
    s_mov_b64 exec, vcc
    s_cbranch_execz L_sdone
    s_cmp_lt_u32 s57, {SPIN}
    s_cbranch_scc1 L_spoll
    L_sdone:
    s_mov_b64 exec, -1
    """)
    weights()
    if stamps: a("s_mov_b32 s69, s57")
    a(f"""
    s_mov_b32 s57, 0
    s_branch L_ochk
    L_opoll:
    {OG}
    L_ochk:
    s_waitcnt vmcnt(0)
    v_max3_u32 v124, v16, v17, v18
    v_max3_u32 v125, v19, v20, v21
    v_max3_u32 v124, v124, v22, v23
    v_max_u32 v124, v124, v125
    v_cmp_eq_u32 vcc, -1, v124
    s_add_u32 s57, s57, 1
    s_mov_b64 exec, vcc
    s_cbranch_execz L_odone
    s_cmp_lt_u32 s57, {SPIN}
    s_cbranch_scc1 L_opoll
    L_odone:
    s_mov_b64 exec, -1
    s_waitcnt lgkmcnt(0)
    """)
    if stamps: a("s_mov_b32 s68, s57")
    stamp("o gathered")
    for q in range(4):
        for ks in range(2):
            a(f"v_mfma_f32_16x16x32_bf16 v[{128+4*q}:{131+4*q}], v[{16+4*ks}:{19+4*ks}], v[{48+16*ks+4*q}:{51+16*ks+4*q}], {'0' if ks==0 else f'v[{128+4*q}:{131+4*q}]'}")
    for q in range(4):
        for i in range(4):
            a(f"v_fmac_f32 v{32+4*q}, v{8+i}, v{128+4*q+i}")
        if q == 2:
            a("v_permlane32_swap_b32 v32, v36")
            a("v_add_f32 v32, v32, v36")
    a("""
    v_permlane32_swap_b32 v40, v44
    v_add_f32 v40, v40, v44
    v_permlane16_swap_b32 v32, v40
    v_add_f32 v36, v32, v40
    v_bfi_b32 v36, v121, v117, v36
    s_mov_b32 s44, 0x11111111
    s_mov_b32 s45, 0x11111111
    """)
    for i in range(1, 4):
        a(f"v_mov_b32_dpp v{36+i}, v36 quad_perm:[{i},{i},{i},{i}] {DPPM}")
    a(f"""
    s_mov_b64 exec, s[44:45]
    global_store_dwordx4 v115, v[36:39], s[30:31] {opt.get('ffs', 'sc1')}
    s_mov_b64 exec, -1
    """)
    stamp("final published")
    if not opt.get('nofb'): a("s_barrier")
    a(f"""
    s_cmp_lg_u32 s3, 0
    s_cbranch_scc1 {'L_fin1' if stamps else 'L_end'}
    s_mov_b32 s57, 0
    v_lshlrev_b32 v28, 16, v119
    s_movk_i32 s56, 0xff00
    {'s_memrealtime s[74:75]' if stamps else ''}
    L_fpoll:
    global_load_dwordx4 v[16:19], v116, s[28:29] {opt.get('ffl', 'sc1')}
    s_waitcnt vmcnt(0)
    {'s_cmp_lg_u32 s57, 0' if stamps else ''}
    {'s_cbranch_scc1 L_fp1' if stamps else ''}
    {'s_memrealtime s[76:77]' if stamps else ''}
    {'L_fp1:' if stamps else ''}
    v_perm_b32 v24, v17, v16, s58
    v_perm_b32 v25, v19, v18, s59
    v_or_b32 v24, v24, v25
    v_cmp_ne_u32 vcc, s35, v24
    s_add_u32 s57, s57, 1
    s_mov_b64 exec, vcc
    s_cbranch_execz L_fdone
    s_cmp_lt_u32 s57, {SPIN}
    s_cbranch_scc1 L_fpoll
    L_fdone:
    s_mov_b64 exec, -1
    """)
    if stamps: a("s_mov_b32 s67, s57")
    for i in range(4): a(f"v_and_b32 v{16+i}, s56, v{16+i}")
    a("""
    v_permlane32_swap_b32 v16, v17
    v_permlane32_swap_b32 v18, v19
    v_add_f32 v16, v16, v17
    v_add_f32 v18, v18, v19
    s_mov_b32 s44, 0x00010001
    s_mov_b32 s45, 0x00010001
    v_permlane16_swap_b32 v16, v18
    v_add_f32 v16, v16, v18
    """)
    for m in ("quad_perm:[1,0,3,2]", "quad_perm:[2,3,0,1]", "row_ror:4", "row_ror:8"):
        dpp("v_add_f32", 16, m)
    a("""
    v_add_f32 v16, v16, v28
    v_cvt_pk_bf16_f32 v16, v16, v16
    s_mov_b64 exec, s[44:45]
    global_store_short v120, v16, s[26:27]
    s_cmp_lg_u32 s2, 0
    """)
    a(f"s_cbranch_scc1 {'L_fin0' if stamps else 'L_end'}")
    a("""
    s_mov_b64 exec, 1
    v_mov_b32 v19, 0
    global_store_dword v19, v33, s[30:31]
    """)
    if stamps:
        a("s_branch L_fin0")
        a("L_fin1:")
        a("s_waitcnt vmcnt(0)")
        a("L_fin0:")
        a("s_mov_b64 exec, -1")
        stamp("out stored")
        a("L_fin:")
        a("s_getreg_b32 s66, hwreg(HW_REG_XCC_ID)")
        a("v_mov_b32 v32, s70")
        for i in range(14):
            a(f"v_mov_b32 v{33+i}, s{72+2*i}")
        a("v_mov_b32 v47, s66")
        a("v_mov_b32 v48, s69")
        a("v_mov_b32 v49, s68")
        a("v_mov_b32 v50, s67")
        a("v_mov_b32 v51, 0")
        a(f"""
        s_lshl_b32 s58, s2, 10
        s_lshl_b32 s59, s3, 7
        s_add_u32 s58, s58, s59
        s_add_u32 s58, s58, {STAMP}
        v_mov_b32 v3, s58
        s_mov_b64 exec, 1
        """)
        for j in range(5):
            a(f"global_store_dwordx4 v3, v[{32+4*j}:{35+4*j}], s[30:31] offset:{16*j}")
    a("L_end:")
    a("s_endpgm")
    a.raw('.section .rodata,"a"')
    a.raw(".p2align 6")
    a.raw(f".amdhsa_kernel {NAME}_kernel")
    a.raw("  .amdhsa_next_free_vgpr 256")
    a.raw("  .amdhsa_next_free_sgpr 102")
    a.raw("  .amdhsa_accum_offset 256")
    a.raw("  .amdhsa_group_segment_fixed_size 0")
    a.raw("  .amdhsa_kernarg_size 96")
    a.raw("  .amdhsa_user_sgpr_count 2")
    a.raw("  .amdhsa_user_sgpr_kernarg_segment_ptr 1")
    a.raw("  .amdhsa_system_sgpr_workgroup_id_x 1")
    a.raw("  .amdhsa_float_denorm_mode_32 3")
    a.raw(".end_amdhsa_kernel")
    return a.text().replace('@LF@', LF).replace('@L1@', L1F).replace('@TF@', opt.get('tf', 'sc1'))

def parse_opt(s):
    opt = {}
    for kv in s.split(","):
        if kv:
            k, _, v = kv.partition("=")
            opt[k] = (int(v) if v.lstrip('-').isdigit() else v.replace('+', ' ')) if v else 1
    return opt

if __name__ == "__main__":
    ap = argparse.ArgumentParser()
    ap.add_argument("-o", default="k.s")
    ap.add_argument("--stamps", action="store_true")
    ap.add_argument("--opt", default="")
    args = ap.parse_args()
    open(args.o, "w").write(gen(args.stamps, parse_opt(args.opt)))
```

```python
import sys, argparse
from asmgen import Asm
NAME = "parallel_sum__sliding_block_cached__glu_gated_reglu__decode"

EX = 0x40000
QP = 0x0; ST = 0x4000; FL = 0x5000; GP = 0x8000; OP = 0x10000; FP = 0x20000
STAMP = 0x1000000
LW = 131072
def R(j): return LW + 8192 * j + 6144
MLB = R(2); PB = R(3); MODEB = 512
SPIN0 = 40000
LOG2E = 0x3fb8aa3b
SCALE = 0x3db504f3
DPPM = "row_mask:0xf bank_mask:0xf"
EINC = 0x08010101

HEADER = open("cdna_kernels/%s.s.ref" % NAME).read().split("; Override launch")[0]

def gen(stamps=False, opt=None):
    opt = opt or {}
    a0 = Asm()
    class W:
        raw = a0.raw; comment = a0.comment; text = a0.text
        def __call__(self, t): a0(t.replace('@PUB@', '; ' if opt.get('nopub') else ''))
    a = W()
    SPIN = opt.get('spin', SPIN0)
    rotmul = opt.get('rotmul', 37)
    kpre = opt.get('kpre', 4)
    vpre = opt.get('vpre', 8)
    NFAST = opt.get('nfast', 12)
    thr = opt.get('thr', 6)
    LF = opt.get('lf', 'sc1 nt')
    L1F = opt.get('l1f', 'sc1 nt').replace('none', '')
    thr2 = opt.get('thr2', 8); OT = opt.get('otouch', 1); OTF = opt.get('otf', 'sc1 nt'); vthr = opt.get('vthr', 4)
    TOUCH = opt.get('touch', 0)
    nst = [0]
    def stamp(name, i=None):
        if not stamps: return
        if i is not None: nst[0] = i
        i = nst[0]; nst[0] += 1
        assert i < 14
        a(f"s_memrealtime s[{72+2*i}:{73+2*i}]")
        a("s_waitcnt lgkmcnt(0)")
    def dpp(op, v, m): a(f"{op}_dpp v{v}, v{v}, v{v} {m} {DPPM}")
    def reduce_g(v, t, op="v_add_f32"):
        a(f"v_mov_b32 v{t}, v{v}")
        a(f"v_permlane16_swap_b32 v{v}, v{t}")
        a(f"{op} v{v}, v{v}, v{t}")
        a(f"v_mov_b32 v{t}, v{v}")
        a(f"v_permlane32_swap_b32 v{v}, v{t}")
        a(f"{op} v{v}, v{v}, v{t}")
    def reduce5(v, t, op="v_add_f32"):
        dpp(op, v, "quad_perm:[2,3,0,1]"); dpp(op, v, "row_ror:4"); dpp(op, v, "row_ror:8")
        reduce_g(v, t, op)
    def reduce4(v, t, op="v_add_f32"):
        dpp(op, v, "row_ror:4"); dpp(op, v, "row_ror:8")
        reduce_g(v, t, op)

    a.raw(HEADER.rstrip())
    a.raw("; @launch grid=(256,1,1) block=(512,1,1) lds=163840")
    a.raw('.amdgcn_target "amdgcn-amd-amdhsa--gfx950"')
    a.raw(".text")
    a.raw(f".globl {NAME}_kernel")
    a.raw(".p2align 12")
    a.raw(".p2align 8")
    a.raw(f".type {NAME}_kernel,@function")
    a.raw(f"{NAME}_kernel:")
    if stamps or opt.get('padto'): a("s_memrealtime s[70:71]")
    a(f"""
    s_cmp_ge_u32 s2, 256
    s_cbranch_scc1 L_end
    s_load_dwordx16 s[8:23], s[0:1], 0
    s_load_dwordx8 s[24:31], s[0:1], 64
    v_lshrrev_b32 v3, 6, v0
    v_and_b32 v0, 63, v0
    v_readfirstlane_b32 s3, v3
    s_getpc_b64 s[56:57]
    s_lshr_b32 s5, s2, 3
    """)
    if not opt.get('nopf'):
        a(f"""
        s_and_b32 s58, s5, 15
        s_lshl_b32 s58, s58, 3
        s_add_u32 s58, s58, s3
        s_lshl_b32 s58, s58, 6
        s_min_u32 s58, s58, L_end-{NAME}_kernel-64
        s_load_dword s39, s[56:57], s58
        """)
    a(f"""
    v_and_b32 v1, 15, v0
    v_lshrrev_b32 v2, 4, v0
    s_and_b32 s4, s2, 7
    s_lshr_b32 s6, s5, 4
    s_and_b32 s7, s5, 15
    s_lshr_b32 s32, s5, 2
    s_and_b32 s33, s5, 3
    s_lshl_b32 s34, s4, 3
    s_add_u32 s34, s34, s32
    s_mov_b32 s43, 0x20000
    s_mul_i32 s63, s4, 7
    s_add_u32 s63, s63, 1
    s_and_b32 s63, s63, 0xfe
    s_add_u32 s63, s63, s32
    s_lshr_b32 s59, s32, 1
    s_and_b32 s60, s4, 1
    s_add_u32 s59, s59, s60
    s_cmp_lt_u32 s59, 4
    s_cselect_b32 s54, 0x1c0000, 0
    s_lshl_b32 s66, s4, 18
    s_add_u32 s66, s66, {EX}
    v_lshrrev_b32 v6, 3, v0
    v_and_b32 v7, 1, v2
    v_lshlrev_b32 v7, 1, v7
    v_and_b32 v8, 7, v0
    v_xor_b32 v7, v7, v8
    v_lshlrev_b32 v7, 4, v7
    v_lshl_add_u32 v28, v6, 13, v7
    v_xor_b32 v29, 64, v28
    s_lshl_b32 s57, s33, 20
    s_lshl_b32 s58, s3, 17
    s_add_u32 s57, s57, s58
    s_lshl_b32 s58, s34, 7
    s_add_u32 s57, s57, s58
    s_add_u32 s58, s57, 0x10000
    s_lshl_b32 s60, s3, 11
    s_add_u32 s60, s60, {LW}
    s_mov_b32 s50, 0x400000
    s_mov_b32 s51, 0x20000
    s_cmp_ge_u32 s3, 4
    s_cbranch_scc1 L_loader
    """)
    WQ = """
    s_add_u32 s28, s30, s66
    s_addc_u32 s29, s31, 0
    s_mov_b32 s48, s14
    s_mov_b32 s49, s15
    s_mov_b32 m0, s60
    s_add_u32 s60, s60, 1024
    buffer_load_dwordx4 v28, s[48:51], s57 offen nt lds
    s_mov_b32 m0, s60
    s_nop 0
    buffer_load_dwordx4 v29, s[48:51], s58 offen nt lds
    """
    a(f"""
    v_and_b32 v3, 1, v0
    v_lshlrev_b32 v3, 10, v3
    v_lshrrev_b32 v4, 1, v0
    v_lshl_add_u32 v4, v4, 5, v3
    s_and_b32 s59, s32, 1
    s_lshl_b32 s62, s59, 7
    s_cmp_lt_u32 s3, 2
    s_cselect_b32 s61, 3, 1
    s_cselect_b32 s62, 0, s62
    v_lshrrev_b32 v5, 2, v1
    v_and_b32 v5, s61, v5
    v_lshl_add_u32 v5, v5, 6, v3
    v_lshl_add_u32 v5, v2, 4, v5
    s_lshl_b32 s61, s33, 8
    s_add_u32 s61, s61, s62
    v_add_u32 v5, s61, v5
    v_mul_u32_u24 v30, 3584, v6
    v_add_u32 v31, v30, v7
    v_xor_b32 v7, 64, v7
    v_add_u32 v30, v30, v7
    s_lshl_b32 s56, s33, 1
    s_add_u32 s56, s56, s59
    s_mul_i32 s56, s56, {64*3584}
    s_lshr_b32 s59, s63, 1
    s_lshl_b32 s59, s59, 7
    s_add_u32 s56, s56, s59
    s_mov_b32 s42, s54
    s_lshl_b32 s59, s7, 7
    s_lshl_b32 s62, s6, 15
    s_add_u32 s62, s62, s59
    s_lshl_b32 s64, s3, 14
    s_add_u32 s62, s62, s64
    s_add_u32 s62, s62, {OP}
    v_lshlrev_b32 v20, 11, v6
    v_lshlrev_b32 v21, 4, v8
    v_add3_u32 v144, s62, v20, v21
    s_lshl_b32 s62, s6, 11
    s_add_u32 s62, s62, s59
    s_add_u32 s62, s62, {ST}
    v_add_u32 v145, s62, v21
    v_mov_b32 v24, -1
    v_mov_b32 v25, -1
    v_mov_b32 v26, -1
    v_mov_b32 v27, -1
    s_lshl_b32 s61, s3, 13
    s_add_u32 s61, s61, {LW+8192}
    s_waitcnt lgkmcnt(0)
    global_load_dwordx4 v[8:11], v4, s[8:9]
    global_load_dwordx4 v[12:15], v4, s[8:9] offset:16
    global_load_dwordx4 v[16:19], v5, s[8:9]
    {WQ}
    s_load_dword s35, s[30:31], 0
    s_cmp_lt_u32 s3, 2
    s_cbranch_scc1 L_sx0
    s_cmp_eq_u32 s3, 2
    s_cselect_b32 s40, s20, s22
    s_cselect_b32 s41, s21, s23
    s_cselect_b32 s64, 0, {24*128}
    s_sub_u32 s60, s61, 8192
    s_mul_i32 s62, s5, {48*128}
    s_add_u32 s62, s62, s64
    v_min_u32 v20, 23, v0
    v_lshlrev_b32 v20, 7, v20
    v_add_u32 v20, s62, v20
    s_barrier
    {'global_load_dword v94, v20, s[28:29] sc1' if TOUCH == 1 else ''}
    L_tloop:
    s_mov_b32 m0, s60
    s_add_u32 s60, s60, 1024
    buffer_load_dwordx4 v31, s[40:43], s56 offen nt lds
    s_add_u32 s56, s56, {8*3584}
    s_mov_b32 m0, s60
    s_add_u32 s60, s60, 1024
    buffer_load_dwordx4 v30, s[40:43], s56 offen nt lds
    s_add_u32 s56, s56, {8*3584}
    s_cmp_lt_u32 s60, s61
    s_cbranch_scc1 L_tloop
    s_waitcnt vmcnt({9 if TOUCH == 1 else 8})
    s_barrier
    s_barrier
    s_branch L_service
    L_sx0:
    {'' if opt.get('noclear') else 'global_store_dwordx4 v144, v[24:27], s[28:29]'}
    s_mov_b64 exec, 0xff
    {'' if opt.get('noclear') else 'global_store_dwordx4 v145, v[24:27], s[28:29]'}
    s_mov_b64 exec, -1
    s_barrier
    s_branch L_service
    """)
    a("L_loader:")
    TLB = """
    s_lshl_b32 s37, s34, 16
    s_load_dword s38, s[12:13], s36
    s_load_dword s38, s[16:17], s37
    s_load_dword s38, s[24:25], 0
    s_load_dword s38, s[26:27], 0
    s_load_dword s38, s[10:11], s36
    s_load_dword s38, s[20:21], 0
    s_load_dword s38, s[22:23], 0
    """ if opt.get('tlb') else ""
    a(f"""
    s_sub_u32 s56, s3, 4
    s_lshl_b32 s36, s56, 2
    v_add_u32 v3, s36, v2
    v_xor_b32 v4, v3, v1
    v_lshlrev_b32 v4, 4, v4
    v_lshl_add_u32 v4, v2, 8, v4
    v_and_b32 v5, 7, v3
    v_lshlrev_b32 v5, 1, v5
    v_xor_b32 v5, v5, v1
    v_lshlrev_b32 v5, 4, v5
    v_lshl_add_u32 v3, v3, 10, v5
    v_lshl_add_u32 v5, v2, 8, v5
    s_lshl_b32 s36, s6, 3
    s_add_u32 s36, s36, s4
    s_lshl_b32 s36, s36, 23
    s_lshl_b32 s59, s7, 16
    s_add_u32 s36, s36, s59
    s_add_u32 s36, s36, 0x700000
    s_mul_i32 s59, s2, {rotmul}
    s_add_u32 s59, s59, s56
    s_and_b32 s59, s59, 63
    s_lshl_b32 s59, s59, 10
    s_mov_b32 s42, 0x10000
    s_mov_b32 s46, 0x10000
    s_mov_b32 s47, 0x20000
    s_waitcnt lgkmcnt(0)
    {WQ}
    s_add_u32 s40, s10, s36
    s_addc_u32 s41, s11, 0
    s_lshl_b32 s60, s56, 10
    {TLB}
    s_barrier
    L_kloop0:
    s_mov_b32 m0, s60
    s_add_u32 s60, s60, 4096
    buffer_load_dwordx4 v4, s[40:43], s59 offen nt lds
    s_add_u32 s59, s59, 4096
    s_and_b32 s59, s59, 0xffff
    s_cmp_lt_u32 s60, {4096*kpre}
    s_cbranch_scc1 L_kloop0
    s_add_u32 s44, s12, s36
    s_addc_u32 s45, s13, 0
    s_mov_b32 s48, s16
    s_mov_b32 s49, s17
    s_lshl_b32 s57, s33, 8
    s_lshl_b32 s61, s34, 16
    s_add_u32 s61, s61, s57
    s_waitcnt vmcnt({kpre})
    s_barrier
    s_barrier
    L_kloop:
    s_waitcnt vmcnt({thr-1})
    s_mov_b32 m0, s60
    s_add_u32 s60, s60, 4096
    buffer_load_dwordx4 v4, s[40:43], s59 offen nt lds
    s_add_u32 s59, s59, 4096
    s_and_b32 s59, s59, 0xffff
    s_cmp_lt_u32 s60, 65536
    s_cbranch_scc1 L_kloop
    L_vloop:
    s_waitcnt vmcnt({thr-1})
    s_mov_b32 m0, s60
    s_add_u32 s60, s60, 4096
    buffer_load_dwordx4 v5, s[44:47], s59 offen nt lds
    s_add_u32 s59, s59, 4096
    s_and_b32 s59, s59, 0xffff
    s_cmp_lt_u32 s60, {65536 + 4096*min(vthr, vpre)}
    s_cbranch_scc1 L_vloop
    """)
    if vthr < vpre:
        a(f"""
    L_vloop1:
    s_waitcnt vmcnt({thr2-1})
    s_mov_b32 m0, s60
    s_add_u32 s60, s60, 4096
    buffer_load_dwordx4 v5, s[44:47], s59 offen nt lds
    s_add_u32 s59, s59, 4096
    s_and_b32 s59, s59, 0xffff
    s_cmp_lt_u32 s60, {65536 + 4096*vpre}
    s_cbranch_scc1 L_vloop1
    """)
    stamp("L pre issue", 0)
    a(f"s_waitcnt vmcnt({vpre}) lgkmcnt(0)")
    stamp("L K landed")
    a("s_barrier")
    stamp("B1", 5)
    tp = opt.get('tp', 14)
    nA = (tp - thr2) // 2
    nB = (20 - thr2) // 2
    def vloop(lbl, end):
        a(f"""
        {lbl}:
        s_waitcnt vmcnt({thr2-1})
        s_mov_b32 m0, s60
        s_add_u32 s60, s60, 4096
        buffer_load_dwordx4 v5, s[44:47], s59 offen nt lds
        s_add_u32 s59, s59, 4096
        s_and_b32 s59, s59, 0xffff
        s_cmp_lt_u32 s60, {65536 + 4096*end}
        s_cbranch_scc1 {lbl}
        """)
    vloop("L_vloop2", tp)
    a(f"s_waitcnt vmcnt({tp - 2*nA})")
    stamp("L at Bp", 2)
    a("s_barrier")
    stamp("Bp", 7)
    if tp < 16: vloop("L_vloop3", 16)
    a(f"""
    s_lshl_b32 s60, s56, 13
    s_add_u32 s60, s60, {LW}
    """)
    for t in range(4):
        a(f"""
        s_add_u32 m0, s60, {t*1024}
        s_waitcnt vmcnt({thr2-1})
        buffer_load_dwordx4 v3, s[48:51], s61 offen nt lds
        s_add_u32 s61, s61, 16384
        """)
    a(f"s_waitcnt vmcnt({20 - 2*nB})")
    stamp("L at Bq", 3)
    a("s_barrier")
    a("s_waitcnt vmcnt(4)")
    stamp("L V landed", 4)
    a("s_barrier")
    stamp("BB", 8)
    a("s_waitcnt vmcnt(0)")
    stamp("L wo landed", 9)
    a("s_barrier")
    a("s_branch L_fin" if stamps else "s_endpgm")

    a("L_service:")
    a(f"""
    s_lshl_b32 s67, s4, 5
    s_add_u32 s67, s67, s5
    s_lshl_b32 s59, s7, 7
    s_mov_b32 s62, 0xffff0000
    s_mov_b32 s64, 0x000f000f
    s_mov_b32 s65, 0x000f000f
    v_and_b32 v4, 3, v1
    v_lshrrev_b32 v5, 2, v1
    v_and_b32 v6, 1, v2
    s_lshl_b32 s57, s3, 2
    v_add_u32 v95, s57, v2
    v_and_b32 v7, 7, v95
    v_lshlrev_b32 v7, 1, v7
    v_xor_b32 v7, v7, v1
    v_lshlrev_b32 v7, 4, v7
    v_lshl_add_u32 v95, v95, 10, v7
    s_lshl_b32 s50, s63, 15
    s_lshl_b32 s57, s33, 8
    s_add_u32 s50, s50, s57
    s_mov_b32 s52, s24
    s_mov_b32 s53, s25
    s_mov_b32 s55, 0x20000
    v_lshrrev_b32 v96, 3, v1
    v_lshl_add_u32 v96, v6, 1, v96
    v_lshlrev_b32 v96, 5, v96
    v_lshl_add_u32 v96, v5, 7, v96
    v_lshl_add_u32 v96, v2, 10, v96
    v_lshl_add_u32 v96, v4, 3, v96
    s_sub_u32 s60, s61, 8192
    s_lshl_b32 s57, s3, 6
    s_movk_i32 s58, 0x2000
    s_cmp_lt_u32 s3, 2
    s_cselect_b32 s57, s57, 0
    s_cselect_b32 s56, {LW}, s60
    s_cselect_b32 s58, s58, 64
    v_xor_b32 v96, s57, v96
    v_add_u32 v96, s56, v96
    v_xor_b32 v97, 32, v96
    v_xor_b32 v92, s58, v96
    v_xor_b32 v93, 32, v92
    s_cselect_b32 s57, 13, 8
    v_and_b32 v98, 1, v1
    v_lshlrev_b32 v98, s57, v98
    v_lshrrev_b32 v7, 1, v1
    v_lshl_add_u32 v98, v7, 6, v98
    v_lshl_add_u32 v98, v2, 4, v98
    s_lshl_b32 s57, s32, 8
    s_lshl_b32 s58, s3, 7
    s_add_u32 s57, s57, s58
    s_add_u32 s57, s57, {QP}
    s_lshr_b32 s63, s32, 1
    s_lshl_b32 s63, s63, 13
    s_add_u32 s63, s63, {GP}
    s_and_b32 s56, s32, 1
    s_lshl_b32 s58, s56, 10
    s_add_u32 s58, s58, s63
    s_lshl_b32 s56, s56, 7
    s_add_u32 s63, s63, s56
    s_lshl_b32 s56, s3, 9
    s_add_u32 s58, s58, s56
    s_sub_u32 s58, s58, 1024
    s_cmp_lt_u32 s3, 2
    s_cselect_b32 s57, s57, s58
    s_lshl_b32 s58, s33, 11
    s_add_u32 s57, s57, s58
    v_add_u32 v98, s57, v98
    s_lshl_b32 s57, s6, 13
    s_lshl_b32 s58, s3, 10
    s_add_u32 s57, s57, s58
    s_add_u32 s57, s57, {QP+4096}
    v_lshlrev_b32 v99, 4, v0
    v_add_u32 v99, s57, v99
    s_add_u32 s60, s60, 6144
    v_lshlrev_b32 v100, 3, v0
    v_add_u32 v100, s60, v100
    s_lshl_b32 s58, s6, 11
    s_add_u32 s58, s58, s59
    s_add_u32 s58, s58, {ST}
    v_lshlrev_b32 v118, 2, v0
    v_add_u32 v118, s58, v118
    v_mov_b32 v121, 0xff
    s_getreg_b32 s68, hwreg(HW_REG_XCC_ID)
    s_and_b32 s68, s68, 7
    s_cmp_lt_u32 s3, 2
    s_cbranch_scc0 L_ln
    s_waitcnt vmcnt({2 if opt.get('noclear') else 4})
    L_ln:
    """)
    stamp("S x landed", 0)
    for i in range(8):
        a(f"v_lshlrev_b32 v{32+2*i}, 16, v{8+i}")
        a(f"v_and_b32 v{33+2*i}, s62, v{8+i}")
    for i in range(4):
        a(f"v_pk_add_f32 v[{48+2*i}:{49+2*i}], v[{32+4*i}:{33+4*i}], v[{34+4*i}:{35+4*i}]")
    a("v_pk_add_f32 v[48:49], v[48:49], v[50:51]")
    a("v_pk_add_f32 v[52:53], v[52:53], v[54:55]")
    a("v_pk_add_f32 v[48:49], v[48:49], v[52:53]")
    a("v_add_f32 v48, v48, v49")
    reduce5(48, 49)
    a("v_mul_f32 v48, 0xbb000000, v48")
    a("v_mov_b32 v49, v48")
    for i in range(8):
        a(f"v_pk_add_f32 v[{32+2*i}:{33+2*i}], v[{32+2*i}:{33+2*i}], v[48:49]")
    a("v_pk_mul_f32 v[50:51], v[32:33], v[32:33]")
    a("v_pk_mul_f32 v[52:53], v[34:35], v[34:35]")
    for i in range(2, 8):
        d = 50 + 2 * (i & 1)
        a(f"v_pk_fma_f32 v[{d}:{d+1}], v[{32+2*i}:{33+2*i}], v[{32+2*i}:{33+2*i}], v[{d}:{d+1}]")
    a("v_pk_add_f32 v[50:51], v[50:51], v[52:53]")
    a("v_add_f32 v50, v50, v51")
    a("""
    v_cvt_pk_bf16_f32 v48, v48, v48
    v_and_b32 v48, s62, v48
    v_mov_b32 v49, v48
    """)
    dpp("v_add_f32", 50, "quad_perm:[2,3,0,1]")
    fr = []
    for i in range(4):
        fr.append(f"v_lshlrev_b32 v{32+2*i}, 16, v{16+i}")
        fr.append(f"v_and_b32 v{33+2*i}, s62, v{16+i}")
    for i in range(4):
        fr.append(f"v_pk_add_f32 v[{32+2*i}:{33+2*i}], v[{32+2*i}:{33+2*i}], v[48:49]")
    for i in range(4):
        fr.append(f"v_cvt_pk_bf16_f32 v{16+i}, v{32+2*i}, v{33+2*i}")
    for i in range(4):
        fr.append(f"v_lshlrev_b32 v{32+2*i}, 16, v{16+i}")
        fr.append(f"v_and_b32 v{33+2*i}, s62, v{16+i}")
    ch = [f"v_add_f32_dpp v50, v50, v50 row_ror:4 {DPPM}", None, None,
          f"v_add_f32_dpp v50, v50, v50 row_ror:8 {DPPM}", "v_mov_b32 v51, v50", None, None,
          "v_permlane16_swap_b32 v50, v51", "v_add_f32 v50, v50, v51", "v_mov_b32 v51, v50", None, None,
          "v_permlane32_swap_b32 v50, v51", "v_add_f32 v50, v50, v51",
          "v_mul_f32 v50, 0x3b000000, v50", "v_cvt_pk_bf16_f32 v50, v50, v50", "v_and_b32 v50, s62, v50",
          "v_add_f32 v50, 0x3727c5ac, v50", "v_cvt_pk_bf16_f32 v50, v50, v50", "v_and_b32 v50, s62, v50",
          "v_sqrt_f32 v50, v50", None, "v_cvt_pk_bf16_f32 v50, v50, v50", "v_and_b32 v50, s62, v50",
          "v_rcp_f32 v50, v50", None]
    for c in ch:
        a(c if c else fr.pop(0))
    a("v_mov_b32 v51, v50")
    for x in fr: a(x)
    for i in range(4):
        a(f"v_pk_mul_f32 v[{32+2*i}:{33+2*i}], v[{32+2*i}:{33+2*i}], v[50:51]")
    for i in range(4):
        a(f"v_cvt_pk_bf16_f32 v{16+i}, v{32+2*i}, v{33+2*i}")
    for jj in range(1, 4):
        for i in range(4):
            a(f"v_mov_b32_dpp v{16+4*jj+i}, v{16+i} row_ror:{16-4*jj} {DPPM}")
    a(f"""
    s_waitcnt lgkmcnt(0)
    s_add_u32 s35, s35, {EINC}
    s_lshr_b32 s36, s35, 8
    s_lshr_b32 s37, s35, 16
    s_lshr_b32 s38, s35, 24
    s_and_b32 s38, s38, 0xf8
    s_or_b32 s38, s38, s68
    s_and_b32 s39, s35, 0x00ffffff
    s_lshl_b32 s57, s38, 24
    s_or_b32 s39, s39, s57
    v_cmp_lt_u32 vcc, 1, v1
    """)
    stamp("S LN done")
    a(f"""
    s_cmp_lt_u32 s3, 2
    s_waitcnt vmcnt(0)
    s_cbranch_scc0 L_w3
    s_barrier
    L_w3:
    """)
    stamp("S tile landed")
    TA = [96, 97, 92, 93]
    for aa in range(4):
        for ss in range(2):
            for e in range(2):
                d = 48 + 8 * aa + 4 * ss + 2 * e
                a(f"ds_read_b64_tr_b16 v[{d}:{d+1}], v{TA[aa]} offset:{ss*4096+e*512}")
    def p1mfma(aa):
        for ss in range(2):
            bi = 16 + 4 * (2 * (aa >> 1) + ss)
            a(f"v_mfma_f32_16x16x32_bf16 v[{32+4*aa}:{35+4*aa}], v[{48+8*aa+4*ss}:{51+8*aa+4*ss}], v[{bi}:{bi+3}], {'0' if ss==0 else f'v[{32+4*aa}:{35+4*aa}]'}")
    a("s_waitcnt lgkmcnt(8)")
    p1mfma(0); p1mfma(1)
    a("""
    s_waitcnt lgkmcnt(0)
    s_cbranch_scc0 L_w4
    s_barrier
    L_w4:
    """)
    p1mfma(2); p1mfma(3)
    for i in range(4):
        a(f"v_cndmask_b32 v{32+i}, v{32+i}, v{36+i}, vcc")
    for i in range(4):
        a(f"v_cndmask_b32 v{40+i}, v{40+i}, v{44+i}, vcc")
    a("s_mov_b64 exec, s[64:65]")
    a("s_cbranch_scc1 L_w5")
    for i in range(4):
        a(f"v_bfi_b32 v{40+i}, v121, s{35+i}, v{40+i}")
    a("""
    @PUB@global_store_dwordx4 v98, v[40:43], s[28:29] offset:128
    s_branch L_w6
    L_w5:
    v_pk_add_f32 v[32:33], v[32:33], v[40:41]
    v_pk_add_f32 v[34:35], v[34:35], v[42:43]
    L_w6:
    """)
    for i in range(4):
        a(f"v_bfi_b32 v{32+i}, v121, s{35+i}, v{32+i}")
    a(f"""
    @PUB@global_store_dwordx4 v98, v[32:35], s[28:29]
    s_mov_b64 exec, -1
    """)
    stamp("S published")
    a("""
    s_sub_u32 m0, s61, 4096
    s_add_u32 s51, s50, 16384
    buffer_load_dwordx4 v95, s[52:55], s50 offen nt lds
    s_sub_u32 m0, s61, 3072
    s_nop 0
    buffer_load_dwordx4 v95, s[52:55], s51 offen nt lds
    """)
    a(f"""
    v_xor_b32 v101, v2, v1
    v_lshlrev_b32 v101, 4, v101
    v_lshl_add_u32 v101, v1, 8, v101
    s_lshl_b32 s59, s3, 14
    v_add_u32 v101, s59, v101
    v_xor_b32 v102, 64, v101
    v_xor_b32 v103, 0x80, v101
    v_xor_b32 v104, 0xc0, v101
    v_and_b32 v105, 2, v1
    v_lshlrev_b32 v105, 12, v105
    v_and_b32 v7, 1, v1
    v_lshl_add_u32 v105, v7, 8, v105
    v_lshl_add_u32 v105, v2, 4, v105
    v_add_u32 v105, {R(0)}, v105
    v_lshrrev_b32 v106, 1, v5
    v_lshlrev_b32 v106, 8, v106
    v_lshl_add_u32 v106, v2, 6, v106
    v_lshl_add_u32 v106, v4, 4, v106
    v_and_b32 v8, 1, v5
    v_lshl_add_u32 v106, v8, 3, v106
    s_lshl_b32 s59, s3, 9
    s_add_u32 s59, s59, {PB}
    v_add_u32 v106, s59, v106
    v_lshlrev_b32 v122, 5, v4
    v_add_u32 v122, {MLB}, v122
    s_lshl_b32 s59, s3, 2
    v_add_u32 v107, s59, v122
    s_and_b32 s56, s3, 1
    v_lshlrev_b32 v108, 10, v5
    v_and_b32 v8, 2, v1
    v_lshl_add_u32 v108, v8, 8, v108
    v_lshl_add_u32 v108, v7, 6, v108
    v_lshl_add_u32 v108, v2, 4, v108
    s_lshl_b32 s59, s56, 8
    s_add_u32 s59, s59, s63
    s_add_u32 s59, s59, 2048
    v_add_u32 v108, s59, v108
    s_mov_b32 s57, s56
    s_lshl_b32 s58, s57, 15
    s_lshl_b32 s59, s32, 12
    s_add_u32 s58, s58, s59
    s_add_u32 s58, s58, {OP}
    v_lshlrev_b32 v123, 7, v1
    v_lshl_add_u32 v109, v2, 4, v123
    v_add_u32 v109, s58, v109
    s_lshl_b32 s58, s57, 11
    s_add_u32 s59, s58, {FL}
    v_add_u32 v123, s59, v123
    s_lshr_b32 s59, s32, 1
    s_lshl_b32 s59, s59, 2
    s_add_u32 s58, s58, s59
    s_add_u32 s58, s58, {ST}
    v_lshlrev_b32 v110, 9, v2
    v_add_u32 v110, s58, v110
    v_lshl_add_u32 v8, v6, 2, v5
    s_lshl_b32 s58, s3, 1
    s_and_b32 s58, s58, 4
    v_xor_b32 v8, s58, v8
    v_lshlrev_b32 v8, 5, v8
    v_lshl_add_u32 v111, v5, 8, v8
    v_lshl_add_u32 v111, v4, 3, v111
    v_lshl_add_u32 v111, v2, 13, v111
    v_add_u32 v111, {LW}, v111
    v_xor_b32 v112, 32, v111
    v_xor_b32 v113, 64, v111
    v_xor_b32 v114, 0x60, v111
    v_lshrrev_b32 v115, 1, v2
    v_lshl_add_u32 v115, v6, 1, v115
    v_lshlrev_b32 v117, 1, v115
    v_lshl_add_u32 v115, v115, 4, v1
    v_lshlrev_b32 v115, 2, v115
    s_lshl_b32 s58, s56, 20
    s_lshl_b32 s59, s33, 18
    s_add_u32 s58, s58, s59
    s_lshr_b32 s59, s3, 1
    s_lshl_b32 s59, s59, 14
    s_add_u32 s58, s58, s59
    s_lshl_b32 s59, s34, 8
    s_add_u32 s58, s58, s59
    s_add_u32 s58, s58, {FP+EX}
    v_add_u32 v115, s58, v115
    s_lshl_b32 s58, s67, 3
    v_add_u32 v120, s58, v117
    v_lshlrev_b32 v117, 3, v4
    v_lshrrev_b32 v117, v117, s35
    s_lshl_b32 s58, s6, 14
    s_lshl_b32 s59, s7, 4
    s_add_u32 s58, s58, s59
    s_add_u32 s58, s58, {FP}
    v_lshlrev_b32 v116, 8, v0
    v_add_u32 v116, s58, v116
    v_lshlrev_b32 v250, 4, v4
    v_lshl_add_u32 v250, v2, 6, v250
    v_add_u32 v250, {PB}, v250
    v_lshl_add_u32 v248, v2, 2, v5
    v_and_b32 v249, 7, v248
    s_lshl_b32 s58, s3, 1
    v_xor_b32 v249, s58, v249
    v_lshlrev_b32 v249, 5, v249
    v_lshl_add_u32 v248, v248, 8, v249
    v_lshl_add_u32 v248, v4, 3, v248
    v_add_u32 v248, 0x10000, v248
    v_xor_b32 v249, 32, v248
    s_lshl_b32 s58, s6, 15
    s_lshl_b32 s59, s3, 11
    s_add_u32 s58, s58, s59
    s_lshl_b32 s59, s7, 7
    s_add_u32 s58, s58, s59
    s_add_u32 s58, s58, {OP}
    v_lshlrev_b32 v251, 13, v4
    v_lshl_add_u32 v251, v2, 4, v251
    v_add_u32 v251, s58, v251
    s_mov_b32 s58, 0x0c0c0400
    s_mov_b32 s59, 0x04000c0c
    s_mov_b32 s61, 0xf8ffffff
    global_load_ushort v119, v120, s[8:9]
    s_cmp_ge_u32 s3, {0 if opt.get('nogather') else 2}
    s_cbranch_scc1 L_qskip
    {'global_load_dword v144, v144, s[28:29] ' + OTF if OT == 1 else ''}
    {'global_load_dword v145, v145, s[28:29] ' + OTF if OT == 1 else ''}
    {'s_sleep ' + str(opt['qdelay']) if opt.get('qdelay') else ''}
    s_mov_b32 s57, 0
    """)
    for c in range(4):
        a(f"global_load_dwordx4 v[{32+4*c}:{35+4*c}], v99, s[28:29] offset:{c*2048-4096} @L1@")
    a("s_branch L_qchk")
    a("L_qpoll:")
    for c in range(4):
        a(f"global_load_dwordx4 v[{32+4*c}:{35+4*c}], v99, s[28:29] offset:{c*2048-4096} @LF@")
    a("L_qchk:")
    a("s_waitcnt vmcnt(0)")
    for c in range(4):
        a(f"v_perm_b32 v{48+2*c}, v{33+4*c}, v{32+4*c}, s58")
        a(f"v_perm_b32 v{49+2*c}, v{35+4*c}, v{34+4*c}, s59")
        a(f"v_or_b32 v{48+2*c}, v{48+2*c}, v{49+2*c}")
        a(f"v_xor_b32 v{48+2*c}, s39, v{48+2*c}")
    a(f"""
    v_or3_b32 v48, v48, v50, v52
    v_or_b32 v56, v48, v54
    v_and_b32 v48, s61, v56
    v_cmp_ne_u32 vcc, 0, v48
    s_add_u32 s57, s57, 1
    s_mov_b64 exec, vcc
    s_cbranch_execz L_qdone
    s_cmp_lt_u32 s57, {NFAST}
    s_cbranch_scc1 L_qpoll
    buffer_wbl2 sc1
    buffer_inv sc1
    s_waitcnt vmcnt(0)
    s_cmp_lt_u32 s57, {SPIN}
    s_cbranch_scc1 L_qpoll
    L_qdone:
    s_mov_b64 exec, -1
    v_cmp_ne_u32 vcc, 0, v56
    s_movk_i32 s56, 0xff00
    """)
    for i in range(16):
        a(f"v_and_b32 v{32+i}, s56, v{32+i}")
    a(f"""
    s_or_b32 s56, vcc_lo, vcc_hi
    v_pk_add_f32 v[32:33], v[32:33], v[36:37]
    v_pk_add_f32 v[34:35], v[34:35], v[38:39]
    v_pk_add_f32 v[40:41], v[40:41], v[44:45]
    v_pk_add_f32 v[42:43], v[42:43], v[46:47]
    v_pk_add_f32 v[32:33], v[32:33], v[40:41]
    v_pk_add_f32 v[34:35], v[34:35], v[42:43]
    v_cvt_pk_bf16_f32 v32, v32, v33
    v_cvt_pk_bf16_f32 v33, v34, v35
    v_mov_b32 v34, s56
    v_mov_b32 v35, s60
    ds_write_b64 v100, v[32:33]
    ds_write_b32 v35, v34 offset:{MODEB}
    """)
    if stamps: a("s_mov_b32 s69, s57")
    stamp("S gathered")
    a(f"""
    L_qskip:
    v_mov_b32 v10, {R(0)+MODEB}
    s_waitcnt vmcnt(0) lgkmcnt(0)
    s_barrier
    """)
    stamp("B1", 5)
    a("""
    ds_read_b32 v8, v10
    ds_read_b32 v9, v10 offset:8192
    """)
    for j in range(4):
        a(f"ds_read_b128 v[{16+4*j}:{19+4*j}], v105 offset:{64*j}")
    def kread(blk):
        for j in range(4):
            d = 32 + 16 * blk + 4 * j
            a(f"ds_read_b128 v[{d}:{d+3}], v{101+j} offset:{4096*blk}")
    kread(0); kread(1)
    a("global_load_dwordx4 v[124:127], v108, s[28:29] offset:-2048 @L1@")
    a("global_load_dwordx4 v[12:15], v108, s[28:29] offset:2048 @L1@")
    if OT == 2:
        a(f"""
        s_cmp_ge_u32 s3, 2
        s_cbranch_scc1 L_not
        global_load_dword v144, v144, s[28:29] {OTF}
        global_load_dword v145, v145, s[28:29] {OTF}
        L_not:
        """)
    for blk in range(4):
        a(f"s_waitcnt lgkmcnt({4 if blk < 3 else 0})")
        for j in range(4):
            d = 32 + 16 * blk + 4 * j
            ac = 128 + 4 * blk
            a(f"v_mfma_f32_16x16x32_bf16 v[{ac}:{ac+3}], v[{d}:{d+3}], v[{16+4*j}:{19+4*j}], {'0' if j==0 else f'v[{ac}:{ac+3}]'}")
        if blk + 2 < 4: kread(blk + 2)
        if blk == 0:
            a("v_or_b32 v8, v8, v9")
            a("v_cmp_eq_u32 s[44:45], 1, v5")
            a("v_cmp_eq_u32 s[46:47], 2, v5")
            a("v_cmp_eq_u32 s[48:49], 3, v5")
            a("v_readfirstlane_b32 s60, v8")
            if opt.get('nogather'): a("s_mov_b32 s60, 0")
    a(f"s_mov_b32 s56, {SCALE}")
    a(f"s_mov_b32 s57, {LOG2E}")
    for blk in range(1, 4):
        for i in range(4):
            a(f"v_cndmask_b32 v{128+i}, v{128+i}, v{128+4*blk+i}, s[{42+2*blk}:{43+2*blk}]")
    a("""
    v_cvt_pk_bf16_f32 v40, v128, v129
    v_cvt_pk_bf16_f32 v41, v130, v131
    v_lshlrev_b32 v32, 16, v40
    v_and_b32 v33, s62, v40
    v_lshlrev_b32 v34, 16, v41
    v_and_b32 v35, s62, v41
    """)
    for i in range(4): a(f"v_mul_f32 v{32+i}, s56, v{32+i}")
    a("""
    v_cvt_pk_bf16_f32 v40, v32, v33
    v_cvt_pk_bf16_f32 v41, v34, v35
    v_lshlrev_b32 v32, 16, v40
    v_and_b32 v33, s62, v40
    v_lshlrev_b32 v34, 16, v41
    v_and_b32 v35, s62, v41
    v_max3_f32 v40, v32, v33, v34
    v_max_f32 v40, v40, v35
    """)
    reduce4(40, 41, "v_max_f32")
    for i in range(4): a(f"v_sub_f32 v{32+i}, v{32+i}, v40")
    for i in range(4): a(f"v_mul_f32 v{32+i}, s57, v{32+i}")
    for i in range(4): a(f"v_exp_f32 v{32+i}, v{32+i}")
    a("""
    v_mul_f32 v40, s57, v40
    v_cvt_pk_bf16_f32 v44, v32, v33
    v_cvt_pk_bf16_f32 v45, v34, v35
    ds_write_b64 v106, v[44:45]
    ds_write_b32 v107, v40
    v_add_f32 v32, v32, v33
    v_add_f32 v34, v34, v35
    v_add_f32 v32, v32, v34
    """)
    reduce4(32, 33)
    a("""
    ds_write_b32 v107, v32 offset:16
    s_cmp_eq_u32 s60, 0
    s_cbranch_scc1 L_nowb
    buffer_wbl2 sc1
    L_nowb:
    """)
    stamp("S softmax done", 6)
    a("""
    s_waitcnt lgkmcnt(0)
    s_barrier
    """)
    stamp("Bp", 7)
    PF = 148; VF = 180; AC = 212; AL = 244
    def rd(u):
        for q in range(2):
            for e in range(2):
                d = VF + 8 * (u % 4) + 4 * q + 2 * e
                a(f"ds_read_b64_tr_b16 v[{d}:{d+1}], v{248+q} offset:{8192*u+4096*e}")
    def pvm(u):
        for q in range(2):
            d = VF + 8 * (u % 4) + 4 * q
            ac = AC + 8 * (u >> 1) + 4 * q
            a(f"v_mfma_f32_16x16x32_bf16 v[{ac}:{ac+3}], v[{d}:{d+3}], v[{PF+4*u}:{PF+3+4*u}], {'0' if u % 2 == 0 else f'v[{ac}:{ac+3}]'}")
    a("""
    ds_read_b128 v[40:43], v122
    ds_read_b128 v[44:47], v122 offset:16
    """)
    for u in range(8):
        a(f"ds_read_b128 v[{PF+4*u}:{PF+3+4*u}], v250 offset:{256*u}")
    a("""
    s_waitcnt lgkmcnt(8)
    v_max3_f32 v48, v40, v41, v42
    v_max_f32 v48, v48, v43
    """)
    for i in range(4): a(f"v_sub_f32 v{40+i}, v{40+i}, v48")
    for i in range(4): a(f"v_exp_f32 v{40+i}, v{40+i}")
    a("""
    v_mul_f32 v49, v40, v44
    v_fmac_f32 v49, v41, v45
    v_fmac_f32 v49, v42, v46
    v_fmac_f32 v49, v43, v47
    v_log_f32 v50, v49
    v_rcp_f32 v49, v49
    s_cmp_lg_u32 s3, 3
    s_cbranch_scc1 L_nostat
    v_add_f32 v52, v50, v48
    s_mov_b32 exec_hi, 0
    global_store_dword v118, v52, s[28:29]
    s_mov_b64 exec, -1
    L_nostat:
    s_waitcnt lgkmcnt(0)
    """)
    assert nA <= 4 and nB - nA <= 4
    for u in range(nA): rd(u)
    for i in range(4): a(f"v_mul_f32 v{AL+i}, v{40+i}, v49")
    for u in range(nA):
        a(f"s_waitcnt lgkmcnt({min(15, 4*(nA-1-u))})")
        pvm(u)
    for q in range(4):
        for e in range(2):
            d = 80 + 4 * q + 2 * e
            a(f"ds_read_b64_tr_b16 v[{d}:{d+1}], v{111+q} offset:{(4+e)*1024}")
    a("""
    s_cbranch_scc1 L_nostat1
    s_waitcnt vmcnt(1)
    s_branch L_nostat2
    L_nostat1:
    s_waitcnt vmcnt(0)
    L_nostat2:
    """)
    a(f"""
    s_mov_b32 s57, 0
    s_branch L_gcheck
    L_gpoll:
    s_cmp_eq_u32 s60, 0
    s_cbranch_scc1 L_gload
    buffer_inv sc1
    s_waitcnt vmcnt(0)
    L_gload:
    global_load_dwordx4 v[124:127], v108, s[28:29] offset:-2048 @LF@
    global_load_dwordx4 v[12:15], v108, s[28:29] offset:2048 @LF@
    s_waitcnt vmcnt(0)
    L_gcheck:
    v_perm_b32 v48, v125, v124, s58
    v_perm_b32 v49, v127, v126, s59
    v_perm_b32 v50, v13, v12, s58
    v_perm_b32 v51, v15, v14, s59
    v_or_b32 v48, v48, v49
    v_or_b32 v50, v50, v51
    v_xor_b32 v48, s39, v48
    v_xor_b32 v50, s39, v50
    v_or_b32 v48, v48, v50
    v_and_b32 v48, s61, v48
    v_cmp_ne_u32 vcc, 0, v48
    s_add_u32 s57, s57, 1
    s_mov_b64 exec, vcc
    s_cbranch_execz L_gdone
    s_cmp_lt_u32 s57, {SPIN}
    s_cbranch_scc1 L_gpoll
    L_gdone:
    s_mov_b64 exec, -1
    s_movk_i32 s56, 0xff00
    """)
    for i in range(4): a(f"v_and_b32 v{124+i}, s56, v{124+i}")
    for i in range(4): a(f"v_and_b32 v{12+i}, s56, v{12+i}")
    a("v_pk_add_f32 v[124:125], v[124:125], v[12:13]")
    a("v_pk_add_f32 v[126:127], v[126:127], v[14:15]")
    for m in ("row_ror:4", "row_ror:8"):
        for i in range(4): dpp("v_add_f32", 124 + i, m)
    a("""
    v_cvt_pk_bf16_f32 v48, v124, v125
    v_cvt_pk_bf16_f32 v49, v126, v127
    v_lshlrev_b32 v124, 16, v48
    v_and_b32 v125, s62, v48
    v_lshlrev_b32 v126, 16, v49
    v_and_b32 v127, s62, v49
    """)
    for i in range(4): a(f"v_max_f32 v{48+i}, 0, v{124+i}")
    for i in range(4): a(f"v_mul_f32_dpp v{48+i}, v{124+i}, v{48+i} quad_perm:[2,3,0,1] {DPPM}")
    a("""
    v_cmp_eq_u32 s[44:45], 0, v1
    v_cmp_eq_u32 s[46:47], 1, v1
    v_cvt_pk_bf16_f32 v48, v48, v49
    v_cvt_pk_bf16_f32 v49, v50, v51
    v_cndmask_b32 v28, 0, v48, s[44:45]
    v_cndmask_b32 v29, 0, v49, s[44:45]
    v_cndmask_b32 v30, 0, v48, s[46:47]
    v_cndmask_b32 v31, 0, v49, s[46:47]
    s_waitcnt lgkmcnt(0)
    """)
    for q in range(4):
        a(f"v_mfma_f32_16x16x32_bf16 v[{32+4*q}:{35+4*q}], v[28:31], v[{80+4*q}:{83+4*q}], 0")
    SG = """
    global_load_dword v24, v110, s[28:29] @TF@
    global_load_dword v25, v110, s[28:29] offset:128 @TF@
    global_load_dword v26, v110, s[28:29] offset:256 @TF@
    global_load_dword v27, v110, s[28:29] offset:384 @TF@
    """
    OG = """
    global_load_dwordx4 v[16:19], v109, s[28:29] @TF@
    global_load_dwordx4 v[20:23], v109, s[28:29] offset:2048 @TF@
    """
    def weights():
        a("""
        v_max3_f32 v124, v24, v25, v26
        v_max_f32 v124, v124, v27
        """)
        reduce_g(124, 125, "v_max_f32")
        for i in range(4): a(f"v_sub_f32 v{8+i}, v{24+i}, v124")
        for i in range(4): a(f"v_exp_f32 v{8+i}, v{8+i}")
        a("""
        v_add_f32 v124, v8, v9
        v_add_f32 v125, v10, v11
        v_add_f32 v124, v124, v125
        """)
        reduce_g(124, 125)
        a("v_rcp_f32 v124, v124")
        for i in range(4): a(f"v_mul_f32 v{8+i}, v{8+i}, v124")
    for q in range(4):
        a(f"v_add_f32 v{32+4*q}, v{32+4*q}, v{33+4*q}")
    a("v_mov_b32 v33, s35")
    a("s_barrier")
    for u in range(nA, nB): rd(u)
    for u in range(nA, nB):
        a(f"s_waitcnt lgkmcnt({4*(nB-1-u)})")
        pvm(u)
    nW = nB // 2
    for i in range(8): a(f"v_mul_f32 v{AC+i}, v{AC+i}, v{AL}")
    for w_ in range(1, nW):
        for i in range(8): a(f"v_fmac_f32 v{AC+i}, v{AC+8*w_+i}, v{AL+w_}")
    a("s_barrier")
    stamp("BB", 8)
    for u in range(nB, 8): rd(u)
    a(SG)
    for u in range(nB, 8):
        a(f"s_waitcnt lgkmcnt({4*(7-u)})")
        pvm(u)
    for w_ in range(nW, 4):
        for i in range(8): a(f"v_fmac_f32 v{AC+i}, v{AC+8*w_+i}, v{AL+w_}")
    for i in range(4):
        a(f"v_cvt_pk_bf16_f32 v{AC+i}, v{AC+2*i}, v{AC+1+2*i}")
    a(f"""
    s_mov_b64 exec, s[64:65]
    global_store_dwordx4 v251, v[{AC}:{AC+3}], s[28:29]
    s_mov_b64 exec, -1
    s_cmp_eq_u32 s60, 0
    s_cbranch_scc1 L_sbc
    s_waitcnt vmcnt(0)
    L_sbc:
    s_barrier
    """)
    stamp("BC", 10)
    for ks in range(2):
        for q in range(4):
            for e in range(2):
                d = 48 + 16 * ks + 4 * q + 2 * e
                a(f"ds_read_b64_tr_b16 v[{d}:{d+1}], v{111+q} offset:{(2*ks+e)*1024}")
    a(f"""
    s_mov_b32 s57, 0
    s_cbranch_scc1 L_fast2
    s_cmp_lg_u32 s3, 0
    s_cbranch_scc1 L_slow2
    buffer_wbl2 sc1
    s_waitcnt vmcnt(0)
    v_add_u32 v34, {FL-ST}, v118
    s_mov_b64 exec, 1
    global_store_dword v34, v33, s[28:29] sc1
    s_mov_b64 exec, -1
    L_slow2:
    global_load_dword v34, v123, s[28:29] sc1
    s_waitcnt vmcnt(0)
    v_cmp_ne_u32 vcc, s35, v34
    s_add_u32 s57, s57, 1
    s_cbranch_vccz L_slow3
    s_cmp_lt_u32 s57, {SPIN}
    s_cbranch_scc1 L_slow2
    L_slow3:
    buffer_inv sc1
    s_waitcnt vmcnt(0)
    {SG}
    s_waitcnt vmcnt(0)
    L_fast2:
    """)
    stamp("og issue", 9); nst[0] = 11
    a(f"""
    {OG}
    s_waitcnt vmcnt(3)
    s_branch L_schk
    L_spoll:
    {SG}
    s_waitcnt vmcnt(0)
    L_schk:
    v_max3_u32 v124, v24, v25, v26
    v_max_u32 v124, v124, v27
    v_cmp_eq_u32 vcc, -1, v124
    s_add_u32 s57, s57, 1
    s_mov_b64 exec, vcc
    s_cbranch_execz L_sdone
    s_cmp_lt_u32 s57, {SPIN}
    s_cbranch_scc1 L_spoll
    L_sdone:
    s_mov_b64 exec, -1
    """)
    weights()
    if stamps: a("s_mov_b32 s69, s57")
    a(f"""
    s_mov_b32 s57, 0
    s_branch L_ochk
    L_opoll:
    {OG}
    L_ochk:
    s_waitcnt vmcnt(0)
    v_max3_u32 v124, v16, v17, v18
    v_max3_u32 v125, v19, v20, v21
    v_max3_u32 v124, v124, v22, v23
    v_max_u32 v124, v124, v125
    v_cmp_eq_u32 vcc, -1, v124
    s_add_u32 s57, s57, 1
    s_mov_b64 exec, vcc
    s_cbranch_execz L_odone
    s_cmp_lt_u32 s57, {SPIN}
    s_cbranch_scc1 L_opoll
    L_odone:
    s_mov_b64 exec, -1
    s_waitcnt lgkmcnt(0)
    """)
    if stamps: a("s_mov_b32 s68, s57")
    stamp("o gathered")
    for q in range(4):
        for ks in range(2):
            a(f"v_mfma_f32_16x16x32_bf16 v[{128+4*q}:{131+4*q}], v[{16+4*ks}:{19+4*ks}], v[{48+16*ks+4*q}:{51+16*ks+4*q}], {'0' if ks==0 else f'v[{128+4*q}:{131+4*q}]'}")
    for q in range(4):
        for i in range(4):
            a(f"v_fmac_f32 v{32+4*q}, v{8+i}, v{128+4*q+i}")
        if q == 2:
            a("v_permlane32_swap_b32 v32, v36")
            a("v_add_f32 v32, v32, v36")
    a("""
    v_permlane32_swap_b32 v40, v44
    v_add_f32 v40, v40, v44
    v_permlane16_swap_b32 v32, v40
    v_add_f32 v36, v32, v40
    v_bfi_b32 v36, v121, v117, v36
    s_mov_b32 s44, 0x11111111
    s_mov_b32 s45, 0x11111111
    """)
    for i in range(1, 4):
        a(f"v_mov_b32_dpp v{36+i}, v36 quad_perm:[{i},{i},{i},{i}] {DPPM}")
    a(f"""
    s_mov_b64 exec, s[44:45]
    global_store_dwordx4 v115, v[36:39], s[30:31] {opt.get('ffs', 'sc1')}
    s_mov_b64 exec, -1
    """)
    stamp("final published")
    if not opt.get('nofb'): a("s_barrier")
    a(f"""
    s_cmp_lg_u32 s3, 0
    s_cbranch_scc1 {'L_fin1' if stamps else 'L_end'}
    s_mov_b32 s57, 0
    v_lshlrev_b32 v28, 16, v119
    s_movk_i32 s56, 0xff00
    {'s_memrealtime s[74:75]' if stamps else ''}
    L_fpoll:
    global_load_dwordx4 v[16:19], v116, s[28:29] {opt.get('ffl', 'sc1')}
    s_waitcnt vmcnt(0)
    {'s_cmp_lg_u32 s57, 0' if stamps else ''}
    {'s_cbranch_scc1 L_fp1' if stamps else ''}
    {'s_memrealtime s[76:77]' if stamps else ''}
    {'L_fp1:' if stamps else ''}
    v_perm_b32 v24, v17, v16, s58
    v_perm_b32 v25, v19, v18, s59
    v_or_b32 v24, v24, v25
    v_cmp_ne_u32 vcc, s35, v24
    s_add_u32 s57, s57, 1
    s_mov_b64 exec, vcc
    s_cbranch_execz L_fdone
    s_cmp_lt_u32 s57, {SPIN}
    s_cbranch_scc1 L_fpoll
    L_fdone:
    s_mov_b64 exec, -1
    """)
    if stamps: a("s_mov_b32 s67, s57")
    for i in range(4): a(f"v_and_b32 v{16+i}, s56, v{16+i}")
    a("""
    v_permlane32_swap_b32 v16, v17
    v_permlane32_swap_b32 v18, v19
    v_add_f32 v16, v16, v17
    v_add_f32 v18, v18, v19
    s_mov_b32 s44, 0x00010001
    s_mov_b32 s45, 0x00010001
    v_permlane16_swap_b32 v16, v18
    v_add_f32 v16, v16, v18
    """)
    for m in ("quad_perm:[1,0,3,2]", "quad_perm:[2,3,0,1]", "row_ror:4", "row_ror:8"):
        dpp("v_add_f32", 16, m)
    a("""
    v_add_f32 v16, v16, v28
    v_cvt_pk_bf16_f32 v16, v16, v16
    s_mov_b64 exec, s[44:45]
    global_store_short v120, v16, s[26:27]
    s_cmp_lg_u32 s2, 0
    """)
    a(f"s_cbranch_scc1 {'L_fin0' if stamps else 'L_end'}")
    a("""
    s_mov_b64 exec, 1
    v_mov_b32 v19, 0
    global_store_dword v19, v33, s[30:31]
    """)
    if stamps:
        a("s_branch L_fin0")
        a("L_fin1:")
        a("s_waitcnt vmcnt(0)")
        a("L_fin0:")
        a("s_mov_b64 exec, -1")
        stamp("out stored")
        a("L_fin:")
        a("s_getreg_b32 s66, hwreg(HW_REG_XCC_ID)")
        a("v_mov_b32 v32, s70")
        for i in range(14):
            a(f"v_mov_b32 v{33+i}, s{72+2*i}")
        a("v_mov_b32 v47, s66")
        a("v_mov_b32 v48, s69")
        a("v_mov_b32 v49, s68")
        a("v_mov_b32 v50, s67")
        a("v_mov_b32 v51, 0")
        a(f"""
        s_lshl_b32 s58, s2, 10
        s_lshl_b32 s59, s3, 7
        s_add_u32 s58, s58, s59
        s_add_u32 s58, s58, {STAMP}
        v_mov_b32 v3, s58
        s_mov_b64 exec, 1
        """)
        for j in range(5):
            a(f"global_store_dwordx4 v3, v[{32+4*j}:{35+4*j}], s[30:31] offset:{16*j}")
    a("L_end:")
    if opt.get('padto'):
        a(f"""
        L_pad:
        s_memrealtime s[72:73]
        s_waitcnt lgkmcnt(0)
        s_sub_u32 s72, s72, s70
        s_cmp_lt_u32 s72, {opt['padto']}
        s_cbranch_scc1 L_pad
        """)
    a("s_endpgm")
    a.raw('.section .rodata,"a"')
    a.raw(".p2align 6")
    a.raw(f".amdhsa_kernel {NAME}_kernel")
    a.raw("  .amdhsa_next_free_vgpr 256")
    a.raw("  .amdhsa_next_free_sgpr 102")
    a.raw("  .amdhsa_accum_offset 256")
    a.raw("  .amdhsa_group_segment_fixed_size 0")
    a.raw("  .amdhsa_kernarg_size 96")
    a.raw("  .amdhsa_user_sgpr_count 2")
    a.raw("  .amdhsa_user_sgpr_kernarg_segment_ptr 1")
    a.raw("  .amdhsa_system_sgpr_workgroup_id_x 1")
    a.raw("  .amdhsa_float_denorm_mode_32 3")
    a.raw(".end_amdhsa_kernel")
    return a.text().replace('@LF@', LF).replace('@L1@', L1F).replace('@TF@', opt.get('tf', 'sc1'))

def parse_opt(s):
    opt = {}
    for kv in s.split(","):
        if kv:
            k, _, v = kv.partition("=")
            opt[k] = (int(v) if v.lstrip('-').isdigit() else v.replace('+', ' ')) if v else 1
    return opt

if __name__ == "__main__":
    ap = argparse.ArgumentParser()
    ap.add_argument("-o", default="k.s")
    ap.add_argument("--stamps", action="store_true")
    ap.add_argument("--opt", default="")
    args = ap.parse_args()
    open(args.o, "w").write(gen(args.stamps, parse_opt(args.opt)))
```

```python
import sys, argparse
from asmgen import Asm
NAME = "parallel_sum__sliding_block_cached__glu_gated_reglu__decode"

EX = 0x40000
QP = 0x0; ST = 0x4000; FL = 0x5000; GP = 0x8000; OP = 0x10000; FP = 0x20000
STAMP = 0x1000000
LW = 131072
def R(j): return LW + 8192 * j + 6144
MLB = R(2); PB = R(3); MODEB = 512
SPIN0 = 40000
LOG2E = 0x3fb8aa3b
SCALE = 0x3db504f3
DPPM = "row_mask:0xf bank_mask:0xf"
EINC = 0x08010101

HEADER = open("cdna_kernels/%s.s.ref" % NAME).read().split("; Override launch")[0]

def gen(stamps=False, opt=None):
    opt = opt or {}
    a0 = Asm()
    class W:
        raw = a0.raw; comment = a0.comment; text = a0.text
        def __call__(self, t): a0(t.replace('@PUB@', '; ' if opt.get('nopub') else ''))
    a = W()
    SPIN = opt.get('spin', SPIN0)
    rotmul = opt.get('rotmul', 37)
    kpre = opt.get('kpre', 4)
    vpre = opt.get('vpre', 8)
    NFAST = opt.get('nfast', 12)
    thr = opt.get('thr', 6)
    LF = opt.get('lf', 'sc1 nt')
    L1F = opt.get('l1f', 'sc1 nt').replace('none', '')
    thr2 = opt.get('thr2', 8); OT = opt.get('otouch', 1); OTF = opt.get('otf', 'sc1 nt'); vthr = opt.get('vthr', 4)
    TOUCH = opt.get('touch', 0)
    nst = [0]
    def stamp(name, i=None):
        if opt.get('probe') == name.replace(' ', '_'):
            a("s_memrealtime s[74:75]")
            a("s_waitcnt lgkmcnt(0)")
        if not stamps: return
        if i is not None: nst[0] = i
        i = nst[0]; nst[0] += 1
        assert i < 14
        a(f"s_memrealtime s[{72+2*i}:{73+2*i}]")
        a("s_waitcnt lgkmcnt(0)")
    def dpp(op, v, m): a(f"{op}_dpp v{v}, v{v}, v{v} {m} {DPPM}")
    def reduce_g(v, t, op="v_add_f32"):
        a(f"v_mov_b32 v{t}, v{v}")
        a(f"v_permlane16_swap_b32 v{v}, v{t}")
        a(f"{op} v{v}, v{v}, v{t}")
        a(f"v_mov_b32 v{t}, v{v}")
        a(f"v_permlane32_swap_b32 v{v}, v{t}")
        a(f"{op} v{v}, v{v}, v{t}")
    def reduce5(v, t, op="v_add_f32"):
        dpp(op, v, "quad_perm:[2,3,0,1]"); dpp(op, v, "row_ror:4"); dpp(op, v, "row_ror:8")
        reduce_g(v, t, op)
    def reduce4(v, t, op="v_add_f32"):
        dpp(op, v, "row_ror:4"); dpp(op, v, "row_ror:8")
        reduce_g(v, t, op)

    a.raw(HEADER.rstrip())
    a.raw("; @launch grid=(256,1,1) block=(512,1,1) lds=163840")
    a.raw('.amdgcn_target "amdgcn-amd-amdhsa--gfx950"')
    a.raw(".text")
    a.raw(f".globl {NAME}_kernel")
    a.raw(".p2align 12")
    a.raw(".p2align 8")
    a.raw(f".type {NAME}_kernel,@function")
    a.raw(f"{NAME}_kernel:")
    if stamps or opt.get('padto'): a("s_memrealtime s[70:71]")
    if opt.get('probe'): a("s_mov_b32 s74, 0")
    a(f"""
    s_cmp_ge_u32 s2, 256
    s_cbranch_scc1 L_end
    s_load_dwordx16 s[8:23], s[0:1], 0
    s_load_dwordx8 s[24:31], s[0:1], 64
    v_lshrrev_b32 v3, 6, v0
    v_and_b32 v0, 63, v0
    v_readfirstlane_b32 s3, v3
    s_getpc_b64 s[56:57]
    s_lshr_b32 s5, s2, 3
    """)
    if not opt.get('nopf'):
        a(f"""
        s_and_b32 s58, s5, 15
        s_lshl_b32 s58, s58, 3
        s_add_u32 s58, s58, s3
        s_lshl_b32 s58, s58, 6
        s_min_u32 s58, s58, L_end-{NAME}_kernel-64
        s_load_dword s39, s[56:57], s58
        """)
    a(f"""
    v_and_b32 v1, 15, v0
    v_lshrrev_b32 v2, 4, v0
    s_and_b32 s4, s2, 7
    s_lshr_b32 s6, s5, 4
    s_and_b32 s7, s5, 15
    s_lshr_b32 s32, s5, 2
    s_and_b32 s33, s5, 3
    s_lshl_b32 s34, s4, 3
    s_add_u32 s34, s34, s32
    s_mov_b32 s43, 0x20000
    s_mul_i32 s63, s4, 7
    s_add_u32 s63, s63, 1
    s_and_b32 s63, s63, 0xfe
    s_add_u32 s63, s63, s32
    s_lshr_b32 s59, s32, 1
    s_and_b32 s60, s4, 1
    s_add_u32 s59, s59, s60
    s_cmp_lt_u32 s59, 4
    s_cselect_b32 s54, 0x1c0000, 0
    s_lshl_b32 s66, s4, 18
    s_add_u32 s66, s66, {EX}
    v_lshrrev_b32 v6, 3, v0
    v_and_b32 v7, 1, v2
    v_lshlrev_b32 v7, 1, v7
    v_and_b32 v8, 7, v0
    v_xor_b32 v7, v7, v8
    v_lshlrev_b32 v7, 4, v7
    v_lshl_add_u32 v28, v6, 13, v7
    v_xor_b32 v29, 64, v28
    s_lshl_b32 s57, s33, 20
    s_lshl_b32 s58, s3, 17
    s_add_u32 s57, s57, s58
    s_lshl_b32 s58, s34, 7
    s_add_u32 s57, s57, s58
    s_add_u32 s58, s57, 0x10000
    s_lshl_b32 s60, s3, 11
    s_add_u32 s60, s60, {LW}
    s_mov_b32 s50, 0x400000
    s_mov_b32 s51, 0x20000
    s_cmp_ge_u32 s3, 4
    s_cbranch_scc1 L_loader
    """)
    WQ = """
    s_add_u32 s28, s30, s66
    s_addc_u32 s29, s31, 0
    s_mov_b32 s48, s14
    s_mov_b32 s49, s15
    s_mov_b32 m0, s60
    s_add_u32 s60, s60, 1024
    buffer_load_dwordx4 v28, s[48:51], s57 offen nt lds
    s_mov_b32 m0, s60
    s_nop 0
    buffer_load_dwordx4 v29, s[48:51], s58 offen nt lds
    """
    a(f"""
    v_and_b32 v3, 1, v0
    v_lshlrev_b32 v3, 10, v3
    v_lshrrev_b32 v4, 1, v0
    v_lshl_add_u32 v4, v4, 5, v3
    s_and_b32 s59, s32, 1
    s_lshl_b32 s62, s59, 7
    s_cmp_lt_u32 s3, 2
    s_cselect_b32 s61, 3, 1
    s_cselect_b32 s62, 0, s62
    v_lshrrev_b32 v5, 2, v1
    v_and_b32 v5, s61, v5
    v_lshl_add_u32 v5, v5, 6, v3
    v_lshl_add_u32 v5, v2, 4, v5
    s_lshl_b32 s61, s33, 8
    s_add_u32 s61, s61, s62
    v_add_u32 v5, s61, v5
    v_mul_u32_u24 v30, 3584, v6
    v_add_u32 v31, v30, v7
    v_xor_b32 v7, 64, v7
    v_add_u32 v30, v30, v7
    s_lshl_b32 s56, s33, 1
    s_add_u32 s56, s56, s59
    s_mul_i32 s56, s56, {64*3584}
    s_lshr_b32 s59, s63, 1
    s_lshl_b32 s59, s59, 7
    s_add_u32 s56, s56, s59
    s_mov_b32 s42, s54
    s_lshl_b32 s59, s7, 7
    s_lshl_b32 s62, s6, 15
    s_add_u32 s62, s62, s59
    s_lshl_b32 s64, s3, 14
    s_add_u32 s62, s62, s64
    s_add_u32 s62, s62, {OP}
    v_lshlrev_b32 v20, 11, v6
    v_lshlrev_b32 v21, 4, v8
    v_add3_u32 v144, s62, v20, v21
    s_lshl_b32 s62, s6, 11
    s_add_u32 s62, s62, s59
    s_add_u32 s62, s62, {ST}
    v_add_u32 v145, s62, v21
    v_mov_b32 v24, -1
    v_mov_b32 v25, -1
    v_mov_b32 v26, -1
    v_mov_b32 v27, -1
    s_lshl_b32 s61, s3, 13
    s_add_u32 s61, s61, {LW+8192}
    s_waitcnt lgkmcnt(0)
    global_load_dwordx4 v[8:11], v4, s[8:9]
    global_load_dwordx4 v[12:15], v4, s[8:9] offset:16
    global_load_dwordx4 v[16:19], v5, s[8:9]
    {WQ}
    s_load_dword s35, s[30:31], 0
    s_cmp_lt_u32 s3, 2
    s_cbranch_scc1 L_sx0
    s_cmp_eq_u32 s3, 2
    s_cselect_b32 s40, s20, s22
    s_cselect_b32 s41, s21, s23
    s_cselect_b32 s64, 0, {24*128}
    s_sub_u32 s60, s61, 8192
    s_mul_i32 s62, s5, {48*128}
    s_add_u32 s62, s62, s64
    v_min_u32 v20, 23, v0
    v_lshlrev_b32 v20, 7, v20
    v_add_u32 v20, s62, v20
    s_barrier
    {'global_load_dword v94, v20, s[28:29] sc1' if TOUCH == 1 else ''}
    L_tloop:
    s_mov_b32 m0, s60
    s_add_u32 s60, s60, 1024
    buffer_load_dwordx4 v31, s[40:43], s56 offen nt lds
    s_add_u32 s56, s56, {8*3584}
    s_mov_b32 m0, s60
    s_add_u32 s60, s60, 1024
    buffer_load_dwordx4 v30, s[40:43], s56 offen nt lds
    s_add_u32 s56, s56, {8*3584}
    s_cmp_lt_u32 s60, s61
    s_cbranch_scc1 L_tloop
    s_waitcnt vmcnt({9 if TOUCH == 1 else 8})
    s_barrier
    s_barrier
    s_branch L_service
    L_sx0:
    {'' if opt.get('noclear') else 'global_store_dwordx4 v144, v[24:27], s[28:29]'}
    s_mov_b64 exec, 0xff
    {'' if opt.get('noclear') else 'global_store_dwordx4 v145, v[24:27], s[28:29]'}
    s_mov_b64 exec, -1
    s_barrier
    s_branch L_service
    """)
    a("L_loader:")
    TLB = """
    s_lshl_b32 s37, s34, 16
    s_load_dword s38, s[12:13], s36
    s_load_dword s38, s[16:17], s37
    s_load_dword s38, s[24:25], 0
    s_load_dword s38, s[26:27], 0
    s_load_dword s38, s[10:11], s36
    s_load_dword s38, s[20:21], 0
    s_load_dword s38, s[22:23], 0
    """ if opt.get('tlb') else ""
    a(f"""
    s_sub_u32 s56, s3, 4
    s_lshl_b32 s36, s56, 2
    v_add_u32 v3, s36, v2
    v_xor_b32 v4, v3, v1
    v_lshlrev_b32 v4, 4, v4
    v_lshl_add_u32 v4, v2, 8, v4
    v_and_b32 v5, 7, v3
    v_lshlrev_b32 v5, 1, v5
    v_xor_b32 v5, v5, v1
    v_lshlrev_b32 v5, 4, v5
    v_lshl_add_u32 v3, v3, 10, v5
    v_lshl_add_u32 v5, v2, 8, v5
    s_lshl_b32 s36, s6, 3
    s_add_u32 s36, s36, s4
    s_lshl_b32 s36, s36, 23
    s_lshl_b32 s59, s7, 16
    s_add_u32 s36, s36, s59
    s_add_u32 s36, s36, 0x700000
    s_mul_i32 s59, s2, {rotmul}
    s_add_u32 s59, s59, s56
    s_and_b32 s59, s59, 63
    s_lshl_b32 s59, s59, 10
    s_mov_b32 s42, 0x10000
    s_mov_b32 s46, 0x10000
    s_mov_b32 s47, 0x20000
    s_waitcnt lgkmcnt(0)
    {WQ}
    s_add_u32 s40, s10, s36
    s_addc_u32 s41, s11, 0
    s_lshl_b32 s60, s56, 10
    {TLB}
    s_barrier
    L_kloop0:
    s_mov_b32 m0, s60
    s_add_u32 s60, s60, 4096
    buffer_load_dwordx4 v4, s[40:43], s59 offen nt lds
    s_add_u32 s59, s59, 4096
    s_and_b32 s59, s59, 0xffff
    s_cmp_lt_u32 s60, {4096*kpre}
    s_cbranch_scc1 L_kloop0
    s_add_u32 s44, s12, s36
    s_addc_u32 s45, s13, 0
    s_mov_b32 s48, s16
    s_mov_b32 s49, s17
    s_lshl_b32 s57, s33, 8
    s_lshl_b32 s61, s34, 16
    s_add_u32 s61, s61, s57
    s_waitcnt vmcnt({kpre})
    s_barrier
    s_barrier
    L_kloop:
    s_waitcnt vmcnt({thr-1})
    s_mov_b32 m0, s60
    s_add_u32 s60, s60, 4096
    buffer_load_dwordx4 v4, s[40:43], s59 offen nt lds
    s_add_u32 s59, s59, 4096
    s_and_b32 s59, s59, 0xffff
    s_cmp_lt_u32 s60, 65536
    s_cbranch_scc1 L_kloop
    L_vloop:
    s_waitcnt vmcnt({thr-1})
    s_mov_b32 m0, s60
    s_add_u32 s60, s60, 4096
    buffer_load_dwordx4 v5, s[44:47], s59 offen nt lds
    s_add_u32 s59, s59, 4096
    s_and_b32 s59, s59, 0xffff
    s_cmp_lt_u32 s60, {65536 + 4096*min(vthr, vpre)}
    s_cbranch_scc1 L_vloop
    """)
    if vthr < vpre:
        a(f"""
    L_vloop1:
    s_waitcnt vmcnt({thr2-1})
    s_mov_b32 m0, s60
    s_add_u32 s60, s60, 4096
    buffer_load_dwordx4 v5, s[44:47], s59 offen nt lds
    s_add_u32 s59, s59, 4096
    s_and_b32 s59, s59, 0xffff
    s_cmp_lt_u32 s60, {65536 + 4096*vpre}
    s_cbranch_scc1 L_vloop1
    """)
    stamp("L pre issue", 0)
    a(f"s_waitcnt vmcnt({vpre}) lgkmcnt(0)")
    stamp("L K landed")
    a("s_barrier")
    stamp("B1", 5)
    tp = opt.get('tp', 14)
    nA = (tp - thr2) // 2
    nB = (20 - thr2) // 2
    def vloop(lbl, end):
        a(f"""
        {lbl}:
        s_waitcnt vmcnt({thr2-1})
        s_mov_b32 m0, s60
        s_add_u32 s60, s60, 4096
        buffer_load_dwordx4 v5, s[44:47], s59 offen nt lds
        s_add_u32 s59, s59, 4096
        s_and_b32 s59, s59, 0xffff
        s_cmp_lt_u32 s60, {65536 + 4096*end}
        s_cbranch_scc1 {lbl}
        """)
    vloop("L_vloop2", tp)
    a(f"s_waitcnt vmcnt({tp - 2*nA})")
    stamp("L at Bp", 2)
    a("s_barrier")
    stamp("Bp", 7)
    if tp < 16: vloop("L_vloop3", 16)
    a(f"""
    s_lshl_b32 s60, s56, 13
    s_add_u32 s60, s60, {LW}
    """)
    for t in range(4):
        a(f"""
        s_add_u32 m0, s60, {t*1024}
        s_waitcnt vmcnt({thr2-1})
        buffer_load_dwordx4 v3, s[48:51], s61 offen nt lds
        s_add_u32 s61, s61, 16384
        """)
    a(f"s_waitcnt vmcnt({20 - 2*nB})")
    stamp("L at Bq", 3)
    a("s_barrier")
    a("s_waitcnt vmcnt(4)")
    stamp("L V landed", 4)
    a("s_barrier")
    stamp("BB", 8)
    a("s_waitcnt vmcnt(0)")
    stamp("L wo landed", 9)
    a("s_barrier")
    a("s_branch L_fin" if stamps else ("s_branch L_end" if opt.get('probe') else "s_endpgm"))

    a("L_service:")
    a(f"""
    s_lshl_b32 s67, s4, 5
    s_add_u32 s67, s67, s5
    s_lshl_b32 s59, s7, 7
    s_mov_b32 s62, 0xffff0000
    s_mov_b32 s64, 0x000f000f
    s_mov_b32 s65, 0x000f000f
    v_and_b32 v4, 3, v1
    v_lshrrev_b32 v5, 2, v1
    v_and_b32 v6, 1, v2
    s_lshl_b32 s57, s3, 2
    v_add_u32 v95, s57, v2
    v_and_b32 v7, 7, v95
    v_lshlrev_b32 v7, 1, v7
    v_xor_b32 v7, v7, v1
    v_lshlrev_b32 v7, 4, v7
    v_lshl_add_u32 v95, v95, 10, v7
    s_lshl_b32 s50, s63, 15
    s_lshl_b32 s57, s33, 8
    s_add_u32 s50, s50, s57
    s_mov_b32 s52, s24
    s_mov_b32 s53, s25
    s_mov_b32 s55, 0x20000
    v_lshrrev_b32 v96, 3, v1
    v_lshl_add_u32 v96, v6, 1, v96
    v_lshlrev_b32 v96, 5, v96
    v_lshl_add_u32 v96, v5, 7, v96
    v_lshl_add_u32 v96, v2, 10, v96
    v_lshl_add_u32 v96, v4, 3, v96
    s_sub_u32 s60, s61, 8192
    s_lshl_b32 s57, s3, 6
    s_movk_i32 s58, 0x2000
    s_cmp_lt_u32 s3, 2
    s_cselect_b32 s57, s57, 0
    s_cselect_b32 s56, {LW}, s60
    s_cselect_b32 s58, s58, 64
    v_xor_b32 v96, s57, v96
    v_add_u32 v96, s56, v96
    v_xor_b32 v97, 32, v96
    v_xor_b32 v92, s58, v96
    v_xor_b32 v93, 32, v92
    s_cselect_b32 s57, 13, 8
    v_and_b32 v98, 1, v1
    v_lshlrev_b32 v98, s57, v98
    v_lshrrev_b32 v7, 1, v1
    v_lshl_add_u32 v98, v7, 6, v98
    v_lshl_add_u32 v98, v2, 4, v98
    s_lshl_b32 s57, s32, 8
    s_lshl_b32 s58, s3, 7
    s_add_u32 s57, s57, s58
    s_add_u32 s57, s57, {QP}
    s_lshr_b32 s63, s32, 1
    s_lshl_b32 s63, s63, 13
    s_add_u32 s63, s63, {GP}
    s_and_b32 s56, s32, 1
    s_lshl_b32 s58, s56, 10
    s_add_u32 s58, s58, s63
    s_lshl_b32 s56, s56, 7
    s_add_u32 s63, s63, s56
    s_lshl_b32 s56, s3, 9
    s_add_u32 s58, s58, s56
    s_sub_u32 s58, s58, 1024
    s_cmp_lt_u32 s3, 2
    s_cselect_b32 s57, s57, s58
    s_lshl_b32 s58, s33, 11
    s_add_u32 s57, s57, s58
    v_add_u32 v98, s57, v98
    s_lshl_b32 s57, s6, 13
    s_lshl_b32 s58, s3, 10
    s_add_u32 s57, s57, s58
    s_add_u32 s57, s57, {QP+4096}
    v_lshlrev_b32 v99, 4, v0
    v_add_u32 v99, s57, v99
    s_add_u32 s60, s60, 6144
    v_lshlrev_b32 v100, 3, v0
    v_add_u32 v100, s60, v100
    s_lshl_b32 s58, s6, 11
    s_add_u32 s58, s58, s59
    s_add_u32 s58, s58, {ST}
    v_lshlrev_b32 v118, 2, v0
    v_add_u32 v118, s58, v118
    v_mov_b32 v121, 0xff
    s_getreg_b32 s68, hwreg(HW_REG_XCC_ID)
    s_and_b32 s68, s68, 7
    s_cmp_lt_u32 s3, 2
    s_cbranch_scc0 L_ln
    s_waitcnt vmcnt({2 if opt.get('noclear') else 4})
    L_ln:
    """)
    stamp("S x landed", 0)
    for i in range(8):
        a(f"v_lshlrev_b32 v{32+2*i}, 16, v{8+i}")
        a(f"v_and_b32 v{33+2*i}, s62, v{8+i}")
    for i in range(4):
        a(f"v_pk_add_f32 v[{48+2*i}:{49+2*i}], v[{32+4*i}:{33+4*i}], v[{34+4*i}:{35+4*i}]")
    a("v_pk_add_f32 v[48:49], v[48:49], v[50:51]")
    a("v_pk_add_f32 v[52:53], v[52:53], v[54:55]")
    a("v_pk_add_f32 v[48:49], v[48:49], v[52:53]")
    a("v_add_f32 v48, v48, v49")
    reduce5(48, 49)
    a("v_mul_f32 v48, 0xbb000000, v48")
    a("v_mov_b32 v49, v48")
    for i in range(8):
        a(f"v_pk_add_f32 v[{32+2*i}:{33+2*i}], v[{32+2*i}:{33+2*i}], v[48:49]")
    a("v_pk_mul_f32 v[50:51], v[32:33], v[32:33]")
    a("v_pk_mul_f32 v[52:53], v[34:35], v[34:35]")
    for i in range(2, 8):
        d = 50 + 2 * (i & 1)
        a(f"v_pk_fma_f32 v[{d}:{d+1}], v[{32+2*i}:{33+2*i}], v[{32+2*i}:{33+2*i}], v[{d}:{d+1}]")
    a("v_pk_add_f32 v[50:51], v[50:51], v[52:53]")
    a("v_add_f32 v50, v50, v51")
    a("""
    v_cvt_pk_bf16_f32 v48, v48, v48
    v_and_b32 v48, s62, v48
    v_mov_b32 v49, v48
    """)
    dpp("v_add_f32", 50, "quad_perm:[2,3,0,1]")
    fr = []
    for i in range(4):
        fr.append(f"v_lshlrev_b32 v{32+2*i}, 16, v{16+i}")
        fr.append(f"v_and_b32 v{33+2*i}, s62, v{16+i}")
    for i in range(4):
        fr.append(f"v_pk_add_f32 v[{32+2*i}:{33+2*i}], v[{32+2*i}:{33+2*i}], v[48:49]")
    for i in range(4):
        fr.append(f"v_cvt_pk_bf16_f32 v{16+i}, v{32+2*i}, v{33+2*i}")
    for i in range(4):
        fr.append(f"v_lshlrev_b32 v{32+2*i}, 16, v{16+i}")
        fr.append(f"v_and_b32 v{33+2*i}, s62, v{16+i}")
    ch = [f"v_add_f32_dpp v50, v50, v50 row_ror:4 {DPPM}", None, None,
          f"v_add_f32_dpp v50, v50, v50 row_ror:8 {DPPM}", "v_mov_b32 v51, v50", None, None,
          "v_permlane16_swap_b32 v50, v51", "v_add_f32 v50, v50, v51", "v_mov_b32 v51, v50", None, None,
          "v_permlane32_swap_b32 v50, v51", "v_add_f32 v50, v50, v51",
          "v_mul_f32 v50, 0x3b000000, v50", "v_cvt_pk_bf16_f32 v50, v50, v50", "v_and_b32 v50, s62, v50",
          "v_add_f32 v50, 0x3727c5ac, v50", "v_cvt_pk_bf16_f32 v50, v50, v50", "v_and_b32 v50, s62, v50",
          "v_sqrt_f32 v50, v50", None, "v_cvt_pk_bf16_f32 v50, v50, v50", "v_and_b32 v50, s62, v50",
          "v_rcp_f32 v50, v50", None]
    for c in ch:
        a(c if c else fr.pop(0))
    a("v_mov_b32 v51, v50")
    for x in fr: a(x)
    for i in range(4):
        a(f"v_pk_mul_f32 v[{32+2*i}:{33+2*i}], v[{32+2*i}:{33+2*i}], v[50:51]")
    for i in range(4):
        a(f"v_cvt_pk_bf16_f32 v{16+i}, v{32+2*i}, v{33+2*i}")
    for jj in range(1, 4):
        for i in range(4):
            a(f"v_mov_b32_dpp v{16+4*jj+i}, v{16+i} row_ror:{16-4*jj} {DPPM}")
    a(f"""
    s_waitcnt lgkmcnt(0)
    s_add_u32 s35, s35, {EINC}
    s_lshr_b32 s36, s35, 8
    s_lshr_b32 s37, s35, 16
    s_lshr_b32 s38, s35, 24
    s_and_b32 s38, s38, 0xf8
    s_or_b32 s38, s38, s68
    s_and_b32 s39, s35, 0x00ffffff
    s_lshl_b32 s57, s38, 24
    s_or_b32 s39, s39, s57
    v_cmp_lt_u32 vcc, 1, v1
    """)
    stamp("S LN done")
    a(f"""
    s_cmp_lt_u32 s3, 2
    s_waitcnt vmcnt(0)
    s_cbranch_scc0 L_w3
    s_barrier
    L_w3:
    """)
    stamp("S tile landed")
    TA = [96, 97, 92, 93]
    for aa in range(4):
        for ss in range(2):
            for e in range(2):
                d = 48 + 8 * aa + 4 * ss + 2 * e
                a(f"ds_read_b64_tr_b16 v[{d}:{d+1}], v{TA[aa]} offset:{ss*4096+e*512}")
    def p1mfma(aa):
        for ss in range(2):
            bi = 16 + 4 * (2 * (aa >> 1) + ss)
            a(f"v_mfma_f32_16x16x32_bf16 v[{32+4*aa}:{35+4*aa}], v[{48+8*aa+4*ss}:{51+8*aa+4*ss}], v[{bi}:{bi+3}], {'0' if ss==0 else f'v[{32+4*aa}:{35+4*aa}]'}")
    a("s_waitcnt lgkmcnt(8)")
    p1mfma(0); p1mfma(1)
    a("""
    s_waitcnt lgkmcnt(0)
    s_cbranch_scc0 L_w4
    s_barrier
    L_w4:
    """)
    p1mfma(2); p1mfma(3)
    for i in range(4):
        a(f"v_cndmask_b32 v{32+i}, v{32+i}, v{36+i}, vcc")
    for i in range(4):
        a(f"v_cndmask_b32 v{40+i}, v{40+i}, v{44+i}, vcc")
    a("s_mov_b64 exec, s[64:65]")
    a("s_cbranch_scc1 L_w5")
    for i in range(4):
        a(f"v_bfi_b32 v{40+i}, v121, s{35+i}, v{40+i}")
    a("""
    @PUB@global_store_dwordx4 v98, v[40:43], s[28:29] offset:128
    s_branch L_w6
    L_w5:
    v_pk_add_f32 v[32:33], v[32:33], v[40:41]
    v_pk_add_f32 v[34:35], v[34:35], v[42:43]
    L_w6:
    """)
    for i in range(4):
        a(f"v_bfi_b32 v{32+i}, v121, s{35+i}, v{32+i}")
    a(f"""
    @PUB@global_store_dwordx4 v98, v[32:35], s[28:29]
    s_mov_b64 exec, -1
    """)
    stamp("S published")
    a("""
    s_sub_u32 m0, s61, 4096
    s_add_u32 s51, s50, 16384
    buffer_load_dwordx4 v95, s[52:55], s50 offen nt lds
    s_sub_u32 m0, s61, 3072
    s_nop 0
    buffer_load_dwordx4 v95, s[52:55], s51 offen nt lds
    """)
    a(f"""
    v_xor_b32 v101, v2, v1
    v_lshlrev_b32 v101, 4, v101
    v_lshl_add_u32 v101, v1, 8, v101
    s_lshl_b32 s59, s3, 14
    v_add_u32 v101, s59, v101
    v_xor_b32 v102, 64, v101
    v_xor_b32 v103, 0x80, v101
    v_xor_b32 v104, 0xc0, v101
    v_and_b32 v105, 2, v1
    v_lshlrev_b32 v105, 12, v105
    v_and_b32 v7, 1, v1
    v_lshl_add_u32 v105, v7, 8, v105
    v_lshl_add_u32 v105, v2, 4, v105
    v_add_u32 v105, {R(0)}, v105
    v_lshrrev_b32 v106, 1, v5
    v_lshlrev_b32 v106, 8, v106
    v_lshl_add_u32 v106, v2, 6, v106
    v_lshl_add_u32 v106, v4, 4, v106
    v_and_b32 v8, 1, v5
    v_lshl_add_u32 v106, v8, 3, v106
    s_lshl_b32 s59, s3, 9
    s_add_u32 s59, s59, {PB}
    v_add_u32 v106, s59, v106
    v_lshlrev_b32 v122, 5, v4
    v_add_u32 v122, {MLB}, v122
    s_lshl_b32 s59, s3, 2
    v_add_u32 v107, s59, v122
    s_and_b32 s56, s3, 1
    v_lshlrev_b32 v108, 10, v5
    v_and_b32 v8, 2, v1
    v_lshl_add_u32 v108, v8, 8, v108
    v_lshl_add_u32 v108, v7, 6, v108
    v_lshl_add_u32 v108, v2, 4, v108
    s_lshl_b32 s59, s56, 8
    s_add_u32 s59, s59, s63
    s_add_u32 s59, s59, 2048
    v_add_u32 v108, s59, v108
    s_mov_b32 s57, s56
    s_lshl_b32 s58, s57, 15
    s_lshl_b32 s59, s32, 12
    s_add_u32 s58, s58, s59
    s_add_u32 s58, s58, {OP}
    v_lshlrev_b32 v123, 7, v1
    v_lshl_add_u32 v109, v2, 4, v123
    v_add_u32 v109, s58, v109
    s_lshl_b32 s58, s57, 11
    s_add_u32 s59, s58, {FL}
    v_add_u32 v123, s59, v123
    s_lshr_b32 s59, s32, 1
    s_lshl_b32 s59, s59, 2
    s_add_u32 s58, s58, s59
    s_add_u32 s58, s58, {ST}
    v_lshlrev_b32 v110, 9, v2
    v_add_u32 v110, s58, v110
    v_lshl_add_u32 v8, v6, 2, v5
    s_lshl_b32 s58, s3, 1
    s_and_b32 s58, s58, 4
    v_xor_b32 v8, s58, v8
    v_lshlrev_b32 v8, 5, v8
    v_lshl_add_u32 v111, v5, 8, v8
    v_lshl_add_u32 v111, v4, 3, v111
    v_lshl_add_u32 v111, v2, 13, v111
    v_add_u32 v111, {LW}, v111
    v_xor_b32 v112, 32, v111
    v_xor_b32 v113, 64, v111
    v_xor_b32 v114, 0x60, v111
    v_lshrrev_b32 v115, 1, v2
    v_lshl_add_u32 v115, v6, 1, v115
    v_lshlrev_b32 v117, 1, v115
    v_lshl_add_u32 v115, v115, 4, v1
    v_lshlrev_b32 v115, 2, v115
    s_lshl_b32 s58, s56, 20
    s_lshl_b32 s59, s33, 18
    s_add_u32 s58, s58, s59
    s_lshr_b32 s59, s3, 1
    s_lshl_b32 s59, s59, 14
    s_add_u32 s58, s58, s59
    s_lshl_b32 s59, s34, 8
    s_add_u32 s58, s58, s59
    s_add_u32 s58, s58, {FP+EX}
    v_add_u32 v115, s58, v115
    s_lshl_b32 s58, s67, 3
    v_add_u32 v120, s58, v117
    v_lshlrev_b32 v117, 3, v4
    v_lshrrev_b32 v117, v117, s35
    s_lshl_b32 s58, s6, 14
    s_lshl_b32 s59, s7, 4
    s_add_u32 s58, s58, s59
    s_add_u32 s58, s58, {FP}
    v_lshlrev_b32 v116, 8, v0
    v_add_u32 v116, s58, v116
    v_lshlrev_b32 v250, 4, v4
    v_lshl_add_u32 v250, v2, 6, v250
    v_add_u32 v250, {PB}, v250
    v_lshl_add_u32 v248, v2, 2, v5
    v_and_b32 v249, 7, v248
    s_lshl_b32 s58, s3, 1
    v_xor_b32 v249, s58, v249
    v_lshlrev_b32 v249, 5, v249
    v_lshl_add_u32 v248, v248, 8, v249
    v_lshl_add_u32 v248, v4, 3, v248
    v_add_u32 v248, 0x10000, v248
    v_xor_b32 v249, 32, v248
    s_lshl_b32 s58, s6, 15
    s_lshl_b32 s59, s3, 11
    s_add_u32 s58, s58, s59
    s_lshl_b32 s59, s7, 7
    s_add_u32 s58, s58, s59
    s_add_u32 s58, s58, {OP}
    v_lshlrev_b32 v251, 13, v4
    v_lshl_add_u32 v251, v2, 4, v251
    v_add_u32 v251, s58, v251
    s_mov_b32 s58, 0x0c0c0400
    s_mov_b32 s59, 0x04000c0c
    s_mov_b32 s61, 0xf8ffffff
    global_load_ushort v119, v120, s[8:9]
    s_cmp_ge_u32 s3, {0 if opt.get('nogather') else 2}
    s_cbranch_scc1 L_qskip
    {'global_load_dword v144, v144, s[28:29] ' + OTF if OT == 1 else ''}
    {'global_load_dword v145, v145, s[28:29] ' + OTF if OT == 1 else ''}
    {'s_sleep ' + str(opt['qdelay']) if opt.get('qdelay') else ''}
    s_mov_b32 s57, 0
    """)
    for c in range(4):
        a(f"global_load_dwordx4 v[{32+4*c}:{35+4*c}], v99, s[28:29] offset:{c*2048-4096} @L1@")
    a("s_branch L_qchk")
    a("L_qpoll:")
    for c in range(4):
        a(f"global_load_dwordx4 v[{32+4*c}:{35+4*c}], v99, s[28:29] offset:{c*2048-4096} @LF@")
    a("L_qchk:")
    a("s_waitcnt vmcnt(0)")
    for c in range(4):
        a(f"v_perm_b32 v{48+2*c}, v{33+4*c}, v{32+4*c}, s58")
        a(f"v_perm_b32 v{49+2*c}, v{35+4*c}, v{34+4*c}, s59")
        a(f"v_or_b32 v{48+2*c}, v{48+2*c}, v{49+2*c}")
        a(f"v_xor_b32 v{48+2*c}, s39, v{48+2*c}")
    a(f"""
    v_or3_b32 v48, v48, v50, v52
    v_or_b32 v56, v48, v54
    v_and_b32 v48, s61, v56
    v_cmp_ne_u32 vcc, 0, v48
    s_add_u32 s57, s57, 1
    s_mov_b64 exec, vcc
    s_cbranch_execz L_qdone
    s_cmp_lt_u32 s57, {NFAST}
    s_cbranch_scc1 L_qpoll
    buffer_wbl2 sc1
    buffer_inv sc1
    s_waitcnt vmcnt(0)
    s_cmp_lt_u32 s57, {SPIN}
    s_cbranch_scc1 L_qpoll
    L_qdone:
    s_mov_b64 exec, -1
    v_cmp_ne_u32 vcc, 0, v56
    s_movk_i32 s56, 0xff00
    """)
    for i in range(16):
        a(f"v_and_b32 v{32+i}, s56, v{32+i}")
    a(f"""
    s_or_b32 s56, vcc_lo, vcc_hi
    v_pk_add_f32 v[32:33], v[32:33], v[36:37]
    v_pk_add_f32 v[34:35], v[34:35], v[38:39]
    v_pk_add_f32 v[40:41], v[40:41], v[44:45]
    v_pk_add_f32 v[42:43], v[42:43], v[46:47]
    v_pk_add_f32 v[32:33], v[32:33], v[40:41]
    v_pk_add_f32 v[34:35], v[34:35], v[42:43]
    v_cvt_pk_bf16_f32 v32, v32, v33
    v_cvt_pk_bf16_f32 v33, v34, v35
    v_mov_b32 v34, s56
    v_mov_b32 v35, s60
    ds_write_b64 v100, v[32:33]
    ds_write_b32 v35, v34 offset:{MODEB}
    """)
    if stamps: a("s_mov_b32 s69, s57")
    stamp("S gathered")
    a(f"""
    L_qskip:
    v_mov_b32 v10, {R(0)+MODEB}
    s_waitcnt vmcnt(0) lgkmcnt(0)
    s_barrier
    """)
    stamp("B1", 5)
    a("""
    ds_read_b32 v8, v10
    ds_read_b32 v9, v10 offset:8192
    """)
    for j in range(4):
        a(f"ds_read_b128 v[{16+4*j}:{19+4*j}], v105 offset:{64*j}")
    def kread(blk):
        for j in range(4):
            d = 32 + 16 * blk + 4 * j
            a(f"ds_read_b128 v[{d}:{d+3}], v{101+j} offset:{4096*blk}")
    kread(0); kread(1)
    a("global_load_dwordx4 v[124:127], v108, s[28:29] offset:-2048 @L1@")
    a("global_load_dwordx4 v[12:15], v108, s[28:29] offset:2048 @L1@")
    if OT == 2:
        a(f"""
        s_cmp_ge_u32 s3, 2
        s_cbranch_scc1 L_not
        global_load_dword v144, v144, s[28:29] {OTF}
        global_load_dword v145, v145, s[28:29] {OTF}
        L_not:
        """)
    for blk in range(4):
        a(f"s_waitcnt lgkmcnt({4 if blk < 3 else 0})")
        for j in range(4):
            d = 32 + 16 * blk + 4 * j
            ac = 128 + 4 * blk
            a(f"v_mfma_f32_16x16x32_bf16 v[{ac}:{ac+3}], v[{d}:{d+3}], v[{16+4*j}:{19+4*j}], {'0' if j==0 else f'v[{ac}:{ac+3}]'}")
        if blk + 2 < 4: kread(blk + 2)
        if blk == 0:
            a("v_or_b32 v8, v8, v9")
            a("v_cmp_eq_u32 s[44:45], 1, v5")
            a("v_cmp_eq_u32 s[46:47], 2, v5")
            a("v_cmp_eq_u32 s[48:49], 3, v5")
            a("v_readfirstlane_b32 s60, v8")
            if opt.get('nogather'): a("s_mov_b32 s60, 0")
    a(f"s_mov_b32 s56, {SCALE}")
    a(f"s_mov_b32 s57, {LOG2E}")
    for blk in range(1, 4):
        for i in range(4):
            a(f"v_cndmask_b32 v{128+i}, v{128+i}, v{128+4*blk+i}, s[{42+2*blk}:{43+2*blk}]")
    a("""
    v_cvt_pk_bf16_f32 v40, v128, v129
    v_cvt_pk_bf16_f32 v41, v130, v131
    v_lshlrev_b32 v32, 16, v40
    v_and_b32 v33, s62, v40
    v_lshlrev_b32 v34, 16, v41
    v_and_b32 v35, s62, v41
    """)
    for i in range(4): a(f"v_mul_f32 v{32+i}, s56, v{32+i}")
    a("""
    v_cvt_pk_bf16_f32 v40, v32, v33
    v_cvt_pk_bf16_f32 v41, v34, v35
    v_lshlrev_b32 v32, 16, v40
    v_and_b32 v33, s62, v40
    v_lshlrev_b32 v34, 16, v41
    v_and_b32 v35, s62, v41
    v_max3_f32 v40, v32, v33, v34
    v_max_f32 v40, v40, v35
    """)
    reduce4(40, 41, "v_max_f32")
    for i in range(4): a(f"v_sub_f32 v{32+i}, v{32+i}, v40")
    for i in range(4): a(f"v_mul_f32 v{32+i}, s57, v{32+i}")
    for i in range(4): a(f"v_exp_f32 v{32+i}, v{32+i}")
    a("""
    v_mul_f32 v40, s57, v40
    v_cvt_pk_bf16_f32 v44, v32, v33
    v_cvt_pk_bf16_f32 v45, v34, v35
    ds_write_b64 v106, v[44:45]
    ds_write_b32 v107, v40
    v_add_f32 v32, v32, v33
    v_add_f32 v34, v34, v35
    v_add_f32 v32, v32, v34
    """)
    reduce4(32, 33)
    a("""
    ds_write_b32 v107, v32 offset:16
    s_cmp_eq_u32 s60, 0
    s_cbranch_scc1 L_nowb
    buffer_wbl2 sc1
    L_nowb:
    """)
    stamp("S softmax done", 6)
    a("""
    s_waitcnt lgkmcnt(0)
    s_barrier
    """)
    stamp("Bp", 7)
    PF = 148; VF = 180; AC = 212; AL = 244
    def rd(u):
        for q in range(2):
            for e in range(2):
                d = VF + 8 * (u % 4) + 4 * q + 2 * e
                a(f"ds_read_b64_tr_b16 v[{d}:{d+1}], v{248+q} offset:{8192*u+4096*e}")
    def pvm(u):
        for q in range(2):
            d = VF + 8 * (u % 4) + 4 * q
            ac = AC + 8 * (u >> 1) + 4 * q
            a(f"v_mfma_f32_16x16x32_bf16 v[{ac}:{ac+3}], v[{d}:{d+3}], v[{PF+4*u}:{PF+3+4*u}], {'0' if u % 2 == 0 else f'v[{ac}:{ac+3}]'}")
    a("""
    ds_read_b128 v[40:43], v122
    ds_read_b128 v[44:47], v122 offset:16
    """)
    for u in range(8):
        a(f"ds_read_b128 v[{PF+4*u}:{PF+3+4*u}], v250 offset:{256*u}")
    a("""
    s_waitcnt lgkmcnt(8)
    v_max3_f32 v48, v40, v41, v42
    v_max_f32 v48, v48, v43
    """)
    for i in range(4): a(f"v_sub_f32 v{40+i}, v{40+i}, v48")
    for i in range(4): a(f"v_exp_f32 v{40+i}, v{40+i}")
    a("""
    v_mul_f32 v49, v40, v44
    v_fmac_f32 v49, v41, v45
    v_fmac_f32 v49, v42, v46
    v_fmac_f32 v49, v43, v47
    v_log_f32 v50, v49
    v_rcp_f32 v49, v49
    s_cmp_lg_u32 s3, 3
    s_cbranch_scc1 L_nostat
    v_add_f32 v52, v50, v48
    s_mov_b32 exec_hi, 0
    global_store_dword v118, v52, s[28:29]
    s_mov_b64 exec, -1
    L_nostat:
    s_waitcnt lgkmcnt(0)
    """)
    assert nA <= 4 and nB - nA <= 4
    for u in range(nA): rd(u)
    for i in range(4): a(f"v_mul_f32 v{AL+i}, v{40+i}, v49")
    for u in range(nA):
        a(f"s_waitcnt lgkmcnt({min(15, 4*(nA-1-u))})")
        pvm(u)
    for q in range(4):
        for e in range(2):
            d = 80 + 4 * q + 2 * e
            a(f"ds_read_b64_tr_b16 v[{d}:{d+1}], v{111+q} offset:{(4+e)*1024}")
    a("""
    s_cbranch_scc1 L_nostat1
    s_waitcnt vmcnt(1)
    s_branch L_nostat2
    L_nostat1:
    s_waitcnt vmcnt(0)
    L_nostat2:
    """)
    a(f"""
    s_mov_b32 s57, 0
    s_branch L_gcheck
    L_gpoll:
    s_cmp_eq_u32 s60, 0
    s_cbranch_scc1 L_gload
    buffer_inv sc1
    s_waitcnt vmcnt(0)
    L_gload:
    global_load_dwordx4 v[124:127], v108, s[28:29] offset:-2048 @LF@
    global_load_dwordx4 v[12:15], v108, s[28:29] offset:2048 @LF@
    s_waitcnt vmcnt(0)
    L_gcheck:
    v_perm_b32 v48, v125, v124, s58
    v_perm_b32 v49, v127, v126, s59
    v_perm_b32 v50, v13, v12, s58
    v_perm_b32 v51, v15, v14, s59
    v_or_b32 v48, v48, v49
    v_or_b32 v50, v50, v51
    v_xor_b32 v48, s39, v48
    v_xor_b32 v50, s39, v50
    v_or_b32 v48, v48, v50
    v_and_b32 v48, s61, v48
    v_cmp_ne_u32 vcc, 0, v48
    s_add_u32 s57, s57, 1
    s_mov_b64 exec, vcc
    s_cbranch_execz L_gdone
    s_cmp_lt_u32 s57, {SPIN}
    s_cbranch_scc1 L_gpoll
    L_gdone:
    s_mov_b64 exec, -1
    s_movk_i32 s56, 0xff00
    """)
    for i in range(4): a(f"v_and_b32 v{124+i}, s56, v{124+i}")
    for i in range(4): a(f"v_and_b32 v{12+i}, s56, v{12+i}")
    a("v_pk_add_f32 v[124:125], v[124:125], v[12:13]")
    a("v_pk_add_f32 v[126:127], v[126:127], v[14:15]")
    for m in ("row_ror:4", "row_ror:8"):
        for i in range(4): dpp("v_add_f32", 124 + i, m)
    a("""
    v_cvt_pk_bf16_f32 v48, v124, v125
    v_cvt_pk_bf16_f32 v49, v126, v127
    v_lshlrev_b32 v124, 16, v48
    v_and_b32 v125, s62, v48
    v_lshlrev_b32 v126, 16, v49
    v_and_b32 v127, s62, v49
    """)
    for i in range(4): a(f"v_max_f32 v{48+i}, 0, v{124+i}")
    for i in range(4): a(f"v_mul_f32_dpp v{48+i}, v{124+i}, v{48+i} quad_perm:[2,3,0,1] {DPPM}")
    a("""
    v_cmp_eq_u32 s[44:45], 0, v1
    v_cmp_eq_u32 s[46:47], 1, v1
    v_cvt_pk_bf16_f32 v48, v48, v49
    v_cvt_pk_bf16_f32 v49, v50, v51
    v_cndmask_b32 v28, 0, v48, s[44:45]
    v_cndmask_b32 v29, 0, v49, s[44:45]
    v_cndmask_b32 v30, 0, v48, s[46:47]
    v_cndmask_b32 v31, 0, v49, s[46:47]
    s_waitcnt lgkmcnt(0)
    """)
    for q in range(4):
        a(f"v_mfma_f32_16x16x32_bf16 v[{32+4*q}:{35+4*q}], v[28:31], v[{80+4*q}:{83+4*q}], 0")
    SG = """
    global_load_dword v24, v110, s[28:29] @TF@
    global_load_dword v25, v110, s[28:29] offset:128 @TF@
    global_load_dword v26, v110, s[28:29] offset:256 @TF@
    global_load_dword v27, v110, s[28:29] offset:384 @TF@
    """
    OG = """
    global_load_dwordx4 v[16:19], v109, s[28:29] @TF@
    global_load_dwordx4 v[20:23], v109, s[28:29] offset:2048 @TF@
    """
    def weights():
        a("""
        v_max3_f32 v124, v24, v25, v26
        v_max_f32 v124, v124, v27
        """)
        reduce_g(124, 125, "v_max_f32")
        for i in range(4): a(f"v_sub_f32 v{8+i}, v{24+i}, v124")
        for i in range(4): a(f"v_exp_f32 v{8+i}, v{8+i}")
        a("""
        v_add_f32 v124, v8, v9
        v_add_f32 v125, v10, v11
        v_add_f32 v124, v124, v125
        """)
        reduce_g(124, 125)
        a("v_rcp_f32 v124, v124")
        for i in range(4): a(f"v_mul_f32 v{8+i}, v{8+i}, v124")
    for q in range(4):
        a(f"v_add_f32 v{32+4*q}, v{32+4*q}, v{33+4*q}")
    a("v_mov_b32 v33, s35")
    a("s_barrier")
    for u in range(nA, nB): rd(u)
    for u in range(nA, nB):
        a(f"s_waitcnt lgkmcnt({4*(nB-1-u)})")
        pvm(u)
    nW = nB // 2
    for i in range(8): a(f"v_mul_f32 v{AC+i}, v{AC+i}, v{AL}")
    for w_ in range(1, nW):
        for i in range(8): a(f"v_fmac_f32 v{AC+i}, v{AC+8*w_+i}, v{AL+w_}")
    a("s_barrier")
    stamp("BB", 8)
    for u in range(nB, 8): rd(u)
    a(SG)
    for u in range(nB, 8):
        a(f"s_waitcnt lgkmcnt({4*(7-u)})")
        pvm(u)
    for w_ in range(nW, 4):
        for i in range(8): a(f"v_fmac_f32 v{AC+i}, v{AC+8*w_+i}, v{AL+w_}")
    for i in range(4):
        a(f"v_cvt_pk_bf16_f32 v{AC+i}, v{AC+2*i}, v{AC+1+2*i}")
    a(f"""
    s_mov_b64 exec, s[64:65]
    global_store_dwordx4 v251, v[{AC}:{AC+3}], s[28:29]
    s_mov_b64 exec, -1
    s_cmp_eq_u32 s60, 0
    s_cbranch_scc1 L_sbc
    s_waitcnt vmcnt(0)
    L_sbc:
    s_barrier
    """)
    stamp("BC", 10)
    for ks in range(2):
        for q in range(4):
            for e in range(2):
                d = 48 + 16 * ks + 4 * q + 2 * e
                a(f"ds_read_b64_tr_b16 v[{d}:{d+1}], v{111+q} offset:{(2*ks+e)*1024}")
    a(f"""
    s_mov_b32 s57, 0
    s_cbranch_scc1 L_fast2
    s_cmp_lg_u32 s3, 0
    s_cbranch_scc1 L_slow2
    buffer_wbl2 sc1
    s_waitcnt vmcnt(0)
    v_add_u32 v34, {FL-ST}, v118
    s_mov_b64 exec, 1
    global_store_dword v34, v33, s[28:29] sc1
    s_mov_b64 exec, -1
    L_slow2:
    global_load_dword v34, v123, s[28:29] sc1
    s_waitcnt vmcnt(0)
    v_cmp_ne_u32 vcc, s35, v34
    s_add_u32 s57, s57, 1
    s_cbranch_vccz L_slow3
    s_cmp_lt_u32 s57, {SPIN}
    s_cbranch_scc1 L_slow2
    L_slow3:
    buffer_inv sc1
    s_waitcnt vmcnt(0)
    {SG}
    s_waitcnt vmcnt(0)
    L_fast2:
    """)
    stamp("og issue", 9); nst[0] = 11
    a(f"""
    {OG}
    s_waitcnt vmcnt(3)
    s_branch L_schk
    L_spoll:
    {SG}
    s_waitcnt vmcnt(0)
    L_schk:
    v_max3_u32 v124, v24, v25, v26
    v_max_u32 v124, v124, v27
    v_cmp_eq_u32 vcc, -1, v124
    s_add_u32 s57, s57, 1
    s_mov_b64 exec, vcc
    s_cbranch_execz L_sdone
    s_cmp_lt_u32 s57, {SPIN}
    s_cbranch_scc1 L_spoll
    L_sdone:
    s_mov_b64 exec, -1
    """)
    weights()
    if stamps: a("s_mov_b32 s69, s57")
    a(f"""
    s_mov_b32 s57, 0
    s_branch L_ochk
    L_opoll:
    {OG}
    L_ochk:
    s_waitcnt vmcnt(0)
    v_max3_u32 v124, v16, v17, v18
    v_max3_u32 v125, v19, v20, v21
    v_max3_u32 v124, v124, v22, v23
    v_max_u32 v124, v124, v125
    v_cmp_eq_u32 vcc, -1, v124
    s_add_u32 s57, s57, 1
    s_mov_b64 exec, vcc
    s_cbranch_execz L_odone
    s_cmp_lt_u32 s57, {SPIN}
    s_cbranch_scc1 L_opoll
    L_odone:
    s_mov_b64 exec, -1
    s_waitcnt lgkmcnt(0)
    """)
    if stamps: a("s_mov_b32 s68, s57")
    stamp("o gathered")
    for q in range(4):
        for ks in range(2):
            a(f"v_mfma_f32_16x16x32_bf16 v[{128+4*q}:{131+4*q}], v[{16+4*ks}:{19+4*ks}], v[{48+16*ks+4*q}:{51+16*ks+4*q}], {'0' if ks==0 else f'v[{128+4*q}:{131+4*q}]'}")
    for q in range(4):
        for i in range(4):
            a(f"v_fmac_f32 v{32+4*q}, v{8+i}, v{128+4*q+i}")
        if q == 2:
            a("v_permlane32_swap_b32 v32, v36")
            a("v_add_f32 v32, v32, v36")
    a("""
    v_permlane32_swap_b32 v40, v44
    v_add_f32 v40, v40, v44
    v_permlane16_swap_b32 v32, v40
    v_add_f32 v36, v32, v40
    v_bfi_b32 v36, v121, v117, v36
    s_mov_b32 s44, 0x11111111
    s_mov_b32 s45, 0x11111111
    """)
    for i in range(1, 4):
        a(f"v_mov_b32_dpp v{36+i}, v36 quad_perm:[{i},{i},{i},{i}] {DPPM}")
    a(f"""
    s_mov_b64 exec, s[44:45]
    global_store_dwordx4 v115, v[36:39], s[30:31] {opt.get('ffs', 'sc1')}
    s_mov_b64 exec, -1
    """)
    stamp("final published")
    if not opt.get('nofb'): a("s_barrier")
    a(f"""
    s_cmp_lg_u32 s3, 0
    s_cbranch_scc1 {'L_fin1' if stamps else 'L_end'}
    s_mov_b32 s57, 0
    v_lshlrev_b32 v28, 16, v119
    s_movk_i32 s56, 0xff00
    {'s_memrealtime s[74:75]' if stamps else ''}
    L_fpoll:
    global_load_dwordx4 v[16:19], v116, s[28:29] {opt.get('ffl', 'sc1')}
    s_waitcnt vmcnt(0)
    {'s_cmp_lg_u32 s57, 0' if stamps else ''}
    {'s_cbranch_scc1 L_fp1' if stamps else ''}
    {'s_memrealtime s[76:77]' if stamps else ''}
    {'L_fp1:' if stamps else ''}
    v_perm_b32 v24, v17, v16, s58
    v_perm_b32 v25, v19, v18, s59
    v_or_b32 v24, v24, v25
    v_cmp_ne_u32 vcc, s35, v24
    s_add_u32 s57, s57, 1
    s_mov_b64 exec, vcc
    s_cbranch_execz L_fdone
    s_cmp_lt_u32 s57, {SPIN}
    s_cbranch_scc1 L_fpoll
    L_fdone:
    s_mov_b64 exec, -1
    """)
    if stamps: a("s_mov_b32 s67, s57")
    for i in range(4): a(f"v_and_b32 v{16+i}, s56, v{16+i}")
    a("""
    v_permlane32_swap_b32 v16, v17
    v_permlane32_swap_b32 v18, v19
    v_add_f32 v16, v16, v17
    v_add_f32 v18, v18, v19
    s_mov_b32 s44, 0x00010001
    s_mov_b32 s45, 0x00010001
    v_permlane16_swap_b32 v16, v18
    v_add_f32 v16, v16, v18
    """)
    for m in ("quad_perm:[1,0,3,2]", "quad_perm:[2,3,0,1]", "row_ror:4", "row_ror:8"):
        dpp("v_add_f32", 16, m)
    a("""
    v_add_f32 v16, v16, v28
    v_cvt_pk_bf16_f32 v16, v16, v16
    s_mov_b64 exec, s[44:45]
    global_store_short v120, v16, s[26:27]
    s_cmp_lg_u32 s2, 0
    """)
    a(f"s_cbranch_scc1 {'L_fin0' if stamps else 'L_end'}")
    a("""
    s_mov_b64 exec, 1
    v_mov_b32 v19, 0
    global_store_dword v19, v33, s[30:31]
    """)
    if stamps:
        a("s_branch L_fin0")
        a("L_fin1:")
        a("s_waitcnt vmcnt(0)")
        a("L_fin0:")
        a("s_mov_b64 exec, -1")
        stamp("out stored")
        a("L_fin:")
        a("s_getreg_b32 s66, hwreg(HW_REG_XCC_ID)")
        a("v_mov_b32 v32, s70")
        for i in range(14):
            a(f"v_mov_b32 v{33+i}, s{72+2*i}")
        a("v_mov_b32 v47, s66")
        a("v_mov_b32 v48, s69")
        a("v_mov_b32 v49, s68")
        a("v_mov_b32 v50, s67")
        a("v_mov_b32 v51, 0")
        a(f"""
        s_lshl_b32 s58, s2, 10
        s_lshl_b32 s59, s3, 7
        s_add_u32 s58, s58, s59
        s_add_u32 s58, s58, {STAMP}
        v_mov_b32 v3, s58
        s_mov_b64 exec, 1
        """)
        for j in range(5):
            a(f"global_store_dwordx4 v3, v[{32+4*j}:{35+4*j}], s[30:31] offset:{16*j}")
    a("L_end:")
    if opt.get('probe'):
        a(f"""
        s_cmp_eq_u32 s74, 0
        s_cbranch_scc1 L_padd
        L_pad:
        s_memrealtime s[72:73]
        s_waitcnt lgkmcnt(0)
        s_sub_u32 s72, s72, s74
        s_cmp_lt_u32 s72, 1200
        s_cbranch_scc1 L_pad
        L_padd:
        """)
    if opt.get('padto'):
        a(f"""
        L_pad:
        s_memrealtime s[72:73]
        s_waitcnt lgkmcnt(0)
        s_sub_u32 s72, s72, s70
        s_cmp_lt_u32 s72, {opt['padto']}
        s_cbranch_scc1 L_pad
        """)
    a("s_endpgm")
    a.raw('.section .rodata,"a"')
    a.raw(".p2align 6")
    a.raw(f".amdhsa_kernel {NAME}_kernel")
    a.raw("  .amdhsa_next_free_vgpr 256")
    a.raw("  .amdhsa_next_free_sgpr 102")
    a.raw("  .amdhsa_accum_offset 256")
    a.raw("  .amdhsa_group_segment_fixed_size 0")
    a.raw("  .amdhsa_kernarg_size 96")
    a.raw("  .amdhsa_user_sgpr_count 2")
    a.raw("  .amdhsa_user_sgpr_kernarg_segment_ptr 1")
    a.raw("  .amdhsa_system_sgpr_workgroup_id_x 1")
    a.raw("  .amdhsa_float_denorm_mode_32 3")
    a.raw(".end_amdhsa_kernel")
    return a.text().replace('@LF@', LF).replace('@L1@', L1F).replace('@TF@', opt.get('tf', 'sc1'))

def parse_opt(s):
    opt = {}
    for kv in s.split(","):
        if kv:
            k, _, v = kv.partition("=")
            opt[k] = (int(v) if v.lstrip('-').isdigit() else v.replace('+', ' ')) if v else 1
    return opt

if __name__ == "__main__":
    ap = argparse.ArgumentParser()
    ap.add_argument("-o", default="k.s")
    ap.add_argument("--stamps", action="store_true")
    ap.add_argument("--opt", default="")
    args = ap.parse_args()
    open(args.o, "w").write(gen(args.stamps, parse_opt(args.opt)))
```

```python
import sys, argparse
from asmgen import Asm
NAME = "parallel_sum__sliding_block_cached__glu_gated_reglu__decode"

EX = 0x40000
QP = 0x0; ST = 0x4000; FL = 0x5000; GP = 0x8000; OP = 0x10000; FP = 0x20000
STAMP = 0x1000000
LW = 131072
def R(j): return LW + 8192 * j + 6144
MLB = R(2); PB = R(3); MODEB = 512
SPIN0 = 40000
LOG2E = 0x3fb8aa3b
SCALE = 0x3db504f3
DPPM = "row_mask:0xf bank_mask:0xf"
EINC = 0x08010101

HEADER = open("cdna_kernels/%s.s.ref" % NAME).read().split("; Override launch")[0]

def gen(stamps=False, opt=None):
    opt = opt or {}
    a0 = Asm()
    class W:
        raw = a0.raw; comment = a0.comment; text = a0.text
        def __call__(self, t): a0(t.replace('@PUB@', '; ' if opt.get('nopub') else ''))
    a = W()
    SPIN = opt.get('spin', SPIN0)
    rotmul = opt.get('rotmul', 37)
    kpre = opt.get('kpre', 4)
    vpre = opt.get('vpre', 8)
    NFAST = opt.get('nfast', 12)
    thr = opt.get('thr', 6)
    LF = opt.get('lf', 'sc1 nt')
    L1F = opt.get('l1f', 'sc1 nt').replace('none', '')
    thr2 = opt.get('thr2', 8); OT = opt.get('otouch', 1); OTF = opt.get('otf', 'sc1 nt'); vthr = opt.get('vthr', 4)
    TOUCH = opt.get('touch', 0)
    nst = [0]
    def stamp(name, i=None):
        if opt.get('probe') == name.replace(' ', '_'):
            a("s_memrealtime s[74:75]")
            a("s_waitcnt lgkmcnt(0)")
        if not stamps: return
        if i is not None: nst[0] = i
        i = nst[0]; nst[0] += 1
        assert i < 14
        a(f"s_memrealtime s[{72+2*i}:{73+2*i}]")
        a("s_waitcnt lgkmcnt(0)")
    def dpp(op, v, m): a(f"{op}_dpp v{v}, v{v}, v{v} {m} {DPPM}")
    def reduce_g(v, t, op="v_add_f32"):
        a(f"v_mov_b32 v{t}, v{v}")
        a(f"v_permlane16_swap_b32 v{v}, v{t}")
        a(f"{op} v{v}, v{v}, v{t}")
        a(f"v_mov_b32 v{t}, v{v}")
        a(f"v_permlane32_swap_b32 v{v}, v{t}")
        a(f"{op} v{v}, v{v}, v{t}")
    def reduce5(v, t, op="v_add_f32"):
        dpp(op, v, "quad_perm:[2,3,0,1]"); dpp(op, v, "row_ror:4"); dpp(op, v, "row_ror:8")
        reduce_g(v, t, op)
    def reduce4(v, t, op="v_add_f32"):
        dpp(op, v, "row_ror:4"); dpp(op, v, "row_ror:8")
        reduce_g(v, t, op)

    a.raw(HEADER.rstrip())
    a.raw("; @launch grid=(256,1,1) block=(512,1,1) lds=163840")
    a.raw('.amdgcn_target "amdgcn-amd-amdhsa--gfx950"')
    a.raw(".text")
    a.raw(f".globl {NAME}_kernel")
    a.raw(".p2align 12")
    a.raw(".p2align 8")
    a.raw(f".type {NAME}_kernel,@function")
    a.raw(f"{NAME}_kernel:")
    if stamps or opt.get('padto'): a("s_memrealtime s[70:71]")
    if opt.get('probe'): a("s_mov_b32 s74, 0")
    if opt.get('probe'): a("s_mov_b32 s3, 99")
    if opt.get('probe') == 'start': a("s_memrealtime s[74:75]")
    a(f"""
    s_cmp_ge_u32 s2, 256
    s_cbranch_scc1 L_end
    s_load_dwordx16 s[8:23], s[0:1], 0
    s_load_dwordx8 s[24:31], s[0:1], 64
    v_lshrrev_b32 v3, 6, v0
    v_and_b32 v0, 63, v0
    v_readfirstlane_b32 s3, v3
    s_getpc_b64 s[56:57]
    s_lshr_b32 s5, s2, 3
    """)
    if not opt.get('nopf'):
        a(f"""
        s_and_b32 s58, s5, 15
        s_lshl_b32 s58, s58, 3
        s_add_u32 s58, s58, s3
        s_lshl_b32 s58, s58, 6
        s_min_u32 s58, s58, L_end-{NAME}_kernel-64
        s_load_dword s39, s[56:57], s58
        """)
    a(f"""
    v_and_b32 v1, 15, v0
    v_lshrrev_b32 v2, 4, v0
    s_and_b32 s4, s2, 7
    s_lshr_b32 s6, s5, 4
    s_and_b32 s7, s5, 15
    s_lshr_b32 s32, s5, 2
    s_and_b32 s33, s5, 3
    s_lshl_b32 s34, s4, 3
    s_add_u32 s34, s34, s32
    s_mov_b32 s43, 0x20000
    s_mul_i32 s63, s4, 7
    s_add_u32 s63, s63, 1
    s_and_b32 s63, s63, 0xfe
    s_add_u32 s63, s63, s32
    s_lshr_b32 s59, s32, 1
    s_and_b32 s60, s4, 1
    s_add_u32 s59, s59, s60
    s_cmp_lt_u32 s59, 4
    s_cselect_b32 s54, 0x1c0000, 0
    s_lshl_b32 s66, s4, 18
    s_add_u32 s66, s66, {EX}
    v_lshrrev_b32 v6, 3, v0
    v_and_b32 v7, 1, v2
    v_lshlrev_b32 v7, 1, v7
    v_and_b32 v8, 7, v0
    v_xor_b32 v7, v7, v8
    v_lshlrev_b32 v7, 4, v7
    v_lshl_add_u32 v28, v6, 13, v7
    v_xor_b32 v29, 64, v28
    s_lshl_b32 s57, s33, 20
    s_lshl_b32 s58, s3, 17
    s_add_u32 s57, s57, s58
    s_lshl_b32 s58, s34, 7
    s_add_u32 s57, s57, s58
    s_add_u32 s58, s57, 0x10000
    s_lshl_b32 s60, s3, 11
    s_add_u32 s60, s60, {LW}
    s_mov_b32 s50, 0x400000
    s_mov_b32 s51, 0x20000
    s_cmp_ge_u32 s3, 4
    s_cbranch_scc1 L_loader
    """)
    WQ = """
    s_add_u32 s28, s30, s66
    s_addc_u32 s29, s31, 0
    s_mov_b32 s48, s14
    s_mov_b32 s49, s15
    s_mov_b32 m0, s60
    s_add_u32 s60, s60, 1024
    buffer_load_dwordx4 v28, s[48:51], s57 offen nt lds
    s_mov_b32 m0, s60
    s_nop 0
    buffer_load_dwordx4 v29, s[48:51], s58 offen nt lds
    """
    a(f"""
    v_and_b32 v3, 1, v0
    v_lshlrev_b32 v3, 10, v3
    v_lshrrev_b32 v4, 1, v0
    v_lshl_add_u32 v4, v4, 5, v3
    s_and_b32 s59, s32, 1
    s_lshl_b32 s62, s59, 7
    s_cmp_lt_u32 s3, 2
    s_cselect_b32 s61, 3, 1
    s_cselect_b32 s62, 0, s62
    v_lshrrev_b32 v5, 2, v1
    v_and_b32 v5, s61, v5
    v_lshl_add_u32 v5, v5, 6, v3
    v_lshl_add_u32 v5, v2, 4, v5
    s_lshl_b32 s61, s33, 8
    s_add_u32 s61, s61, s62
    v_add_u32 v5, s61, v5
    v_mul_u32_u24 v30, 3584, v6
    v_add_u32 v31, v30, v7
    v_xor_b32 v7, 64, v7
    v_add_u32 v30, v30, v7
    s_lshl_b32 s56, s33, 1
    s_add_u32 s56, s56, s59
    s_mul_i32 s56, s56, {64*3584}
    s_lshr_b32 s59, s63, 1
    s_lshl_b32 s59, s59, 7
    s_add_u32 s56, s56, s59
    s_mov_b32 s42, s54
    s_lshl_b32 s59, s7, 7
    s_lshl_b32 s62, s6, 15
    s_add_u32 s62, s62, s59
    s_lshl_b32 s64, s3, 14
    s_add_u32 s62, s62, s64
    s_add_u32 s62, s62, {OP}
    v_lshlrev_b32 v20, 11, v6
    v_lshlrev_b32 v21, 4, v8
    v_add3_u32 v144, s62, v20, v21
    s_lshl_b32 s62, s6, 11
    s_add_u32 s62, s62, s59
    s_add_u32 s62, s62, {ST}
    v_add_u32 v145, s62, v21
    v_mov_b32 v24, -1
    v_mov_b32 v25, -1
    v_mov_b32 v26, -1
    v_mov_b32 v27, -1
    s_lshl_b32 s61, s3, 13
    s_add_u32 s61, s61, {LW+8192}
    s_waitcnt lgkmcnt(0)
    {'s_memrealtime s[74:75]' if opt.get('probe') == 'karg' else ''}
    {'s_memrealtime s[100:101]' if stamps else ''}
    global_load_dwordx4 v[8:11], v4, s[8:9]
    global_load_dwordx4 v[12:15], v4, s[8:9] offset:16
    global_load_dwordx4 v[16:19], v5, s[8:9]
    {WQ}
    s_load_dword s35, s[30:31], 0
    s_cmp_lt_u32 s3, 2
    s_cbranch_scc1 L_sx0
    s_cmp_eq_u32 s3, 2
    s_cselect_b32 s40, s20, s22
    s_cselect_b32 s41, s21, s23
    s_cselect_b32 s64, 0, {24*128}
    s_sub_u32 s60, s61, 8192
    s_mul_i32 s62, s5, {48*128}
    s_add_u32 s62, s62, s64
    v_min_u32 v20, 23, v0
    v_lshlrev_b32 v20, 7, v20
    v_add_u32 v20, s62, v20
    s_barrier
    {'global_load_dword v94, v20, s[28:29] sc1' if TOUCH == 1 else ''}
    L_tloop:
    s_mov_b32 m0, s60
    s_add_u32 s60, s60, 1024
    buffer_load_dwordx4 v31, s[40:43], s56 offen nt lds
    s_add_u32 s56, s56, {8*3584}
    s_mov_b32 m0, s60
    s_add_u32 s60, s60, 1024
    buffer_load_dwordx4 v30, s[40:43], s56 offen nt lds
    s_add_u32 s56, s56, {8*3584}
    s_cmp_lt_u32 s60, s61
    s_cbranch_scc1 L_tloop
    s_waitcnt vmcnt({9 if TOUCH == 1 else 8})
    s_barrier
    s_barrier
    s_branch L_service
    L_sx0:
    {'' if opt.get('noclear') else 'global_store_dwordx4 v144, v[24:27], s[28:29]'}
    s_mov_b64 exec, 0xff
    {'' if opt.get('noclear') else 'global_store_dwordx4 v145, v[24:27], s[28:29]'}
    s_mov_b64 exec, -1
    s_barrier
    s_branch L_service
    """)
    a("L_loader:")
    TLB = """
    s_lshl_b32 s37, s34, 16
    s_load_dword s38, s[12:13], s36
    s_load_dword s38, s[16:17], s37
    s_load_dword s38, s[24:25], 0
    s_load_dword s38, s[26:27], 0
    s_load_dword s38, s[10:11], s36
    s_load_dword s38, s[20:21], 0
    s_load_dword s38, s[22:23], 0
    """ if opt.get('tlb') else ""
    a(f"""
    s_sub_u32 s56, s3, 4
    s_lshl_b32 s36, s56, 2
    v_add_u32 v3, s36, v2
    v_xor_b32 v4, v3, v1
    v_lshlrev_b32 v4, 4, v4
    v_lshl_add_u32 v4, v2, 8, v4
    v_and_b32 v5, 7, v3
    v_lshlrev_b32 v5, 1, v5
    v_xor_b32 v5, v5, v1
    v_lshlrev_b32 v5, 4, v5
    v_lshl_add_u32 v3, v3, 10, v5
    v_lshl_add_u32 v5, v2, 8, v5
    s_lshl_b32 s36, s6, 3
    s_add_u32 s36, s36, s4
    s_lshl_b32 s36, s36, 23
    s_lshl_b32 s59, s7, 16
    s_add_u32 s36, s36, s59
    s_add_u32 s36, s36, 0x700000
    s_mul_i32 s59, s2, {rotmul}
    s_add_u32 s59, s59, s56
    s_and_b32 s59, s59, 63
    s_lshl_b32 s59, s59, 10
    s_mov_b32 s42, 0x10000
    s_mov_b32 s46, 0x10000
    s_mov_b32 s47, 0x20000
    s_waitcnt lgkmcnt(0)
    {WQ}
    s_add_u32 s40, s10, s36
    s_addc_u32 s41, s11, 0
    s_lshl_b32 s60, s56, 10
    {TLB}
    s_barrier
    L_kloop0:
    s_mov_b32 m0, s60
    s_add_u32 s60, s60, 4096
    buffer_load_dwordx4 v4, s[40:43], s59 offen nt lds
    s_add_u32 s59, s59, 4096
    s_and_b32 s59, s59, 0xffff
    s_cmp_lt_u32 s60, {4096*kpre}
    s_cbranch_scc1 L_kloop0
    s_add_u32 s44, s12, s36
    s_addc_u32 s45, s13, 0
    s_mov_b32 s48, s16
    s_mov_b32 s49, s17
    s_lshl_b32 s57, s33, 8
    s_lshl_b32 s61, s34, 16
    s_add_u32 s61, s61, s57
    s_waitcnt vmcnt({kpre})
    s_barrier
    s_barrier
    L_kloop:
    s_waitcnt vmcnt({thr-1})
    s_mov_b32 m0, s60
    s_add_u32 s60, s60, 4096
    buffer_load_dwordx4 v4, s[40:43], s59 offen nt lds
    s_add_u32 s59, s59, 4096
    s_and_b32 s59, s59, 0xffff
    s_cmp_lt_u32 s60, 65536
    s_cbranch_scc1 L_kloop
    L_vloop:
    s_waitcnt vmcnt({thr-1})
    s_mov_b32 m0, s60
    s_add_u32 s60, s60, 4096
    buffer_load_dwordx4 v5, s[44:47], s59 offen nt lds
    s_add_u32 s59, s59, 4096
    s_and_b32 s59, s59, 0xffff
    s_cmp_lt_u32 s60, {65536 + 4096*min(vthr, vpre)}
    s_cbranch_scc1 L_vloop
    """)
    if vthr < vpre:
        a(f"""
    L_vloop1:
    s_waitcnt vmcnt({thr2-1})
    s_mov_b32 m0, s60
    s_add_u32 s60, s60, 4096
    buffer_load_dwordx4 v5, s[44:47], s59 offen nt lds
    s_add_u32 s59, s59, 4096
    s_and_b32 s59, s59, 0xffff
    s_cmp_lt_u32 s60, {65536 + 4096*vpre}
    s_cbranch_scc1 L_vloop1
    """)
    stamp("L pre issue", 0)
    a(f"s_waitcnt vmcnt({vpre}) lgkmcnt(0)")
    stamp("L K landed")
    a("s_barrier")
    stamp("B1", 5)
    tp = opt.get('tp', 14)
    nA = (tp - thr2) // 2
    nB = (20 - thr2) // 2
    def vloop(lbl, end):
        a(f"""
        {lbl}:
        s_waitcnt vmcnt({thr2-1})
        s_mov_b32 m0, s60
        s_add_u32 s60, s60, 4096
        buffer_load_dwordx4 v5, s[44:47], s59 offen nt lds
        s_add_u32 s59, s59, 4096
        s_and_b32 s59, s59, 0xffff
        s_cmp_lt_u32 s60, {65536 + 4096*end}
        s_cbranch_scc1 {lbl}
        """)
    vloop("L_vloop2", tp)
    a(f"s_waitcnt vmcnt({tp - 2*nA})")
    stamp("L at Bp", 2)
    a("s_barrier")
    stamp("Bp", 7)
    if tp < 16: vloop("L_vloop3", 16)
    a(f"""
    s_lshl_b32 s60, s56, 13
    s_add_u32 s60, s60, {LW}
    """)
    for t in range(4):
        a(f"""
        s_add_u32 m0, s60, {t*1024}
        s_waitcnt vmcnt({thr2-1})
        buffer_load_dwordx4 v3, s[48:51], s61 offen nt lds
        s_add_u32 s61, s61, 16384
        """)
    a(f"s_waitcnt vmcnt({20 - 2*nB})")
    stamp("L at Bq", 3)
    a("s_barrier")
    a("s_waitcnt vmcnt(4)")
    stamp("L V landed", 4)
    a("s_barrier")
    stamp("BB", 8)
    a("s_waitcnt vmcnt(0)")
    stamp("L wo landed", 9)
    a("s_barrier")
    a("s_branch L_fin" if stamps else ("s_branch L_end" if opt.get('probe') else "s_endpgm"))

    a("L_service:")
    a(f"""
    s_lshl_b32 s67, s4, 5
    s_add_u32 s67, s67, s5
    s_lshl_b32 s59, s7, 7
    s_mov_b32 s62, 0xffff0000
    s_mov_b32 s64, 0x000f000f
    s_mov_b32 s65, 0x000f000f
    v_and_b32 v4, 3, v1
    v_lshrrev_b32 v5, 2, v1
    v_and_b32 v6, 1, v2
    s_lshl_b32 s57, s3, 2
    v_add_u32 v95, s57, v2
    v_and_b32 v7, 7, v95
    v_lshlrev_b32 v7, 1, v7
    v_xor_b32 v7, v7, v1
    v_lshlrev_b32 v7, 4, v7
    v_lshl_add_u32 v95, v95, 10, v7
    s_lshl_b32 s50, s63, 15
    s_lshl_b32 s57, s33, 8
    s_add_u32 s50, s50, s57
    s_mov_b32 s52, s24
    s_mov_b32 s53, s25
    s_mov_b32 s55, 0x20000
    v_lshrrev_b32 v96, 3, v1
    v_lshl_add_u32 v96, v6, 1, v96
    v_lshlrev_b32 v96, 5, v96
    v_lshl_add_u32 v96, v5, 7, v96
    v_lshl_add_u32 v96, v2, 10, v96
    v_lshl_add_u32 v96, v4, 3, v96
    s_sub_u32 s60, s61, 8192
    s_lshl_b32 s57, s3, 6
    s_movk_i32 s58, 0x2000
    s_cmp_lt_u32 s3, 2
    s_cselect_b32 s57, s57, 0
    s_cselect_b32 s56, {LW}, s60
    s_cselect_b32 s58, s58, 64
    v_xor_b32 v96, s57, v96
    v_add_u32 v96, s56, v96
    v_xor_b32 v97, 32, v96
    v_xor_b32 v92, s58, v96
    v_xor_b32 v93, 32, v92
    s_cselect_b32 s57, 13, 8
    v_and_b32 v98, 1, v1
    v_lshlrev_b32 v98, s57, v98
    v_lshrrev_b32 v7, 1, v1
    v_lshl_add_u32 v98, v7, 6, v98
    v_lshl_add_u32 v98, v2, 4, v98
    s_lshl_b32 s57, s32, 8
    s_lshl_b32 s58, s3, 7
    s_add_u32 s57, s57, s58
    s_add_u32 s57, s57, {QP}
    s_lshr_b32 s63, s32, 1
    s_lshl_b32 s63, s63, 13
    s_add_u32 s63, s63, {GP}
    s_and_b32 s56, s32, 1
    s_lshl_b32 s58, s56, 10
    s_add_u32 s58, s58, s63
    s_lshl_b32 s56, s56, 7
    s_add_u32 s63, s63, s56
    s_lshl_b32 s56, s3, 9
    s_add_u32 s58, s58, s56
    s_sub_u32 s58, s58, 1024
    s_cmp_lt_u32 s3, 2
    s_cselect_b32 s57, s57, s58
    s_lshl_b32 s58, s33, 11
    s_add_u32 s57, s57, s58
    v_add_u32 v98, s57, v98
    s_lshl_b32 s57, s6, 13
    s_lshl_b32 s58, s3, 10
    s_add_u32 s57, s57, s58
    s_add_u32 s57, s57, {QP+4096}
    v_lshlrev_b32 v99, 4, v0
    v_add_u32 v99, s57, v99
    s_add_u32 s60, s60, 6144
    v_lshlrev_b32 v100, 3, v0
    v_add_u32 v100, s60, v100
    s_lshl_b32 s58, s6, 11
    s_add_u32 s58, s58, s59
    s_add_u32 s58, s58, {ST}
    v_lshlrev_b32 v118, 2, v0
    v_add_u32 v118, s58, v118
    v_mov_b32 v121, 0xff
    s_getreg_b32 s68, hwreg(HW_REG_XCC_ID)
    s_and_b32 s68, s68, 7
    s_cmp_lt_u32 s3, 2
    s_cbranch_scc0 L_ln
    s_waitcnt vmcnt({2 if opt.get('noclear') else 4})
    L_ln:
    """)
    stamp("S x landed", 0)
    for i in range(8):
        a(f"v_lshlrev_b32 v{32+2*i}, 16, v{8+i}")
        a(f"v_and_b32 v{33+2*i}, s62, v{8+i}")
    for i in range(4):
        a(f"v_pk_add_f32 v[{48+2*i}:{49+2*i}], v[{32+4*i}:{33+4*i}], v[{34+4*i}:{35+4*i}]")
    a("v_pk_add_f32 v[48:49], v[48:49], v[50:51]")
    a("v_pk_add_f32 v[52:53], v[52:53], v[54:55]")
    a("v_pk_add_f32 v[48:49], v[48:49], v[52:53]")
    a("v_add_f32 v48, v48, v49")
    reduce5(48, 49)
    a("v_mul_f32 v48, 0xbb000000, v48")
    a("v_mov_b32 v49, v48")
    for i in range(8):
        a(f"v_pk_add_f32 v[{32+2*i}:{33+2*i}], v[{32+2*i}:{33+2*i}], v[48:49]")
    a("v_pk_mul_f32 v[50:51], v[32:33], v[32:33]")
    a("v_pk_mul_f32 v[52:53], v[34:35], v[34:35]")
    for i in range(2, 8):
        d = 50 + 2 * (i & 1)
        a(f"v_pk_fma_f32 v[{d}:{d+1}], v[{32+2*i}:{33+2*i}], v[{32+2*i}:{33+2*i}], v[{d}:{d+1}]")
    a("v_pk_add_f32 v[50:51], v[50:51], v[52:53]")
    a("v_add_f32 v50, v50, v51")
    a("""
    v_cvt_pk_bf16_f32 v48, v48, v48
    v_and_b32 v48, s62, v48
    v_mov_b32 v49, v48
    """)
    dpp("v_add_f32", 50, "quad_perm:[2,3,0,1]")
    fr = []
    for i in range(4):
        fr.append(f"v_lshlrev_b32 v{32+2*i}, 16, v{16+i}")
        fr.append(f"v_and_b32 v{33+2*i}, s62, v{16+i}")
    for i in range(4):
        fr.append(f"v_pk_add_f32 v[{32+2*i}:{33+2*i}], v[{32+2*i}:{33+2*i}], v[48:49]")
    for i in range(4):
        fr.append(f"v_cvt_pk_bf16_f32 v{16+i}, v{32+2*i}, v{33+2*i}")
    for i in range(4):
        fr.append(f"v_lshlrev_b32 v{32+2*i}, 16, v{16+i}")
        fr.append(f"v_and_b32 v{33+2*i}, s62, v{16+i}")
    ch = [f"v_add_f32_dpp v50, v50, v50 row_ror:4 {DPPM}", None, None,
          f"v_add_f32_dpp v50, v50, v50 row_ror:8 {DPPM}", "v_mov_b32 v51, v50", None, None,
          "v_permlane16_swap_b32 v50, v51", "v_add_f32 v50, v50, v51", "v_mov_b32 v51, v50", None, None,
          "v_permlane32_swap_b32 v50, v51", "v_add_f32 v50, v50, v51",
          "v_mul_f32 v50, 0x3b000000, v50", "v_cvt_pk_bf16_f32 v50, v50, v50", "v_and_b32 v50, s62, v50",
          "v_add_f32 v50, 0x3727c5ac, v50", "v_cvt_pk_bf16_f32 v50, v50, v50", "v_and_b32 v50, s62, v50",
          "v_sqrt_f32 v50, v50", None, "v_cvt_pk_bf16_f32 v50, v50, v50", "v_and_b32 v50, s62, v50",
          "v_rcp_f32 v50, v50", None]
    for c in ch:
        a(c if c else fr.pop(0))
    a("v_mov_b32 v51, v50")
    for x in fr: a(x)
    for i in range(4):
        a(f"v_pk_mul_f32 v[{32+2*i}:{33+2*i}], v[{32+2*i}:{33+2*i}], v[50:51]")
    for i in range(4):
        a(f"v_cvt_pk_bf16_f32 v{16+i}, v{32+2*i}, v{33+2*i}")
    for jj in range(1, 4):
        for i in range(4):
            a(f"v_mov_b32_dpp v{16+4*jj+i}, v{16+i} row_ror:{16-4*jj} {DPPM}")
    a(f"""
    s_waitcnt lgkmcnt(0)
    s_add_u32 s35, s35, {EINC}
    s_lshr_b32 s36, s35, 8
    s_lshr_b32 s37, s35, 16
    s_lshr_b32 s38, s35, 24
    s_and_b32 s38, s38, 0xf8
    s_or_b32 s38, s38, s68
    s_and_b32 s39, s35, 0x00ffffff
    s_lshl_b32 s57, s38, 24
    s_or_b32 s39, s39, s57
    v_cmp_lt_u32 vcc, 1, v1
    """)
    stamp("S LN done")
    a(f"""
    s_cmp_lt_u32 s3, 2
    s_waitcnt vmcnt(0)
    s_cbranch_scc0 L_w3
    s_barrier
    L_w3:
    """)
    stamp("S tile landed")
    TA = [96, 97, 92, 93]
    for aa in range(4):
        for ss in range(2):
            for e in range(2):
                d = 48 + 8 * aa + 4 * ss + 2 * e
                a(f"ds_read_b64_tr_b16 v[{d}:{d+1}], v{TA[aa]} offset:{ss*4096+e*512}")
    def p1mfma(aa):
        for ss in range(2):
            bi = 16 + 4 * (2 * (aa >> 1) + ss)
            a(f"v_mfma_f32_16x16x32_bf16 v[{32+4*aa}:{35+4*aa}], v[{48+8*aa+4*ss}:{51+8*aa+4*ss}], v[{bi}:{bi+3}], {'0' if ss==0 else f'v[{32+4*aa}:{35+4*aa}]'}")
    a("s_waitcnt lgkmcnt(8)")
    p1mfma(0); p1mfma(1)
    a("""
    s_waitcnt lgkmcnt(0)
    s_cbranch_scc0 L_w4
    s_barrier
    L_w4:
    """)
    p1mfma(2); p1mfma(3)
    for i in range(4):
        a(f"v_cndmask_b32 v{32+i}, v{32+i}, v{36+i}, vcc")
    for i in range(4):
        a(f"v_cndmask_b32 v{40+i}, v{40+i}, v{44+i}, vcc")
    a("s_mov_b64 exec, s[64:65]")
    a("s_cbranch_scc1 L_w5")
    for i in range(4):
        a(f"v_bfi_b32 v{40+i}, v121, s{35+i}, v{40+i}")
    a("""
    @PUB@global_store_dwordx4 v98, v[40:43], s[28:29] offset:128
    s_branch L_w6
    L_w5:
    v_pk_add_f32 v[32:33], v[32:33], v[40:41]
    v_pk_add_f32 v[34:35], v[34:35], v[42:43]
    L_w6:
    """)
    for i in range(4):
        a(f"v_bfi_b32 v{32+i}, v121, s{35+i}, v{32+i}")
    a(f"""
    @PUB@global_store_dwordx4 v98, v[32:35], s[28:29]
    s_mov_b64 exec, -1
    """)
    stamp("S published")
    a("""
    s_sub_u32 m0, s61, 4096
    s_add_u32 s51, s50, 16384
    buffer_load_dwordx4 v95, s[52:55], s50 offen nt lds
    s_sub_u32 m0, s61, 3072
    s_nop 0
    buffer_load_dwordx4 v95, s[52:55], s51 offen nt lds
    """)
    a(f"""
    v_xor_b32 v101, v2, v1
    v_lshlrev_b32 v101, 4, v101
    v_lshl_add_u32 v101, v1, 8, v101
    s_lshl_b32 s59, s3, 14
    v_add_u32 v101, s59, v101
    v_xor_b32 v102, 64, v101
    v_xor_b32 v103, 0x80, v101
    v_xor_b32 v104, 0xc0, v101
    v_and_b32 v105, 2, v1
    v_lshlrev_b32 v105, 12, v105
    v_and_b32 v7, 1, v1
    v_lshl_add_u32 v105, v7, 8, v105
    v_lshl_add_u32 v105, v2, 4, v105
    v_add_u32 v105, {R(0)}, v105
    v_lshrrev_b32 v106, 1, v5
    v_lshlrev_b32 v106, 8, v106
    v_lshl_add_u32 v106, v2, 6, v106
    v_lshl_add_u32 v106, v4, 4, v106
    v_and_b32 v8, 1, v5
    v_lshl_add_u32 v106, v8, 3, v106
    s_lshl_b32 s59, s3, 9
    s_add_u32 s59, s59, {PB}
    v_add_u32 v106, s59, v106
    v_lshlrev_b32 v122, 5, v4
    v_add_u32 v122, {MLB}, v122
    s_lshl_b32 s59, s3, 2
    v_add_u32 v107, s59, v122
    s_and_b32 s56, s3, 1
    v_lshlrev_b32 v108, 10, v5
    v_and_b32 v8, 2, v1
    v_lshl_add_u32 v108, v8, 8, v108
    v_lshl_add_u32 v108, v7, 6, v108
    v_lshl_add_u32 v108, v2, 4, v108
    s_lshl_b32 s59, s56, 8
    s_add_u32 s59, s59, s63
    s_add_u32 s59, s59, 2048
    v_add_u32 v108, s59, v108
    s_mov_b32 s57, s56
    s_lshl_b32 s58, s57, 15
    s_lshl_b32 s59, s32, 12
    s_add_u32 s58, s58, s59
    s_add_u32 s58, s58, {OP}
    v_lshlrev_b32 v123, 7, v1
    v_lshl_add_u32 v109, v2, 4, v123
    v_add_u32 v109, s58, v109
    s_lshl_b32 s58, s57, 11
    s_add_u32 s59, s58, {FL}
    v_add_u32 v123, s59, v123
    s_lshr_b32 s59, s32, 1
    s_lshl_b32 s59, s59, 2
    s_add_u32 s58, s58, s59
    s_add_u32 s58, s58, {ST}
    v_lshlrev_b32 v110, 9, v2
    v_add_u32 v110, s58, v110
    v_lshl_add_u32 v8, v6, 2, v5
    s_lshl_b32 s58, s3, 1
    s_and_b32 s58, s58, 4
    v_xor_b32 v8, s58, v8
    v_lshlrev_b32 v8, 5, v8
    v_lshl_add_u32 v111, v5, 8, v8
    v_lshl_add_u32 v111, v4, 3, v111
    v_lshl_add_u32 v111, v2, 13, v111
    v_add_u32 v111, {LW}, v111
    v_xor_b32 v112, 32, v111
    v_xor_b32 v113, 64, v111
    v_xor_b32 v114, 0x60, v111
    v_lshrrev_b32 v115, 1, v2
    v_lshl_add_u32 v115, v6, 1, v115
    v_lshlrev_b32 v117, 1, v115
    v_lshl_add_u32 v115, v115, 4, v1
    v_lshlrev_b32 v115, 2, v115
    s_lshl_b32 s58, s56, 20
    s_lshl_b32 s59, s33, 18
    s_add_u32 s58, s58, s59
    s_lshr_b32 s59, s3, 1
    s_lshl_b32 s59, s59, 14
    s_add_u32 s58, s58, s59
    s_lshl_b32 s59, s34, 8
    s_add_u32 s58, s58, s59
    s_add_u32 s58, s58, {FP+EX}
    v_add_u32 v115, s58, v115
    s_lshl_b32 s58, s67, 3
    v_add_u32 v120, s58, v117
    v_lshlrev_b32 v117, 3, v4
    v_lshrrev_b32 v117, v117, s35
    s_lshl_b32 s58, s6, 14
    s_lshl_b32 s59, s7, 4
    s_add_u32 s58, s58, s59
    s_add_u32 s58, s58, {FP}
    v_lshlrev_b32 v116, 8, v0
    v_add_u32 v116, s58, v116
    v_lshlrev_b32 v250, 4, v4
    v_lshl_add_u32 v250, v2, 6, v250
    v_add_u32 v250, {PB}, v250
    v_lshl_add_u32 v248, v2, 2, v5
    v_and_b32 v249, 7, v248
    s_lshl_b32 s58, s3, 1
    v_xor_b32 v249, s58, v249
    v_lshlrev_b32 v249, 5, v249
    v_lshl_add_u32 v248, v248, 8, v249
    v_lshl_add_u32 v248, v4, 3, v248
    v_add_u32 v248, 0x10000, v248
    v_xor_b32 v249, 32, v248
    s_lshl_b32 s58, s6, 15
    s_lshl_b32 s59, s3, 11
    s_add_u32 s58, s58, s59
    s_lshl_b32 s59, s7, 7
    s_add_u32 s58, s58, s59
    s_add_u32 s58, s58, {OP}
    v_lshlrev_b32 v251, 13, v4
    v_lshl_add_u32 v251, v2, 4, v251
    v_add_u32 v251, s58, v251
    s_mov_b32 s58, 0x0c0c0400
    s_mov_b32 s59, 0x04000c0c
    s_mov_b32 s61, 0xf8ffffff
    global_load_ushort v119, v120, s[8:9]
    s_cmp_ge_u32 s3, {0 if opt.get('nogather') else 2}
    s_cbranch_scc1 L_qskip
    {'global_load_dword v144, v144, s[28:29] ' + OTF if OT == 1 else ''}
    {'global_load_dword v145, v145, s[28:29] ' + OTF if OT == 1 else ''}
    {'s_sleep ' + str(opt['qdelay']) if opt.get('qdelay') else ''}
    s_mov_b32 s57, 0
    """)
    for c in range(4):
        a(f"global_load_dwordx4 v[{32+4*c}:{35+4*c}], v99, s[28:29] offset:{c*2048-4096} @L1@")
    a("s_branch L_qchk")
    a("L_qpoll:")
    for c in range(4):
        a(f"global_load_dwordx4 v[{32+4*c}:{35+4*c}], v99, s[28:29] offset:{c*2048-4096} @LF@")
    a("L_qchk:")
    a("s_waitcnt vmcnt(0)")
    for c in range(4):
        a(f"v_perm_b32 v{48+2*c}, v{33+4*c}, v{32+4*c}, s58")
        a(f"v_perm_b32 v{49+2*c}, v{35+4*c}, v{34+4*c}, s59")
        a(f"v_or_b32 v{48+2*c}, v{48+2*c}, v{49+2*c}")
        a(f"v_xor_b32 v{48+2*c}, s39, v{48+2*c}")
    a(f"""
    v_or3_b32 v48, v48, v50, v52
    v_or_b32 v56, v48, v54
    v_and_b32 v48, s61, v56
    v_cmp_ne_u32 vcc, 0, v48
    s_add_u32 s57, s57, 1
    s_mov_b64 exec, vcc
    s_cbranch_execz L_qdone
    s_cmp_lt_u32 s57, {NFAST}
    s_cbranch_scc1 L_qpoll
    buffer_wbl2 sc1
    buffer_inv sc1
    s_waitcnt vmcnt(0)
    s_cmp_lt_u32 s57, {SPIN}
    s_cbranch_scc1 L_qpoll
    L_qdone:
    s_mov_b64 exec, -1
    v_cmp_ne_u32 vcc, 0, v56
    s_movk_i32 s56, 0xff00
    """)
    for i in range(16):
        a(f"v_and_b32 v{32+i}, s56, v{32+i}")
    a(f"""
    s_or_b32 s56, vcc_lo, vcc_hi
    v_pk_add_f32 v[32:33], v[32:33], v[36:37]
    v_pk_add_f32 v[34:35], v[34:35], v[38:39]
    v_pk_add_f32 v[40:41], v[40:41], v[44:45]
    v_pk_add_f32 v[42:43], v[42:43], v[46:47]
    v_pk_add_f32 v[32:33], v[32:33], v[40:41]
    v_pk_add_f32 v[34:35], v[34:35], v[42:43]
    v_cvt_pk_bf16_f32 v32, v32, v33
    v_cvt_pk_bf16_f32 v33, v34, v35
    v_mov_b32 v34, s56
    v_mov_b32 v35, s60
    ds_write_b64 v100, v[32:33]
    ds_write_b32 v35, v34 offset:{MODEB}
    """)
    if stamps: a("s_mov_b32 s69, s57")
    stamp("S gathered")
    a(f"""
    L_qskip:
    v_mov_b32 v10, {R(0)+MODEB}
    s_waitcnt vmcnt(0) lgkmcnt(0)
    s_barrier
    """)
    stamp("B1", 5)
    a("""
    ds_read_b32 v8, v10
    ds_read_b32 v9, v10 offset:8192
    """)
    for j in range(4):
        a(f"ds_read_b128 v[{16+4*j}:{19+4*j}], v105 offset:{64*j}")
    def kread(blk):
        for j in range(4):
            d = 32 + 16 * blk + 4 * j
            a(f"ds_read_b128 v[{d}:{d+3}], v{101+j} offset:{4096*blk}")
    kread(0); kread(1)
    a("global_load_dwordx4 v[124:127], v108, s[28:29] offset:-2048 @L1@")
    a("global_load_dwordx4 v[12:15], v108, s[28:29] offset:2048 @L1@")
    if OT == 2:
        a(f"""
        s_cmp_ge_u32 s3, 2
        s_cbranch_scc1 L_not
        global_load_dword v144, v144, s[28:29] {OTF}
        global_load_dword v145, v145, s[28:29] {OTF}
        L_not:
        """)
    for blk in range(4):
        a(f"s_waitcnt lgkmcnt({4 if blk < 3 else 0})")
        for j in range(4):
            d = 32 + 16 * blk + 4 * j
            ac = 128 + 4 * blk
            a(f"v_mfma_f32_16x16x32_bf16 v[{ac}:{ac+3}], v[{d}:{d+3}], v[{16+4*j}:{19+4*j}], {'0' if j==0 else f'v[{ac}:{ac+3}]'}")
        if blk + 2 < 4: kread(blk + 2)
        if blk == 0:
            a("v_or_b32 v8, v8, v9")
            a("v_cmp_eq_u32 s[44:45], 1, v5")
            a("v_cmp_eq_u32 s[46:47], 2, v5")
            a("v_cmp_eq_u32 s[48:49], 3, v5")
            a("v_readfirstlane_b32 s60, v8")
            if opt.get('nogather'): a("s_mov_b32 s60, 0")
    a(f"s_mov_b32 s56, {SCALE}")
    a(f"s_mov_b32 s57, {LOG2E}")
    for blk in range(1, 4):
        for i in range(4):
            a(f"v_cndmask_b32 v{128+i}, v{128+i}, v{128+4*blk+i}, s[{42+2*blk}:{43+2*blk}]")
    a("""
    v_cvt_pk_bf16_f32 v40, v128, v129
    v_cvt_pk_bf16_f32 v41, v130, v131
    v_lshlrev_b32 v32, 16, v40
    v_and_b32 v33, s62, v40
    v_lshlrev_b32 v34, 16, v41
    v_and_b32 v35, s62, v41
    """)
    for i in range(4): a(f"v_mul_f32 v{32+i}, s56, v{32+i}")
    a("""
    v_cvt_pk_bf16_f32 v40, v32, v33
    v_cvt_pk_bf16_f32 v41, v34, v35
    v_lshlrev_b32 v32, 16, v40
    v_and_b32 v33, s62, v40
    v_lshlrev_b32 v34, 16, v41
    v_and_b32 v35, s62, v41
    v_max3_f32 v40, v32, v33, v34
    v_max_f32 v40, v40, v35
    """)
    reduce4(40, 41, "v_max_f32")
    for i in range(4): a(f"v_sub_f32 v{32+i}, v{32+i}, v40")
    for i in range(4): a(f"v_mul_f32 v{32+i}, s57, v{32+i}")
    for i in range(4): a(f"v_exp_f32 v{32+i}, v{32+i}")
    a("""
    v_mul_f32 v40, s57, v40
    v_cvt_pk_bf16_f32 v44, v32, v33
    v_cvt_pk_bf16_f32 v45, v34, v35
    ds_write_b64 v106, v[44:45]
    ds_write_b32 v107, v40
    v_add_f32 v32, v32, v33
    v_add_f32 v34, v34, v35
    v_add_f32 v32, v32, v34
    """)
    reduce4(32, 33)
    a("""
    ds_write_b32 v107, v32 offset:16
    s_cmp_eq_u32 s60, 0
    s_cbranch_scc1 L_nowb
    buffer_wbl2 sc1
    L_nowb:
    """)
    stamp("S softmax done", 6)
    a("""
    s_waitcnt lgkmcnt(0)
    s_barrier
    """)
    stamp("Bp", 7)
    PF = 148; VF = 180; AC = 212; AL = 244
    def rd(u):
        for q in range(2):
            for e in range(2):
                d = VF + 8 * (u % 4) + 4 * q + 2 * e
                a(f"ds_read_b64_tr_b16 v[{d}:{d+1}], v{248+q} offset:{8192*u+4096*e}")
    def pvm(u):
        for q in range(2):
            d = VF + 8 * (u % 4) + 4 * q
            ac = AC + 8 * (u >> 1) + 4 * q
            a(f"v_mfma_f32_16x16x32_bf16 v[{ac}:{ac+3}], v[{d}:{d+3}], v[{PF+4*u}:{PF+3+4*u}], {'0' if u % 2 == 0 else f'v[{ac}:{ac+3}]'}")
    a("""
    ds_read_b128 v[40:43], v122
    ds_read_b128 v[44:47], v122 offset:16
    """)
    for u in range(8):
        a(f"ds_read_b128 v[{PF+4*u}:{PF+3+4*u}], v250 offset:{256*u}")
    a("""
    s_waitcnt lgkmcnt(8)
    v_max3_f32 v48, v40, v41, v42
    v_max_f32 v48, v48, v43
    """)
    for i in range(4): a(f"v_sub_f32 v{40+i}, v{40+i}, v48")
    for i in range(4): a(f"v_exp_f32 v{40+i}, v{40+i}")
    a("""
    v_mul_f32 v49, v40, v44
    v_fmac_f32 v49, v41, v45
    v_fmac_f32 v49, v42, v46
    v_fmac_f32 v49, v43, v47
    v_log_f32 v50, v49
    v_rcp_f32 v49, v49
    s_cmp_lg_u32 s3, 3
    s_cbranch_scc1 L_nostat
    v_add_f32 v52, v50, v48
    s_mov_b32 exec_hi, 0
    global_store_dword v118, v52, s[28:29]
    s_mov_b64 exec, -1
    L_nostat:
    s_waitcnt lgkmcnt(0)
    """)
    assert nA <= 4 and nB - nA <= 4
    for u in range(nA): rd(u)
    for i in range(4): a(f"v_mul_f32 v{AL+i}, v{40+i}, v49")
    for u in range(nA):
        a(f"s_waitcnt lgkmcnt({min(15, 4*(nA-1-u))})")
        pvm(u)
    for q in range(4):
        for e in range(2):
            d = 80 + 4 * q + 2 * e
            a(f"ds_read_b64_tr_b16 v[{d}:{d+1}], v{111+q} offset:{(4+e)*1024}")
    a("""
    s_cbranch_scc1 L_nostat1
    s_waitcnt vmcnt(1)
    s_branch L_nostat2
    L_nostat1:
    s_waitcnt vmcnt(0)
    L_nostat2:
    """)
    a(f"""
    s_mov_b32 s57, 0
    s_branch L_gcheck
    L_gpoll:
    s_cmp_eq_u32 s60, 0
    s_cbranch_scc1 L_gload
    buffer_inv sc1
    s_waitcnt vmcnt(0)
    L_gload:
    global_load_dwordx4 v[124:127], v108, s[28:29] offset:-2048 @LF@
    global_load_dwordx4 v[12:15], v108, s[28:29] offset:2048 @LF@
    s_waitcnt vmcnt(0)
    L_gcheck:
    v_perm_b32 v48, v125, v124, s58
    v_perm_b32 v49, v127, v126, s59
    v_perm_b32 v50, v13, v12, s58
    v_perm_b32 v51, v15, v14, s59
    v_or_b32 v48, v48, v49
    v_or_b32 v50, v50, v51
    v_xor_b32 v48, s39, v48
    v_xor_b32 v50, s39, v50
    v_or_b32 v48, v48, v50
    v_and_b32 v48, s61, v48
    v_cmp_ne_u32 vcc, 0, v48
    s_add_u32 s57, s57, 1
    s_mov_b64 exec, vcc
    s_cbranch_execz L_gdone
    s_cmp_lt_u32 s57, {SPIN}
    s_cbranch_scc1 L_gpoll
    L_gdone:
    s_mov_b64 exec, -1
    s_movk_i32 s56, 0xff00
    """)
    for i in range(4): a(f"v_and_b32 v{124+i}, s56, v{124+i}")
    for i in range(4): a(f"v_and_b32 v{12+i}, s56, v{12+i}")
    a("v_pk_add_f32 v[124:125], v[124:125], v[12:13]")
    a("v_pk_add_f32 v[126:127], v[126:127], v[14:15]")
    for m in ("row_ror:4", "row_ror:8"):
        for i in range(4): dpp("v_add_f32", 124 + i, m)
    a("""
    v_cvt_pk_bf16_f32 v48, v124, v125
    v_cvt_pk_bf16_f32 v49, v126, v127
    v_lshlrev_b32 v124, 16, v48
    v_and_b32 v125, s62, v48
    v_lshlrev_b32 v126, 16, v49
    v_and_b32 v127, s62, v49
    """)
    for i in range(4): a(f"v_max_f32 v{48+i}, 0, v{124+i}")
    for i in range(4): a(f"v_mul_f32_dpp v{48+i}, v{124+i}, v{48+i} quad_perm:[2,3,0,1] {DPPM}")
    a("""
    v_cmp_eq_u32 s[44:45], 0, v1
    v_cmp_eq_u32 s[46:47], 1, v1
    v_cvt_pk_bf16_f32 v48, v48, v49
    v_cvt_pk_bf16_f32 v49, v50, v51
    v_cndmask_b32 v28, 0, v48, s[44:45]
    v_cndmask_b32 v29, 0, v49, s[44:45]
    v_cndmask_b32 v30, 0, v48, s[46:47]
    v_cndmask_b32 v31, 0, v49, s[46:47]
    s_waitcnt lgkmcnt(0)
    """)
    for q in range(4):
        a(f"v_mfma_f32_16x16x32_bf16 v[{32+4*q}:{35+4*q}], v[28:31], v[{80+4*q}:{83+4*q}], 0")
    SG = """
    global_load_dword v24, v110, s[28:29] @TF@
    global_load_dword v25, v110, s[28:29] offset:128 @TF@
    global_load_dword v26, v110, s[28:29] offset:256 @TF@
    global_load_dword v27, v110, s[28:29] offset:384 @TF@
    """
    OG = """
    global_load_dwordx4 v[16:19], v109, s[28:29] @TF@
    global_load_dwordx4 v[20:23], v109, s[28:29] offset:2048 @TF@
    """
    def weights():
        a("""
        v_max3_f32 v124, v24, v25, v26
        v_max_f32 v124, v124, v27
        """)
        reduce_g(124, 125, "v_max_f32")
        for i in range(4): a(f"v_sub_f32 v{8+i}, v{24+i}, v124")
        for i in range(4): a(f"v_exp_f32 v{8+i}, v{8+i}")
        a("""
        v_add_f32 v124, v8, v9
        v_add_f32 v125, v10, v11
        v_add_f32 v124, v124, v125
        """)
        reduce_g(124, 125)
        a("v_rcp_f32 v124, v124")
        for i in range(4): a(f"v_mul_f32 v{8+i}, v{8+i}, v124")
    for q in range(4):
        a(f"v_add_f32 v{32+4*q}, v{32+4*q}, v{33+4*q}")
    a("v_mov_b32 v33, s35")
    a("s_barrier")
    for u in range(nA, nB): rd(u)
    for u in range(nA, nB):
        a(f"s_waitcnt lgkmcnt({4*(nB-1-u)})")
        pvm(u)
    nW = nB // 2
    for i in range(8): a(f"v_mul_f32 v{AC+i}, v{AC+i}, v{AL}")
    for w_ in range(1, nW):
        for i in range(8): a(f"v_fmac_f32 v{AC+i}, v{AC+8*w_+i}, v{AL+w_}")
    a("s_barrier")
    stamp("BB", 8)
    for u in range(nB, 8): rd(u)
    a(SG)
    for u in range(nB, 8):
        a(f"s_waitcnt lgkmcnt({4*(7-u)})")
        pvm(u)
    for w_ in range(nW, 4):
        for i in range(8): a(f"v_fmac_f32 v{AC+i}, v{AC+8*w_+i}, v{AL+w_}")
    for i in range(4):
        a(f"v_cvt_pk_bf16_f32 v{AC+i}, v{AC+2*i}, v{AC+1+2*i}")
    a(f"""
    s_mov_b64 exec, s[64:65]
    global_store_dwordx4 v251, v[{AC}:{AC+3}], s[28:29]
    s_mov_b64 exec, -1
    s_cmp_eq_u32 s60, 0
    s_cbranch_scc1 L_sbc
    s_waitcnt vmcnt(0)
    L_sbc:
    s_barrier
    """)
    stamp("BC", 10)
    for ks in range(2):
        for q in range(4):
            for e in range(2):
                d = 48 + 16 * ks + 4 * q + 2 * e
                a(f"ds_read_b64_tr_b16 v[{d}:{d+1}], v{111+q} offset:{(2*ks+e)*1024}")
    a(f"""
    s_mov_b32 s57, 0
    s_cbranch_scc1 L_fast2
    s_cmp_lg_u32 s3, 0
    s_cbranch_scc1 L_slow2
    buffer_wbl2 sc1
    s_waitcnt vmcnt(0)
    v_add_u32 v34, {FL-ST}, v118
    s_mov_b64 exec, 1
    global_store_dword v34, v33, s[28:29] sc1
    s_mov_b64 exec, -1
    L_slow2:
    global_load_dword v34, v123, s[28:29] sc1
    s_waitcnt vmcnt(0)
    v_cmp_ne_u32 vcc, s35, v34
    s_add_u32 s57, s57, 1
    s_cbranch_vccz L_slow3
    s_cmp_lt_u32 s57, {SPIN}
    s_cbranch_scc1 L_slow2
    L_slow3:
    buffer_inv sc1
    s_waitcnt vmcnt(0)
    {SG}
    s_waitcnt vmcnt(0)
    L_fast2:
    """)
    stamp("og issue", 9); nst[0] = 11
    a(f"""
    {OG}
    s_waitcnt vmcnt(3)
    s_branch L_schk
    L_spoll:
    {SG}
    s_waitcnt vmcnt(0)
    L_schk:
    v_max3_u32 v124, v24, v25, v26
    v_max_u32 v124, v124, v27
    v_cmp_eq_u32 vcc, -1, v124
    s_add_u32 s57, s57, 1
    s_mov_b64 exec, vcc
    s_cbranch_execz L_sdone
    s_cmp_lt_u32 s57, {SPIN}
    s_cbranch_scc1 L_spoll
    L_sdone:
    s_mov_b64 exec, -1
    """)
    weights()
    if stamps: a("s_mov_b32 s69, s57")
    a(f"""
    s_mov_b32 s57, 0
    s_branch L_ochk
    L_opoll:
    {OG}
    L_ochk:
    s_waitcnt vmcnt(0)
    v_max3_u32 v124, v16, v17, v18
    v_max3_u32 v125, v19, v20, v21
    v_max3_u32 v124, v124, v22, v23
    v_max_u32 v124, v124, v125
    v_cmp_eq_u32 vcc, -1, v124
    s_add_u32 s57, s57, 1
    s_mov_b64 exec, vcc
    s_cbranch_execz L_odone
    s_cmp_lt_u32 s57, {SPIN}
    s_cbranch_scc1 L_opoll
    L_odone:
    s_mov_b64 exec, -1
    s_waitcnt lgkmcnt(0)
    """)
    if stamps: a("s_mov_b32 s68, s57")
    stamp("o gathered")
    for q in range(4):
        for ks in range(2):
            a(f"v_mfma_f32_16x16x32_bf16 v[{128+4*q}:{131+4*q}], v[{16+4*ks}:{19+4*ks}], v[{48+16*ks+4*q}:{51+16*ks+4*q}], {'0' if ks==0 else f'v[{128+4*q}:{131+4*q}]'}")
    for q in range(4):
        for i in range(4):
            a(f"v_fmac_f32 v{32+4*q}, v{8+i}, v{128+4*q+i}")
        if q == 2:
            a("v_permlane32_swap_b32 v32, v36")
            a("v_add_f32 v32, v32, v36")
    a("""
    v_permlane32_swap_b32 v40, v44
    v_add_f32 v40, v40, v44
    v_permlane16_swap_b32 v32, v40
    v_add_f32 v36, v32, v40
    v_bfi_b32 v36, v121, v117, v36
    s_mov_b32 s44, 0x11111111
    s_mov_b32 s45, 0x11111111
    """)
    for i in range(1, 4):
        a(f"v_mov_b32_dpp v{36+i}, v36 quad_perm:[{i},{i},{i},{i}] {DPPM}")
    a(f"""
    s_mov_b64 exec, s[44:45]
    global_store_dwordx4 v115, v[36:39], s[30:31] {opt.get('ffs', 'sc1')}
    s_mov_b64 exec, -1
    """)
    stamp("final published")
    if not opt.get('nofb'): a("s_barrier")
    a(f"""
    s_cmp_lg_u32 s3, 0
    s_cbranch_scc1 {'L_fin1' if stamps else 'L_end'}
    s_mov_b32 s57, 0
    v_lshlrev_b32 v28, 16, v119
    s_movk_i32 s56, 0xff00
    {'s_memrealtime s[74:75]' if stamps else ''}
    L_fpoll:
    global_load_dwordx4 v[16:19], v116, s[28:29] {opt.get('ffl', 'sc1')}
    s_waitcnt vmcnt(0)
    {'s_cmp_lg_u32 s57, 0' if stamps else ''}
    {'s_cbranch_scc1 L_fp1' if stamps else ''}
    {'s_memrealtime s[76:77]' if stamps else ''}
    {'L_fp1:' if stamps else ''}
    v_perm_b32 v24, v17, v16, s58
    v_perm_b32 v25, v19, v18, s59
    v_or_b32 v24, v24, v25
    v_cmp_ne_u32 vcc, s35, v24
    s_add_u32 s57, s57, 1
    s_mov_b64 exec, vcc
    s_cbranch_execz L_fdone
    s_cmp_lt_u32 s57, {SPIN}
    s_cbranch_scc1 L_fpoll
    L_fdone:
    s_mov_b64 exec, -1
    """)
    if stamps: a("s_mov_b32 s67, s57")
    for i in range(4): a(f"v_and_b32 v{16+i}, s56, v{16+i}")
    a("""
    v_permlane32_swap_b32 v16, v17
    v_permlane32_swap_b32 v18, v19
    v_add_f32 v16, v16, v17
    v_add_f32 v18, v18, v19
    s_mov_b32 s44, 0x00010001
    s_mov_b32 s45, 0x00010001
    v_permlane16_swap_b32 v16, v18
    v_add_f32 v16, v16, v18
    """)
    for m in ("quad_perm:[1,0,3,2]", "quad_perm:[2,3,0,1]", "row_ror:4", "row_ror:8"):
        dpp("v_add_f32", 16, m)
    a("""
    v_add_f32 v16, v16, v28
    v_cvt_pk_bf16_f32 v16, v16, v16
    s_mov_b64 exec, s[44:45]
    global_store_short v120, v16, s[26:27]
    s_cmp_lg_u32 s2, 0
    """)
    a(f"s_cbranch_scc1 {'L_fin0' if stamps else 'L_end'}")
    a("""
    s_mov_b64 exec, 1
    v_mov_b32 v19, 0
    global_store_dword v19, v33, s[30:31]
    """)
    if stamps:
        a("s_branch L_fin0")
        a("L_fin1:")
        a("s_waitcnt vmcnt(0)")
        a("L_fin0:")
        a("s_mov_b64 exec, -1")
        stamp("out stored")
        a("L_fin:")
        a("s_getreg_b32 s66, hwreg(HW_REG_XCC_ID)")
        a("v_mov_b32 v32, s70")
        for i in range(14):
            a(f"v_mov_b32 v{33+i}, s{72+2*i}")
        a("v_mov_b32 v47, s66")
        a("v_mov_b32 v48, s69")
        a("v_mov_b32 v49, s68")
        a("v_mov_b32 v50, s67")
        a("v_mov_b32 v51, s100")
        a(f"""
        s_lshl_b32 s58, s2, 10
        s_lshl_b32 s59, s3, 7
        s_add_u32 s58, s58, s59
        s_add_u32 s58, s58, {STAMP}
        v_mov_b32 v3, s58
        s_mov_b64 exec, 1
        """)
        for j in range(5):
            a(f"global_store_dwordx4 v3, v[{32+4*j}:{35+4*j}], s[30:31] offset:{16*j}")
    a("L_end:")
    if opt.get('probe'):
        a(f"""
        s_cmp_eq_u32 s74, 0
        s_cbranch_scc1 L_padd
        s_cmp_ge_u32 s3, {opt.get('probew', 8)}
        s_cbranch_scc1 L_padd
        L_pad:
        s_memrealtime s[72:73]
        s_waitcnt lgkmcnt(0)
        s_sub_u32 s72, s72, s74
        s_cmp_lt_u32 s72, 1200
        s_cbranch_scc1 L_pad
        L_padd:
        """)
    if opt.get('padto'):
        a(f"""
        L_pad:
        s_memrealtime s[72:73]
        s_waitcnt lgkmcnt(0)
        s_sub_u32 s72, s72, s70
        s_cmp_lt_u32 s72, {opt['padto']}
        s_cbranch_scc1 L_pad
        """)
    a("s_endpgm")
    a.raw('.section .rodata,"a"')
    a.raw(".p2align 6")
    a.raw(f".amdhsa_kernel {NAME}_kernel")
    a.raw("  .amdhsa_next_free_vgpr 256")
    a.raw("  .amdhsa_next_free_sgpr 102")
    a.raw("  .amdhsa_accum_offset 256")
    a.raw("  .amdhsa_group_segment_fixed_size 0")
    a.raw("  .amdhsa_kernarg_size 96")
    a.raw("  .amdhsa_user_sgpr_count 2")
    a.raw("  .amdhsa_user_sgpr_kernarg_segment_ptr 1")
    a.raw("  .amdhsa_system_sgpr_workgroup_id_x 1")
    a.raw("  .amdhsa_float_denorm_mode_32 3")
    a.raw(".end_amdhsa_kernel")
    return a.text().replace('@LF@', LF).replace('@L1@', L1F).replace('@TF@', opt.get('tf', 'sc1'))

def parse_opt(s):
    opt = {}
    for kv in s.split(","):
        if kv:
            k, _, v = kv.partition("=")
            opt[k] = (int(v) if v.lstrip('-').isdigit() else v.replace('+', ' ')) if v else 1
    return opt

if __name__ == "__main__":
    ap = argparse.ArgumentParser()
    ap.add_argument("-o", default="k.s")
    ap.add_argument("--stamps", action="store_true")
    ap.add_argument("--opt", default="")
    args = ap.parse_args()
    open(args.o, "w").write(gen(args.stamps, parse_opt(args.opt)))
```

```python
import sys, argparse
from asmgen import Asm
NAME = "parallel_sum__sliding_block_cached__glu_gated_reglu__decode"

EX = 0x40000
QP = 0x0; ST = 0x4000; FL = 0x5000; GP = 0x8000; OP = 0x10000; FP = 0x20000
STAMP = 0x1000000
LW = 131072
def R(j): return LW + 8192 * j + 6144
MLB = R(2); PB = R(3); MODEB = 512
SPIN0 = 40000
LOG2E = 0x3fb8aa3b
SCALE = 0x3db504f3
DPPM = "row_mask:0xf bank_mask:0xf"
EINC = 0x08010101

HEADER = open("cdna_kernels/%s.s.ref" % NAME).read().split("; Override launch")[0]

def gen(stamps=False, opt=None):
    opt = opt or {}
    a0 = Asm()
    class W:
        raw = a0.raw; comment = a0.comment; text = a0.text
        def __call__(self, t): a0(t.replace('@PUB@', '; ' if opt.get('nopub') else ''))
    a = W()
    SPIN = opt.get('spin', SPIN0)
    rotmul = opt.get('rotmul', 37)
    kpre = opt.get('kpre', 4)
    vpre = opt.get('vpre', 8)
    NFAST = opt.get('nfast', 12)
    thr = opt.get('thr', 6)
    LF = opt.get('lf', 'sc1 nt')
    L1F = opt.get('l1f', 'sc1 nt').replace('none', '')
    thr2 = opt.get('thr2', 8); OT = opt.get('otouch', 1); OTF = opt.get('otf', 'sc1 nt'); vthr = opt.get('vthr', 4)
    TOUCH = opt.get('touch', 0)
    nst = [0]
    def stamp(name, i=None):
        if opt.get('probe') == name.replace(' ', '_'):
            a("s_memrealtime s[74:75]")
            a("s_waitcnt lgkmcnt(0)")
        if opt.get('probe0') == name.replace(' ', '_'):
            a("s_memrealtime s[76:77]")
            a("s_waitcnt lgkmcnt(0)")
        if not stamps: return
        if i is not None: nst[0] = i
        i = nst[0]; nst[0] += 1
        assert i < 14
        a(f"s_memrealtime s[{72+2*i}:{73+2*i}]")
        a("s_waitcnt lgkmcnt(0)")
    def dpp(op, v, m): a(f"{op}_dpp v{v}, v{v}, v{v} {m} {DPPM}")
    def reduce_g(v, t, op="v_add_f32"):
        a(f"v_mov_b32 v{t}, v{v}")
        a(f"v_permlane16_swap_b32 v{v}, v{t}")
        a(f"{op} v{v}, v{v}, v{t}")
        a(f"v_mov_b32 v{t}, v{v}")
        a(f"v_permlane32_swap_b32 v{v}, v{t}")
        a(f"{op} v{v}, v{v}, v{t}")
    def reduce5(v, t, op="v_add_f32"):
        dpp(op, v, "quad_perm:[2,3,0,1]"); dpp(op, v, "row_ror:4"); dpp(op, v, "row_ror:8")
        reduce_g(v, t, op)
    def reduce4(v, t, op="v_add_f32"):
        dpp(op, v, "row_ror:4"); dpp(op, v, "row_ror:8")
        reduce_g(v, t, op)

    a.raw(HEADER.rstrip())
    a.raw("; @launch grid=(256,1,1) block=(512,1,1) lds=163840")
    a.raw('.amdgcn_target "amdgcn-amd-amdhsa--gfx950"')
    a.raw(".text")
    a.raw(f".globl {NAME}_kernel")
    a.raw(".p2align 12")
    a.raw(".p2align 8")
    a.raw(f".type {NAME}_kernel,@function")
    a.raw(f"{NAME}_kernel:")
    if stamps or opt.get('padto'): a("s_memrealtime s[70:71]")
    if opt.get('probe'): a("s_mov_b32 s74, 0")
    if opt.get('probe'): a("s_mov_b32 s3, 99")
    if opt.get('probe'): a("s_memrealtime s[70:71]")
    if opt.get('probe') and not opt.get('probe0'): a("s_memrealtime s[76:77]")
    a(f"""
    s_cmp_ge_u32 s2, 256
    s_cbranch_scc1 L_end
    s_load_dwordx16 s[8:23], s[0:1], 0
    s_load_dwordx8 s[24:31], s[0:1], 64
    v_lshrrev_b32 v3, 6, v0
    v_and_b32 v0, 63, v0
    v_readfirstlane_b32 s3, v3
    s_getpc_b64 s[56:57]
    s_lshr_b32 s5, s2, 3
    """)
    if not opt.get('nopf'):
        a(f"""
        s_and_b32 s58, s5, 15
        s_lshl_b32 s58, s58, 3
        s_add_u32 s58, s58, s3
        s_lshl_b32 s58, s58, 6
        s_min_u32 s58, s58, L_end-{NAME}_kernel-64
        s_load_dword s39, s[56:57], s58
        """)
    a(f"""
    v_and_b32 v1, 15, v0
    v_lshrrev_b32 v2, 4, v0
    s_and_b32 s4, s2, 7
    s_lshr_b32 s6, s5, 4
    s_and_b32 s7, s5, 15
    s_lshr_b32 s32, s5, 2
    s_and_b32 s33, s5, 3
    s_lshl_b32 s34, s4, 3
    s_add_u32 s34, s34, s32
    s_mov_b32 s43, 0x20000
    s_mul_i32 s63, s4, 7
    s_add_u32 s63, s63, 1
    s_and_b32 s63, s63, 0xfe
    s_add_u32 s63, s63, s32
    s_lshr_b32 s59, s32, 1
    s_and_b32 s60, s4, 1
    s_add_u32 s59, s59, s60
    s_cmp_lt_u32 s59, 4
    s_cselect_b32 s54, 0x1c0000, 0
    s_lshl_b32 s66, s4, 18
    s_add_u32 s66, s66, {EX}
    v_lshrrev_b32 v6, 3, v0
    v_and_b32 v7, 1, v2
    v_lshlrev_b32 v7, 1, v7
    v_and_b32 v8, 7, v0
    v_xor_b32 v7, v7, v8
    v_lshlrev_b32 v7, 4, v7
    v_lshl_add_u32 v28, v6, 13, v7
    v_xor_b32 v29, 64, v28
    s_lshl_b32 s57, s33, 20
    s_lshl_b32 s58, s3, 17
    s_add_u32 s57, s57, s58
    s_lshl_b32 s58, s34, 7
    s_add_u32 s57, s57, s58
    s_add_u32 s58, s57, 0x10000
    s_lshl_b32 s60, s3, 11
    s_add_u32 s60, s60, {LW}
    s_mov_b32 s50, 0x400000
    s_mov_b32 s51, 0x20000
    s_cmp_ge_u32 s3, 4
    s_cbranch_scc1 L_loader
    """)
    WQ = """
    s_add_u32 s28, s30, s66
    s_addc_u32 s29, s31, 0
    s_mov_b32 s48, s14
    s_mov_b32 s49, s15
    s_mov_b32 m0, s60
    s_add_u32 s60, s60, 1024
    buffer_load_dwordx4 v28, s[48:51], s57 offen nt lds
    s_mov_b32 m0, s60
    s_nop 0
    buffer_load_dwordx4 v29, s[48:51], s58 offen nt lds
    """
    a(f"""
    v_and_b32 v3, 1, v0
    v_lshlrev_b32 v3, 10, v3
    v_lshrrev_b32 v4, 1, v0
    v_lshl_add_u32 v4, v4, 5, v3
    s_and_b32 s59, s32, 1
    s_lshl_b32 s62, s59, 7
    s_cmp_lt_u32 s3, 2
    s_cselect_b32 s61, 3, 1
    s_cselect_b32 s62, 0, s62
    v_lshrrev_b32 v5, 2, v1
    v_and_b32 v5, s61, v5
    v_lshl_add_u32 v5, v5, 6, v3
    v_lshl_add_u32 v5, v2, 4, v5
    s_lshl_b32 s61, s33, 8
    s_add_u32 s61, s61, s62
    v_add_u32 v5, s61, v5
    v_mul_u32_u24 v30, 3584, v6
    v_add_u32 v31, v30, v7
    v_xor_b32 v7, 64, v7
    v_add_u32 v30, v30, v7
    s_lshl_b32 s56, s33, 1
    s_add_u32 s56, s56, s59
    s_mul_i32 s56, s56, {64*3584}
    s_lshr_b32 s59, s63, 1
    s_lshl_b32 s59, s59, 7
    s_add_u32 s56, s56, s59
    s_mov_b32 s42, s54
    s_lshl_b32 s59, s7, 7
    s_lshl_b32 s62, s6, 15
    s_add_u32 s62, s62, s59
    s_lshl_b32 s64, s3, 14
    s_add_u32 s62, s62, s64
    s_add_u32 s62, s62, {OP}
    v_lshlrev_b32 v20, 11, v6
    v_lshlrev_b32 v21, 4, v8
    v_add3_u32 v144, s62, v20, v21
    s_lshl_b32 s62, s6, 11
    s_add_u32 s62, s62, s59
    s_add_u32 s62, s62, {ST}
    v_add_u32 v145, s62, v21
    v_mov_b32 v24, -1
    v_mov_b32 v25, -1
    v_mov_b32 v26, -1
    v_mov_b32 v27, -1
    s_lshl_b32 s61, s3, 13
    s_add_u32 s61, s61, {LW+8192}
    s_waitcnt lgkmcnt(0)
    {'s_memrealtime s[74:75]' if opt.get('probe') == 'karg' else ''}
    {'s_memrealtime s[100:101]' if stamps else ''}
    global_load_dwordx4 v[8:11], v4, s[8:9]
    global_load_dwordx4 v[12:15], v4, s[8:9] offset:16
    global_load_dwordx4 v[16:19], v5, s[8:9]
    {WQ}
    s_load_dword s35, s[30:31], 0
    s_cmp_lt_u32 s3, 2
    s_cbranch_scc1 L_sx0
    s_cmp_eq_u32 s3, 2
    s_cselect_b32 s40, s20, s22
    s_cselect_b32 s41, s21, s23
    s_cselect_b32 s64, 0, {24*128}
    s_sub_u32 s60, s61, 8192
    s_mul_i32 s62, s5, {48*128}
    s_add_u32 s62, s62, s64
    v_min_u32 v20, 23, v0
    v_lshlrev_b32 v20, 7, v20
    v_add_u32 v20, s62, v20
    s_barrier
    {'global_load_dword v94, v20, s[28:29] sc1' if TOUCH == 1 else ''}
    L_tloop:
    s_mov_b32 m0, s60
    s_add_u32 s60, s60, 1024
    buffer_load_dwordx4 v31, s[40:43], s56 offen nt lds
    s_add_u32 s56, s56, {8*3584}
    s_mov_b32 m0, s60
    s_add_u32 s60, s60, 1024
    buffer_load_dwordx4 v30, s[40:43], s56 offen nt lds
    s_add_u32 s56, s56, {8*3584}
    s_cmp_lt_u32 s60, s61
    s_cbranch_scc1 L_tloop
    s_waitcnt vmcnt({9 if TOUCH == 1 else 8})
    s_barrier
    s_barrier
    s_branch L_service
    L_sx0:
    {'' if opt.get('noclear') else 'global_store_dwordx4 v144, v[24:27], s[28:29]'}
    s_mov_b64 exec, 0xff
    {'' if opt.get('noclear') else 'global_store_dwordx4 v145, v[24:27], s[28:29]'}
    s_mov_b64 exec, -1
    s_barrier
    s_branch L_service
    """)
    a("L_loader:")
    TLB = """
    s_lshl_b32 s37, s34, 16
    s_load_dword s38, s[12:13], s36
    s_load_dword s38, s[16:17], s37
    s_load_dword s38, s[24:25], 0
    s_load_dword s38, s[26:27], 0
    s_load_dword s38, s[10:11], s36
    s_load_dword s38, s[20:21], 0
    s_load_dword s38, s[22:23], 0
    """ if opt.get('tlb') else ""
    a(f"""
    s_sub_u32 s56, s3, 4
    s_lshl_b32 s36, s56, 2
    v_add_u32 v3, s36, v2
    v_xor_b32 v4, v3, v1
    v_lshlrev_b32 v4, 4, v4
    v_lshl_add_u32 v4, v2, 8, v4
    v_and_b32 v5, 7, v3
    v_lshlrev_b32 v5, 1, v5
    v_xor_b32 v5, v5, v1
    v_lshlrev_b32 v5, 4, v5
    v_lshl_add_u32 v3, v3, 10, v5
    v_lshl_add_u32 v5, v2, 8, v5
    s_lshl_b32 s36, s6, 3
    s_add_u32 s36, s36, s4
    s_lshl_b32 s36, s36, 23
    s_lshl_b32 s59, s7, 16
    s_add_u32 s36, s36, s59
    s_add_u32 s36, s36, 0x700000
    s_mul_i32 s59, s2, {rotmul}
    s_add_u32 s59, s59, s56
    s_and_b32 s59, s59, 63
    s_lshl_b32 s59, s59, 10
    s_mov_b32 s42, 0x10000
    s_mov_b32 s46, 0x10000
    s_mov_b32 s47, 0x20000
    s_waitcnt lgkmcnt(0)
    {WQ}
    s_add_u32 s40, s10, s36
    s_addc_u32 s41, s11, 0
    s_lshl_b32 s60, s56, 10
    {TLB}
    s_barrier
    L_kloop0:
    s_mov_b32 m0, s60
    s_add_u32 s60, s60, 4096
    buffer_load_dwordx4 v4, s[40:43], s59 offen nt lds
    s_add_u32 s59, s59, 4096
    s_and_b32 s59, s59, 0xffff
    s_cmp_lt_u32 s60, {4096*kpre}
    s_cbranch_scc1 L_kloop0
    s_add_u32 s44, s12, s36
    s_addc_u32 s45, s13, 0
    s_mov_b32 s48, s16
    s_mov_b32 s49, s17
    s_lshl_b32 s57, s33, 8
    s_lshl_b32 s61, s34, 16
    s_add_u32 s61, s61, s57
    s_waitcnt vmcnt({kpre})
    s_barrier
    s_barrier
    L_kloop:
    s_waitcnt vmcnt({thr-1})
    s_mov_b32 m0, s60
    s_add_u32 s60, s60, 4096
    buffer_load_dwordx4 v4, s[40:43], s59 offen nt lds
    s_add_u32 s59, s59, 4096
    s_and_b32 s59, s59, 0xffff
    s_cmp_lt_u32 s60, 65536
    s_cbranch_scc1 L_kloop
    L_vloop:
    s_waitcnt vmcnt({thr-1})
    s_mov_b32 m0, s60
    s_add_u32 s60, s60, 4096
    buffer_load_dwordx4 v5, s[44:47], s59 offen nt lds
    s_add_u32 s59, s59, 4096
    s_and_b32 s59, s59, 0xffff
    s_cmp_lt_u32 s60, {65536 + 4096*min(vthr, vpre)}
    s_cbranch_scc1 L_vloop
    """)
    if vthr < vpre:
        a(f"""
    L_vloop1:
    s_waitcnt vmcnt({thr2-1})
    s_mov_b32 m0, s60
    s_add_u32 s60, s60, 4096
    buffer_load_dwordx4 v5, s[44:47], s59 offen nt lds
    s_add_u32 s59, s59, 4096
    s_and_b32 s59, s59, 0xffff
    s_cmp_lt_u32 s60, {65536 + 4096*vpre}
    s_cbranch_scc1 L_vloop1
    """)
    stamp("L pre issue", 0)
    a(f"s_waitcnt vmcnt({vpre}) lgkmcnt(0)")
    stamp("L K landed")
    a("s_barrier")
    stamp("B1", 5)
    tp = opt.get('tp', 14)
    nA = (tp - thr2) // 2
    nB = (20 - thr2) // 2
    def vloop(lbl, end):
        a(f"""
        {lbl}:
        s_waitcnt vmcnt({thr2-1})
        s_mov_b32 m0, s60
        s_add_u32 s60, s60, 4096
        buffer_load_dwordx4 v5, s[44:47], s59 offen nt lds
        s_add_u32 s59, s59, 4096
        s_and_b32 s59, s59, 0xffff
        s_cmp_lt_u32 s60, {65536 + 4096*end}
        s_cbranch_scc1 {lbl}
        """)
    vloop("L_vloop2", tp)
    a(f"s_waitcnt vmcnt({tp - 2*nA})")
    stamp("L at Bp", 2)
    a("s_barrier")
    stamp("Bp", 7)
    if tp < 16: vloop("L_vloop3", 16)
    a(f"""
    s_lshl_b32 s60, s56, 13
    s_add_u32 s60, s60, {LW}
    """)
    for t in range(4):
        a(f"""
        s_add_u32 m0, s60, {t*1024}
        s_waitcnt vmcnt({thr2-1})
        buffer_load_dwordx4 v3, s[48:51], s61 offen nt lds
        s_add_u32 s61, s61, 16384
        """)
    a(f"s_waitcnt vmcnt({20 - 2*nB})")
    stamp("L at Bq", 3)
    a("s_barrier")
    a("s_waitcnt vmcnt(4)")
    stamp("L V landed", 4)
    a("s_barrier")
    stamp("BB", 8)
    a("s_waitcnt vmcnt(0)")
    stamp("L wo landed", 9)
    a("s_barrier")
    a("s_branch L_fin" if stamps else ("s_branch L_end" if opt.get('probe') else "s_endpgm"))

    a("L_service:")
    a(f"""
    s_lshl_b32 s67, s4, 5
    s_add_u32 s67, s67, s5
    s_lshl_b32 s59, s7, 7
    s_mov_b32 s62, 0xffff0000
    s_mov_b32 s64, 0x000f000f
    s_mov_b32 s65, 0x000f000f
    v_and_b32 v4, 3, v1
    v_lshrrev_b32 v5, 2, v1
    v_and_b32 v6, 1, v2
    s_lshl_b32 s57, s3, 2
    v_add_u32 v95, s57, v2
    v_and_b32 v7, 7, v95
    v_lshlrev_b32 v7, 1, v7
    v_xor_b32 v7, v7, v1
    v_lshlrev_b32 v7, 4, v7
    v_lshl_add_u32 v95, v95, 10, v7
    s_lshl_b32 s50, s63, 15
    s_lshl_b32 s57, s33, 8
    s_add_u32 s50, s50, s57
    s_mov_b32 s52, s24
    s_mov_b32 s53, s25
    s_mov_b32 s55, 0x20000
    v_lshrrev_b32 v96, 3, v1
    v_lshl_add_u32 v96, v6, 1, v96
    v_lshlrev_b32 v96, 5, v96
    v_lshl_add_u32 v96, v5, 7, v96
    v_lshl_add_u32 v96, v2, 10, v96
    v_lshl_add_u32 v96, v4, 3, v96
    s_sub_u32 s60, s61, 8192
    s_lshl_b32 s57, s3, 6
    s_movk_i32 s58, 0x2000
    s_cmp_lt_u32 s3, 2
    s_cselect_b32 s57, s57, 0
    s_cselect_b32 s56, {LW}, s60
    s_cselect_b32 s58, s58, 64
    v_xor_b32 v96, s57, v96
    v_add_u32 v96, s56, v96
    v_xor_b32 v97, 32, v96
    v_xor_b32 v92, s58, v96
    v_xor_b32 v93, 32, v92
    s_cselect_b32 s57, 13, 8
    v_and_b32 v98, 1, v1
    v_lshlrev_b32 v98, s57, v98
    v_lshrrev_b32 v7, 1, v1
    v_lshl_add_u32 v98, v7, 6, v98
    v_lshl_add_u32 v98, v2, 4, v98
    s_lshl_b32 s57, s32, 8
    s_lshl_b32 s58, s3, 7
    s_add_u32 s57, s57, s58
    s_add_u32 s57, s57, {QP}
    s_lshr_b32 s63, s32, 1
    s_lshl_b32 s63, s63, 13
    s_add_u32 s63, s63, {GP}
    s_and_b32 s56, s32, 1
    s_lshl_b32 s58, s56, 10
    s_add_u32 s58, s58, s63
    s_lshl_b32 s56, s56, 7
    s_add_u32 s63, s63, s56
    s_lshl_b32 s56, s3, 9
    s_add_u32 s58, s58, s56
    s_sub_u32 s58, s58, 1024
    s_cmp_lt_u32 s3, 2
    s_cselect_b32 s57, s57, s58
    s_lshl_b32 s58, s33, 11
    s_add_u32 s57, s57, s58
    v_add_u32 v98, s57, v98
    s_lshl_b32 s57, s6, 13
    s_lshl_b32 s58, s3, 10
    s_add_u32 s57, s57, s58
    s_add_u32 s57, s57, {QP+4096}
    v_lshlrev_b32 v99, 4, v0
    v_add_u32 v99, s57, v99
    s_add_u32 s60, s60, 6144
    v_lshlrev_b32 v100, 3, v0
    v_add_u32 v100, s60, v100
    s_lshl_b32 s58, s6, 11
    s_add_u32 s58, s58, s59
    s_add_u32 s58, s58, {ST}
    v_lshlrev_b32 v118, 2, v0
    v_add_u32 v118, s58, v118
    v_mov_b32 v121, 0xff
    s_getreg_b32 s68, hwreg(HW_REG_XCC_ID)
    s_and_b32 s68, s68, 7
    s_cmp_lt_u32 s3, 2
    s_cbranch_scc0 L_ln
    s_waitcnt vmcnt({2 if opt.get('noclear') else 4})
    L_ln:
    """)
    stamp("S x landed", 0)
    for i in range(8):
        a(f"v_lshlrev_b32 v{32+2*i}, 16, v{8+i}")
        a(f"v_and_b32 v{33+2*i}, s62, v{8+i}")
    for i in range(4):
        a(f"v_pk_add_f32 v[{48+2*i}:{49+2*i}], v[{32+4*i}:{33+4*i}], v[{34+4*i}:{35+4*i}]")
    a("v_pk_add_f32 v[48:49], v[48:49], v[50:51]")
    a("v_pk_add_f32 v[52:53], v[52:53], v[54:55]")
    a("v_pk_add_f32 v[48:49], v[48:49], v[52:53]")
    a("v_add_f32 v48, v48, v49")
    reduce5(48, 49)
    a("v_mul_f32 v48, 0xbb000000, v48")
    a("v_mov_b32 v49, v48")
    for i in range(8):
        a(f"v_pk_add_f32 v[{32+2*i}:{33+2*i}], v[{32+2*i}:{33+2*i}], v[48:49]")
    a("v_pk_mul_f32 v[50:51], v[32:33], v[32:33]")
    a("v_pk_mul_f32 v[52:53], v[34:35], v[34:35]")
    for i in range(2, 8):
        d = 50 + 2 * (i & 1)
        a(f"v_pk_fma_f32 v[{d}:{d+1}], v[{32+2*i}:{33+2*i}], v[{32+2*i}:{33+2*i}], v[{d}:{d+1}]")
    a("v_pk_add_f32 v[50:51], v[50:51], v[52:53]")
    a("v_add_f32 v50, v50, v51")
    a("""
    v_cvt_pk_bf16_f32 v48, v48, v48
    v_and_b32 v48, s62, v48
    v_mov_b32 v49, v48
    """)
    dpp("v_add_f32", 50, "quad_perm:[2,3,0,1]")
    fr = []
    for i in range(4):
        fr.append(f"v_lshlrev_b32 v{32+2*i}, 16, v{16+i}")
        fr.append(f"v_and_b32 v{33+2*i}, s62, v{16+i}")
    for i in range(4):
        fr.append(f"v_pk_add_f32 v[{32+2*i}:{33+2*i}], v[{32+2*i}:{33+2*i}], v[48:49]")
    for i in range(4):
        fr.append(f"v_cvt_pk_bf16_f32 v{16+i}, v{32+2*i}, v{33+2*i}")
    for i in range(4):
        fr.append(f"v_lshlrev_b32 v{32+2*i}, 16, v{16+i}")
        fr.append(f"v_and_b32 v{33+2*i}, s62, v{16+i}")
    ch = [f"v_add_f32_dpp v50, v50, v50 row_ror:4 {DPPM}", None, None,
          f"v_add_f32_dpp v50, v50, v50 row_ror:8 {DPPM}", "v_mov_b32 v51, v50", None, None,
          "v_permlane16_swap_b32 v50, v51", "v_add_f32 v50, v50, v51", "v_mov_b32 v51, v50", None, None,
          "v_permlane32_swap_b32 v50, v51", "v_add_f32 v50, v50, v51",
          "v_mul_f32 v50, 0x3b000000, v50", "v_cvt_pk_bf16_f32 v50, v50, v50", "v_and_b32 v50, s62, v50",
          "v_add_f32 v50, 0x3727c5ac, v50", "v_cvt_pk_bf16_f32 v50, v50, v50", "v_and_b32 v50, s62, v50",
          "v_sqrt_f32 v50, v50", None, "v_cvt_pk_bf16_f32 v50, v50, v50", "v_and_b32 v50, s62, v50",
          "v_rcp_f32 v50, v50", None]
    for c in ch:
        a(c if c else fr.pop(0))
    a("v_mov_b32 v51, v50")
    for x in fr: a(x)
    for i in range(4):
        a(f"v_pk_mul_f32 v[{32+2*i}:{33+2*i}], v[{32+2*i}:{33+2*i}], v[50:51]")
    for i in range(4):
        a(f"v_cvt_pk_bf16_f32 v{16+i}, v{32+2*i}, v{33+2*i}")
    for jj in range(1, 4):
        for i in range(4):
            a(f"v_mov_b32_dpp v{16+4*jj+i}, v{16+i} row_ror:{16-4*jj} {DPPM}")
    a(f"""
    s_waitcnt lgkmcnt(0)
    s_add_u32 s35, s35, {EINC}
    s_lshr_b32 s36, s35, 8
    s_lshr_b32 s37, s35, 16
    s_lshr_b32 s38, s35, 24
    s_and_b32 s38, s38, 0xf8
    s_or_b32 s38, s38, s68
    s_and_b32 s39, s35, 0x00ffffff
    s_lshl_b32 s57, s38, 24
    s_or_b32 s39, s39, s57
    v_cmp_lt_u32 vcc, 1, v1
    """)
    stamp("S LN done")
    a(f"""
    s_cmp_lt_u32 s3, 2
    s_waitcnt vmcnt(0)
    s_cbranch_scc0 L_w3
    s_barrier
    L_w3:
    """)
    stamp("S tile landed")
    TA = [96, 97, 92, 93]
    for aa in range(4):
        for ss in range(2):
            for e in range(2):
                d = 48 + 8 * aa + 4 * ss + 2 * e
                a(f"ds_read_b64_tr_b16 v[{d}:{d+1}], v{TA[aa]} offset:{ss*4096+e*512}")
    def p1mfma(aa):
        for ss in range(2):
            bi = 16 + 4 * (2 * (aa >> 1) + ss)
            a(f"v_mfma_f32_16x16x32_bf16 v[{32+4*aa}:{35+4*aa}], v[{48+8*aa+4*ss}:{51+8*aa+4*ss}], v[{bi}:{bi+3}], {'0' if ss==0 else f'v[{32+4*aa}:{35+4*aa}]'}")
    a("s_waitcnt lgkmcnt(8)")
    p1mfma(0); p1mfma(1)
    a("""
    s_waitcnt lgkmcnt(0)
    s_cbranch_scc0 L_w4
    s_barrier
    L_w4:
    """)
    p1mfma(2); p1mfma(3)
    for i in range(4):
        a(f"v_cndmask_b32 v{32+i}, v{32+i}, v{36+i}, vcc")
    for i in range(4):
        a(f"v_cndmask_b32 v{40+i}, v{40+i}, v{44+i}, vcc")
    a("s_mov_b64 exec, s[64:65]")
    a("s_cbranch_scc1 L_w5")
    for i in range(4):
        a(f"v_bfi_b32 v{40+i}, v121, s{35+i}, v{40+i}")
    a("""
    @PUB@global_store_dwordx4 v98, v[40:43], s[28:29] offset:128
    s_branch L_w6
    L_w5:
    v_pk_add_f32 v[32:33], v[32:33], v[40:41]
    v_pk_add_f32 v[34:35], v[34:35], v[42:43]
    L_w6:
    """)
    for i in range(4):
        a(f"v_bfi_b32 v{32+i}, v121, s{35+i}, v{32+i}")
    a(f"""
    @PUB@global_store_dwordx4 v98, v[32:35], s[28:29]
    s_mov_b64 exec, -1
    """)
    stamp("S published")
    a("""
    s_sub_u32 m0, s61, 4096
    s_add_u32 s51, s50, 16384
    buffer_load_dwordx4 v95, s[52:55], s50 offen nt lds
    s_sub_u32 m0, s61, 3072
    s_nop 0
    buffer_load_dwordx4 v95, s[52:55], s51 offen nt lds
    """)
    a(f"""
    v_xor_b32 v101, v2, v1
    v_lshlrev_b32 v101, 4, v101
    v_lshl_add_u32 v101, v1, 8, v101
    s_lshl_b32 s59, s3, 14
    v_add_u32 v101, s59, v101
    v_xor_b32 v102, 64, v101
    v_xor_b32 v103, 0x80, v101
    v_xor_b32 v104, 0xc0, v101
    v_and_b32 v105, 2, v1
    v_lshlrev_b32 v105, 12, v105
    v_and_b32 v7, 1, v1
    v_lshl_add_u32 v105, v7, 8, v105
    v_lshl_add_u32 v105, v2, 4, v105
    v_add_u32 v105, {R(0)}, v105
    v_lshrrev_b32 v106, 1, v5
    v_lshlrev_b32 v106, 8, v106
    v_lshl_add_u32 v106, v2, 6, v106
    v_lshl_add_u32 v106, v4, 4, v106
    v_and_b32 v8, 1, v5
    v_lshl_add_u32 v106, v8, 3, v106
    s_lshl_b32 s59, s3, 9
    s_add_u32 s59, s59, {PB}
    v_add_u32 v106, s59, v106
    v_lshlrev_b32 v122, 5, v4
    v_add_u32 v122, {MLB}, v122
    s_lshl_b32 s59, s3, 2
    v_add_u32 v107, s59, v122
    s_and_b32 s56, s3, 1
    v_lshlrev_b32 v108, 10, v5
    v_and_b32 v8, 2, v1
    v_lshl_add_u32 v108, v8, 8, v108
    v_lshl_add_u32 v108, v7, 6, v108
    v_lshl_add_u32 v108, v2, 4, v108
    s_lshl_b32 s59, s56, 8
    s_add_u32 s59, s59, s63
    s_add_u32 s59, s59, 2048
    v_add_u32 v108, s59, v108
    s_mov_b32 s57, s56
    s_lshl_b32 s58, s57, 15
    s_lshl_b32 s59, s32, 12
    s_add_u32 s58, s58, s59
    s_add_u32 s58, s58, {OP}
    v_lshlrev_b32 v123, 7, v1
    v_lshl_add_u32 v109, v2, 4, v123
    v_add_u32 v109, s58, v109
    s_lshl_b32 s58, s57, 11
    s_add_u32 s59, s58, {FL}
    v_add_u32 v123, s59, v123
    s_lshr_b32 s59, s32, 1
    s_lshl_b32 s59, s59, 2
    s_add_u32 s58, s58, s59
    s_add_u32 s58, s58, {ST}
    v_lshlrev_b32 v110, 9, v2
    v_add_u32 v110, s58, v110
    v_lshl_add_u32 v8, v6, 2, v5
    s_lshl_b32 s58, s3, 1
    s_and_b32 s58, s58, 4
    v_xor_b32 v8, s58, v8
    v_lshlrev_b32 v8, 5, v8
    v_lshl_add_u32 v111, v5, 8, v8
    v_lshl_add_u32 v111, v4, 3, v111
    v_lshl_add_u32 v111, v2, 13, v111
    v_add_u32 v111, {LW}, v111
    v_xor_b32 v112, 32, v111
    v_xor_b32 v113, 64, v111
    v_xor_b32 v114, 0x60, v111
    v_lshrrev_b32 v115, 1, v2
    v_lshl_add_u32 v115, v6, 1, v115
    v_lshlrev_b32 v117, 1, v115
    v_lshl_add_u32 v115, v115, 4, v1
    v_lshlrev_b32 v115, 2, v115
    s_lshl_b32 s58, s56, 20
    s_lshl_b32 s59, s33, 18
    s_add_u32 s58, s58, s59
    s_lshr_b32 s59, s3, 1
    s_lshl_b32 s59, s59, 14
    s_add_u32 s58, s58, s59
    s_lshl_b32 s59, s34, 8
    s_add_u32 s58, s58, s59
    s_add_u32 s58, s58, {FP+EX}
    v_add_u32 v115, s58, v115
    s_lshl_b32 s58, s67, 3
    v_add_u32 v120, s58, v117
    v_lshlrev_b32 v117, 3, v4
    v_lshrrev_b32 v117, v117, s35
    s_lshl_b32 s58, s6, 14
    s_lshl_b32 s59, s7, 4
    s_add_u32 s58, s58, s59
    s_add_u32 s58, s58, {FP}
    v_lshlrev_b32 v116, 8, v0
    v_add_u32 v116, s58, v116
    v_lshlrev_b32 v250, 4, v4
    v_lshl_add_u32 v250, v2, 6, v250
    v_add_u32 v250, {PB}, v250
    v_lshl_add_u32 v248, v2, 2, v5
    v_and_b32 v249, 7, v248
    s_lshl_b32 s58, s3, 1
    v_xor_b32 v249, s58, v249
    v_lshlrev_b32 v249, 5, v249
    v_lshl_add_u32 v248, v248, 8, v249
    v_lshl_add_u32 v248, v4, 3, v248
    v_add_u32 v248, 0x10000, v248
    v_xor_b32 v249, 32, v248
    s_lshl_b32 s58, s6, 15
    s_lshl_b32 s59, s3, 11
    s_add_u32 s58, s58, s59
    s_lshl_b32 s59, s7, 7
    s_add_u32 s58, s58, s59
    s_add_u32 s58, s58, {OP}
    v_lshlrev_b32 v251, 13, v4
    v_lshl_add_u32 v251, v2, 4, v251
    v_add_u32 v251, s58, v251
    s_mov_b32 s58, 0x0c0c0400
    s_mov_b32 s59, 0x04000c0c
    s_mov_b32 s61, 0xf8ffffff
    global_load_ushort v119, v120, s[8:9]
    s_cmp_ge_u32 s3, {0 if opt.get('nogather') else 2}
    s_cbranch_scc1 L_qskip
    {'global_load_dword v144, v144, s[28:29] ' + OTF if OT == 1 else ''}
    {'global_load_dword v145, v145, s[28:29] ' + OTF if OT == 1 else ''}
    {'s_sleep ' + str(opt['qdelay']) if opt.get('qdelay') else ''}
    s_mov_b32 s57, 0
    """)
    for c in range(4):
        a(f"global_load_dwordx4 v[{32+4*c}:{35+4*c}], v99, s[28:29] offset:{c*2048-4096} @L1@")
    a("s_branch L_qchk")
    a("L_qpoll:")
    for c in range(4):
        a(f"global_load_dwordx4 v[{32+4*c}:{35+4*c}], v99, s[28:29] offset:{c*2048-4096} @LF@")
    a("L_qchk:")
    a("s_waitcnt vmcnt(0)")
    for c in range(4):
        a(f"v_perm_b32 v{48+2*c}, v{33+4*c}, v{32+4*c}, s58")
        a(f"v_perm_b32 v{49+2*c}, v{35+4*c}, v{34+4*c}, s59")
        a(f"v_or_b32 v{48+2*c}, v{48+2*c}, v{49+2*c}")
        a(f"v_xor_b32 v{48+2*c}, s39, v{48+2*c}")
    a(f"""
    v_or3_b32 v48, v48, v50, v52
    v_or_b32 v56, v48, v54
    v_and_b32 v48, s61, v56
    v_cmp_ne_u32 vcc, 0, v48
    s_add_u32 s57, s57, 1
    s_mov_b64 exec, vcc
    s_cbranch_execz L_qdone
    s_cmp_lt_u32 s57, {NFAST}
    s_cbranch_scc1 L_qpoll
    buffer_wbl2 sc1
    buffer_inv sc1
    s_waitcnt vmcnt(0)
    s_cmp_lt_u32 s57, {SPIN}
    s_cbranch_scc1 L_qpoll
    L_qdone:
    s_mov_b64 exec, -1
    v_cmp_ne_u32 vcc, 0, v56
    s_movk_i32 s56, 0xff00
    """)
    for i in range(16):
        a(f"v_and_b32 v{32+i}, s56, v{32+i}")
    a(f"""
    s_or_b32 s56, vcc_lo, vcc_hi
    v_pk_add_f32 v[32:33], v[32:33], v[36:37]
    v_pk_add_f32 v[34:35], v[34:35], v[38:39]
    v_pk_add_f32 v[40:41], v[40:41], v[44:45]
    v_pk_add_f32 v[42:43], v[42:43], v[46:47]
    v_pk_add_f32 v[32:33], v[32:33], v[40:41]
    v_pk_add_f32 v[34:35], v[34:35], v[42:43]
    v_cvt_pk_bf16_f32 v32, v32, v33
    v_cvt_pk_bf16_f32 v33, v34, v35
    v_mov_b32 v34, s56
    v_mov_b32 v35, s60
    ds_write_b64 v100, v[32:33]
    ds_write_b32 v35, v34 offset:{MODEB}
    """)
    if stamps: a("s_mov_b32 s69, s57")
    stamp("S gathered")
    a(f"""
    L_qskip:
    v_mov_b32 v10, {R(0)+MODEB}
    s_waitcnt vmcnt(0) lgkmcnt(0)
    s_barrier
    """)
    stamp("B1", 5)
    a("""
    ds_read_b32 v8, v10
    ds_read_b32 v9, v10 offset:8192
    """)
    for j in range(4):
        a(f"ds_read_b128 v[{16+4*j}:{19+4*j}], v105 offset:{64*j}")
    def kread(blk):
        for j in range(4):
            d = 32 + 16 * blk + 4 * j
            a(f"ds_read_b128 v[{d}:{d+3}], v{101+j} offset:{4096*blk}")
    kread(0); kread(1)
    a("global_load_dwordx4 v[124:127], v108, s[28:29] offset:-2048 @L1@")
    a("global_load_dwordx4 v[12:15], v108, s[28:29] offset:2048 @L1@")
    if OT == 2:
        a(f"""
        s_cmp_ge_u32 s3, 2
        s_cbranch_scc1 L_not
        global_load_dword v144, v144, s[28:29] {OTF}
        global_load_dword v145, v145, s[28:29] {OTF}
        L_not:
        """)
    for blk in range(4):
        a(f"s_waitcnt lgkmcnt({4 if blk < 3 else 0})")
        for j in range(4):
            d = 32 + 16 * blk + 4 * j
            ac = 128 + 4 * blk
            a(f"v_mfma_f32_16x16x32_bf16 v[{ac}:{ac+3}], v[{d}:{d+3}], v[{16+4*j}:{19+4*j}], {'0' if j==0 else f'v[{ac}:{ac+3}]'}")
        if blk + 2 < 4: kread(blk + 2)
        if blk == 0:
            a("v_or_b32 v8, v8, v9")
            a("v_cmp_eq_u32 s[44:45], 1, v5")
            a("v_cmp_eq_u32 s[46:47], 2, v5")
            a("v_cmp_eq_u32 s[48:49], 3, v5")
            a("v_readfirstlane_b32 s60, v8")
            if opt.get('nogather'): a("s_mov_b32 s60, 0")
    a(f"s_mov_b32 s56, {SCALE}")
    a(f"s_mov_b32 s57, {LOG2E}")
    for blk in range(1, 4):
        for i in range(4):
            a(f"v_cndmask_b32 v{128+i}, v{128+i}, v{128+4*blk+i}, s[{42+2*blk}:{43+2*blk}]")
    a("""
    v_cvt_pk_bf16_f32 v40, v128, v129
    v_cvt_pk_bf16_f32 v41, v130, v131
    v_lshlrev_b32 v32, 16, v40
    v_and_b32 v33, s62, v40
    v_lshlrev_b32 v34, 16, v41
    v_and_b32 v35, s62, v41
    """)
    for i in range(4): a(f"v_mul_f32 v{32+i}, s56, v{32+i}")
    a("""
    v_cvt_pk_bf16_f32 v40, v32, v33
    v_cvt_pk_bf16_f32 v41, v34, v35
    v_lshlrev_b32 v32, 16, v40
    v_and_b32 v33, s62, v40
    v_lshlrev_b32 v34, 16, v41
    v_and_b32 v35, s62, v41
    v_max3_f32 v40, v32, v33, v34
    v_max_f32 v40, v40, v35
    """)
    reduce4(40, 41, "v_max_f32")
    for i in range(4): a(f"v_sub_f32 v{32+i}, v{32+i}, v40")
    for i in range(4): a(f"v_mul_f32 v{32+i}, s57, v{32+i}")
    for i in range(4): a(f"v_exp_f32 v{32+i}, v{32+i}")
    a("""
    v_mul_f32 v40, s57, v40
    v_cvt_pk_bf16_f32 v44, v32, v33
    v_cvt_pk_bf16_f32 v45, v34, v35
    ds_write_b64 v106, v[44:45]
    ds_write_b32 v107, v40
    v_add_f32 v32, v32, v33
    v_add_f32 v34, v34, v35
    v_add_f32 v32, v32, v34
    """)
    reduce4(32, 33)
    a("""
    ds_write_b32 v107, v32 offset:16
    s_cmp_eq_u32 s60, 0
    s_cbranch_scc1 L_nowb
    buffer_wbl2 sc1
    L_nowb:
    """)
    stamp("S softmax done", 6)
    a("""
    s_waitcnt lgkmcnt(0)
    s_barrier
    """)
    stamp("Bp", 7)
    PF = 148; VF = 180; AC = 212; AL = 244
    def rd(u):
        for q in range(2):
            for e in range(2):
                d = VF + 8 * (u % 4) + 4 * q + 2 * e
                a(f"ds_read_b64_tr_b16 v[{d}:{d+1}], v{248+q} offset:{8192*u+4096*e}")
    def pvm(u):
        for q in range(2):
            d = VF + 8 * (u % 4) + 4 * q
            ac = AC + 8 * (u >> 1) + 4 * q
            a(f"v_mfma_f32_16x16x32_bf16 v[{ac}:{ac+3}], v[{d}:{d+3}], v[{PF+4*u}:{PF+3+4*u}], {'0' if u % 2 == 0 else f'v[{ac}:{ac+3}]'}")
    a("""
    ds_read_b128 v[40:43], v122
    ds_read_b128 v[44:47], v122 offset:16
    """)
    for u in range(8):
        a(f"ds_read_b128 v[{PF+4*u}:{PF+3+4*u}], v250 offset:{256*u}")
    a("""
    s_waitcnt lgkmcnt(8)
    v_max3_f32 v48, v40, v41, v42
    v_max_f32 v48, v48, v43
    """)
    for i in range(4): a(f"v_sub_f32 v{40+i}, v{40+i}, v48")
    for i in range(4): a(f"v_exp_f32 v{40+i}, v{40+i}")
    a("""
    v_mul_f32 v49, v40, v44
    v_fmac_f32 v49, v41, v45
    v_fmac_f32 v49, v42, v46
    v_fmac_f32 v49, v43, v47
    v_log_f32 v50, v49
    v_rcp_f32 v49, v49
    s_cmp_lg_u32 s3, 3
    s_cbranch_scc1 L_nostat
    v_add_f32 v52, v50, v48
    s_mov_b32 exec_hi, 0
    global_store_dword v118, v52, s[28:29]
    s_mov_b64 exec, -1
    L_nostat:
    s_waitcnt lgkmcnt(0)
    """)
    assert nA <= 4 and nB - nA <= 4
    for u in range(nA): rd(u)
    for i in range(4): a(f"v_mul_f32 v{AL+i}, v{40+i}, v49")
    for u in range(nA):
        a(f"s_waitcnt lgkmcnt({min(15, 4*(nA-1-u))})")
        pvm(u)
    for q in range(4):
        for e in range(2):
            d = 80 + 4 * q + 2 * e
            a(f"ds_read_b64_tr_b16 v[{d}:{d+1}], v{111+q} offset:{(4+e)*1024}")
    a("""
    s_cbranch_scc1 L_nostat1
    s_waitcnt vmcnt(1)
    s_branch L_nostat2
    L_nostat1:
    s_waitcnt vmcnt(0)
    L_nostat2:
    """)
    a(f"""
    s_mov_b32 s57, 0
    s_branch L_gcheck
    L_gpoll:
    s_cmp_eq_u32 s60, 0
    s_cbranch_scc1 L_gload
    buffer_inv sc1
    s_waitcnt vmcnt(0)
    L_gload:
    global_load_dwordx4 v[124:127], v108, s[28:29] offset:-2048 @LF@
    global_load_dwordx4 v[12:15], v108, s[28:29] offset:2048 @LF@
    s_waitcnt vmcnt(0)
    L_gcheck:
    v_perm_b32 v48, v125, v124, s58
    v_perm_b32 v49, v127, v126, s59
    v_perm_b32 v50, v13, v12, s58
    v_perm_b32 v51, v15, v14, s59
    v_or_b32 v48, v48, v49
    v_or_b32 v50, v50, v51
    v_xor_b32 v48, s39, v48
    v_xor_b32 v50, s39, v50
    v_or_b32 v48, v48, v50
    v_and_b32 v48, s61, v48
    v_cmp_ne_u32 vcc, 0, v48
    s_add_u32 s57, s57, 1
    s_mov_b64 exec, vcc
    s_cbranch_execz L_gdone
    s_cmp_lt_u32 s57, {SPIN}
    s_cbranch_scc1 L_gpoll
    L_gdone:
    s_mov_b64 exec, -1
    s_movk_i32 s56, 0xff00
    """)
    for i in range(4): a(f"v_and_b32 v{124+i}, s56, v{124+i}")
    for i in range(4): a(f"v_and_b32 v{12+i}, s56, v{12+i}")
    a("v_pk_add_f32 v[124:125], v[124:125], v[12:13]")
    a("v_pk_add_f32 v[126:127], v[126:127], v[14:15]")
    for m in ("row_ror:4", "row_ror:8"):
        for i in range(4): dpp("v_add_f32", 124 + i, m)
    a("""
    v_cvt_pk_bf16_f32 v48, v124, v125
    v_cvt_pk_bf16_f32 v49, v126, v127
    v_lshlrev_b32 v124, 16, v48
    v_and_b32 v125, s62, v48
    v_lshlrev_b32 v126, 16, v49
    v_and_b32 v127, s62, v49
    """)
    for i in range(4): a(f"v_max_f32 v{48+i}, 0, v{124+i}")
    for i in range(4): a(f"v_mul_f32_dpp v{48+i}, v{124+i}, v{48+i} quad_perm:[2,3,0,1] {DPPM}")
    a("""
    v_cmp_eq_u32 s[44:45], 0, v1
    v_cmp_eq_u32 s[46:47], 1, v1
    v_cvt_pk_bf16_f32 v48, v48, v49
    v_cvt_pk_bf16_f32 v49, v50, v51
    v_cndmask_b32 v28, 0, v48, s[44:45]
    v_cndmask_b32 v29, 0, v49, s[44:45]
    v_cndmask_b32 v30, 0, v48, s[46:47]
    v_cndmask_b32 v31, 0, v49, s[46:47]
    s_waitcnt lgkmcnt(0)
    """)
    for q in range(4):
        a(f"v_mfma_f32_16x16x32_bf16 v[{32+4*q}:{35+4*q}], v[28:31], v[{80+4*q}:{83+4*q}], 0")
    SG = """
    global_load_dword v24, v110, s[28:29] @TF@
    global_load_dword v25, v110, s[28:29] offset:128 @TF@
    global_load_dword v26, v110, s[28:29] offset:256 @TF@
    global_load_dword v27, v110, s[28:29] offset:384 @TF@
    """
    OG = """
    global_load_dwordx4 v[16:19], v109, s[28:29] @TF@
    global_load_dwordx4 v[20:23], v109, s[28:29] offset:2048 @TF@
    """
    def weights():
        a("""
        v_max3_f32 v124, v24, v25, v26
        v_max_f32 v124, v124, v27
        """)
        reduce_g(124, 125, "v_max_f32")
        for i in range(4): a(f"v_sub_f32 v{8+i}, v{24+i}, v124")
        for i in range(4): a(f"v_exp_f32 v{8+i}, v{8+i}")
        a("""
        v_add_f32 v124, v8, v9
        v_add_f32 v125, v10, v11
        v_add_f32 v124, v124, v125
        """)
        reduce_g(124, 125)
        a("v_rcp_f32 v124, v124")
        for i in range(4): a(f"v_mul_f32 v{8+i}, v{8+i}, v124")
    for q in range(4):
        a(f"v_add_f32 v{32+4*q}, v{32+4*q}, v{33+4*q}")
    a("v_mov_b32 v33, s35")
    a("s_barrier")
    for u in range(nA, nB): rd(u)
    for u in range(nA, nB):
        a(f"s_waitcnt lgkmcnt({4*(nB-1-u)})")
        pvm(u)
    nW = nB // 2
    for i in range(8): a(f"v_mul_f32 v{AC+i}, v{AC+i}, v{AL}")
    for w_ in range(1, nW):
        for i in range(8): a(f"v_fmac_f32 v{AC+i}, v{AC+8*w_+i}, v{AL+w_}")
    a("s_barrier")
    stamp("BB", 8)
    for u in range(nB, 8): rd(u)
    a(SG)
    for u in range(nB, 8):
        a(f"s_waitcnt lgkmcnt({4*(7-u)})")
        pvm(u)
    for w_ in range(nW, 4):
        for i in range(8): a(f"v_fmac_f32 v{AC+i}, v{AC+8*w_+i}, v{AL+w_}")
    for i in range(4):
        a(f"v_cvt_pk_bf16_f32 v{AC+i}, v{AC+2*i}, v{AC+1+2*i}")
    a(f"""
    s_mov_b64 exec, s[64:65]
    global_store_dwordx4 v251, v[{AC}:{AC+3}], s[28:29]
    s_mov_b64 exec, -1
    s_cmp_eq_u32 s60, 0
    s_cbranch_scc1 L_sbc
    s_waitcnt vmcnt(0)
    L_sbc:
    s_barrier
    """)
    stamp("BC", 10)
    for ks in range(2):
        for q in range(4):
            for e in range(2):
                d = 48 + 16 * ks + 4 * q + 2 * e
                a(f"ds_read_b64_tr_b16 v[{d}:{d+1}], v{111+q} offset:{(2*ks+e)*1024}")
    a(f"""
    s_mov_b32 s57, 0
    s_cbranch_scc1 L_fast2
    s_cmp_lg_u32 s3, 0
    s_cbranch_scc1 L_slow2
    buffer_wbl2 sc1
    s_waitcnt vmcnt(0)
    v_add_u32 v34, {FL-ST}, v118
    s_mov_b64 exec, 1
    global_store_dword v34, v33, s[28:29] sc1
    s_mov_b64 exec, -1
    L_slow2:
    global_load_dword v34, v123, s[28:29] sc1
    s_waitcnt vmcnt(0)
    v_cmp_ne_u32 vcc, s35, v34
    s_add_u32 s57, s57, 1
    s_cbranch_vccz L_slow3
    s_cmp_lt_u32 s57, {SPIN}
    s_cbranch_scc1 L_slow2
    L_slow3:
    buffer_inv sc1
    s_waitcnt vmcnt(0)
    {SG}
    s_waitcnt vmcnt(0)
    L_fast2:
    """)
    stamp("og issue", 9); nst[0] = 11
    a(f"""
    {OG}
    s_waitcnt vmcnt(3)
    s_branch L_schk
    L_spoll:
    {SG}
    s_waitcnt vmcnt(0)
    L_schk:
    v_max3_u32 v124, v24, v25, v26
    v_max_u32 v124, v124, v27
    v_cmp_eq_u32 vcc, -1, v124
    s_add_u32 s57, s57, 1
    s_mov_b64 exec, vcc
    s_cbranch_execz L_sdone
    s_cmp_lt_u32 s57, {SPIN}
    s_cbranch_scc1 L_spoll
    L_sdone:
    s_mov_b64 exec, -1
    """)
    weights()
    if stamps: a("s_mov_b32 s69, s57")
    a(f"""
    s_mov_b32 s57, 0
    s_branch L_ochk
    L_opoll:
    {OG}
    L_ochk:
    s_waitcnt vmcnt(0)
    v_max3_u32 v124, v16, v17, v18
    v_max3_u32 v125, v19, v20, v21
    v_max3_u32 v124, v124, v22, v23
    v_max_u32 v124, v124, v125
    v_cmp_eq_u32 vcc, -1, v124
    s_add_u32 s57, s57, 1
    s_mov_b64 exec, vcc
    s_cbranch_execz L_odone
    s_cmp_lt_u32 s57, {SPIN}
    s_cbranch_scc1 L_opoll
    L_odone:
    s_mov_b64 exec, -1
    s_waitcnt lgkmcnt(0)
    """)
    if stamps: a("s_mov_b32 s68, s57")
    stamp("o gathered")
    for q in range(4):
        for ks in range(2):
            a(f"v_mfma_f32_16x16x32_bf16 v[{128+4*q}:{131+4*q}], v[{16+4*ks}:{19+4*ks}], v[{48+16*ks+4*q}:{51+16*ks+4*q}], {'0' if ks==0 else f'v[{128+4*q}:{131+4*q}]'}")
    for q in range(4):
        for i in range(4):
            a(f"v_fmac_f32 v{32+4*q}, v{8+i}, v{128+4*q+i}")
        if q == 2:
            a("v_permlane32_swap_b32 v32, v36")
            a("v_add_f32 v32, v32, v36")
    a("""
    v_permlane32_swap_b32 v40, v44
    v_add_f32 v40, v40, v44
    v_permlane16_swap_b32 v32, v40
    v_add_f32 v36, v32, v40
    v_bfi_b32 v36, v121, v117, v36
    s_mov_b32 s44, 0x11111111
    s_mov_b32 s45, 0x11111111
    """)
    for i in range(1, 4):
        a(f"v_mov_b32_dpp v{36+i}, v36 quad_perm:[{i},{i},{i},{i}] {DPPM}")
    a(f"""
    s_mov_b64 exec, s[44:45]
    global_store_dwordx4 v115, v[36:39], s[30:31] {opt.get('ffs', 'sc1')}
    s_mov_b64 exec, -1
    """)
    stamp("final published")
    if not opt.get('nofb'): a("s_barrier")
    a(f"""
    s_cmp_lg_u32 s3, 0
    s_cbranch_scc1 {'L_fin1' if stamps else 'L_end'}
    s_mov_b32 s57, 0
    v_lshlrev_b32 v28, 16, v119
    s_movk_i32 s56, 0xff00
    {'s_memrealtime s[74:75]' if stamps else ''}
    L_fpoll:
    global_load_dwordx4 v[16:19], v116, s[28:29] {opt.get('ffl', 'sc1')}
    s_waitcnt vmcnt(0)
    {'s_cmp_lg_u32 s57, 0' if stamps else ''}
    {'s_cbranch_scc1 L_fp1' if stamps else ''}
    {'s_memrealtime s[76:77]' if stamps else ''}
    {'L_fp1:' if stamps else ''}
    v_perm_b32 v24, v17, v16, s58
    v_perm_b32 v25, v19, v18, s59
    v_or_b32 v24, v24, v25
    v_cmp_ne_u32 vcc, s35, v24
    s_add_u32 s57, s57, 1
    s_mov_b64 exec, vcc
    s_cbranch_execz L_fdone
    s_cmp_lt_u32 s57, {SPIN}
    s_cbranch_scc1 L_fpoll
    L_fdone:
    s_mov_b64 exec, -1
    """)
    if stamps: a("s_mov_b32 s67, s57")
    for i in range(4): a(f"v_and_b32 v{16+i}, s56, v{16+i}")
    a("""
    v_permlane32_swap_b32 v16, v17
    v_permlane32_swap_b32 v18, v19
    v_add_f32 v16, v16, v17
    v_add_f32 v18, v18, v19
    s_mov_b32 s44, 0x00010001
    s_mov_b32 s45, 0x00010001
    v_permlane16_swap_b32 v16, v18
    v_add_f32 v16, v16, v18
    """)
    for m in ("quad_perm:[1,0,3,2]", "quad_perm:[2,3,0,1]", "row_ror:4", "row_ror:8"):
        dpp("v_add_f32", 16, m)
    a("""
    v_add_f32 v16, v16, v28
    v_cvt_pk_bf16_f32 v16, v16, v16
    s_mov_b64 exec, s[44:45]
    global_store_short v120, v16, s[26:27]
    s_cmp_lg_u32 s2, 0
    """)
    a(f"s_cbranch_scc1 {'L_fin0' if stamps else 'L_end'}")
    a("""
    s_mov_b64 exec, 1
    v_mov_b32 v19, 0
    global_store_dword v19, v33, s[30:31]
    """)
    if stamps:
        a("s_branch L_fin0")
        a("L_fin1:")
        a("s_waitcnt vmcnt(0)")
        a("L_fin0:")
        a("s_mov_b64 exec, -1")
        stamp("out stored")
        a("L_fin:")
        a("s_getreg_b32 s66, hwreg(HW_REG_XCC_ID)")
        a("v_mov_b32 v32, s70")
        for i in range(14):
            a(f"v_mov_b32 v{33+i}, s{72+2*i}")
        a("v_mov_b32 v47, s66")
        a("v_mov_b32 v48, s69")
        a("v_mov_b32 v49, s68")
        a("v_mov_b32 v50, s67")
        a("v_mov_b32 v51, s100")
        a(f"""
        s_lshl_b32 s58, s2, 10
        s_lshl_b32 s59, s3, 7
        s_add_u32 s58, s58, s59
        s_add_u32 s58, s58, {STAMP}
        v_mov_b32 v3, s58
        s_mov_b64 exec, 1
        """)
        for j in range(5):
            a(f"global_store_dwordx4 v3, v[{32+4*j}:{35+4*j}], s[30:31] offset:{16*j}")
    a("L_end:")
    if opt.get('probe'):
        a(f"""
        s_cmp_eq_u32 s74, 0
        s_cbranch_scc1 L_padd
        s_cmp_ge_u32 s3, {opt.get('probew', 8)}
        s_cbranch_scc1 L_padd
        s_cmp_lt_u32 s3, {opt.get('probel', 0)}
        s_cbranch_scc1 L_padd
        s_sub_u32 s74, s74, s76
        s_lshl_b32 s74, s74, 3
        s_min_u32 s74, s74, 20000
        s_add_u32 s74, s74, 1200
        L_pad:
        s_memrealtime s[72:73]
        s_waitcnt lgkmcnt(0)
        s_sub_u32 s72, s72, s70
        s_cmp_lt_u32 s72, s74
        s_cbranch_scc1 L_pad
        L_padd:
        """)
    if opt.get('padto'):
        a(f"""
        L_pad:
        s_memrealtime s[72:73]
        s_waitcnt lgkmcnt(0)
        s_sub_u32 s72, s72, s70
        s_cmp_lt_u32 s72, {opt['padto']}
        s_cbranch_scc1 L_pad
        """)
    a("s_endpgm")
    a.raw('.section .rodata,"a"')
    a.raw(".p2align 6")
    a.raw(f".amdhsa_kernel {NAME}_kernel")
    a.raw("  .amdhsa_next_free_vgpr 256")
    a.raw("  .amdhsa_next_free_sgpr 102")
    a.raw("  .amdhsa_accum_offset 256")
    a.raw("  .amdhsa_group_segment_fixed_size 0")
    a.raw("  .amdhsa_kernarg_size 96")
    a.raw("  .amdhsa_user_sgpr_count 2")
    a.raw("  .amdhsa_user_sgpr_kernarg_segment_ptr 1")
    a.raw("  .amdhsa_system_sgpr_workgroup_id_x 1")
    a.raw("  .amdhsa_float_denorm_mode_32 3")
    a.raw(".end_amdhsa_kernel")
    return a.text().replace('@LF@', LF).replace('@L1@', L1F).replace('@TF@', opt.get('tf', 'sc1'))

def parse_opt(s):
    opt = {}
    for kv in s.split(","):
        if kv:
            k, _, v = kv.partition("=")
            opt[k] = (int(v) if v.lstrip('-').isdigit() else v.replace('+', ' ')) if v else 1
    return opt

if __name__ == "__main__":
    ap = argparse.ArgumentParser()
    ap.add_argument("-o", default="k.s")
    ap.add_argument("--stamps", action="store_true")
    ap.add_argument("--opt", default="")
    args = ap.parse_args()
    open(args.o, "w").write(gen(args.stamps, parse_opt(args.opt)))
```

```python
import sys, argparse
from asmgen import Asm
NAME = "parallel_sum__sliding_block_cached__glu_gated_reglu__decode"

EX = 0x40000
QP = 0x0; GP = 0x8000; OP = 0x10000; FP = 0x20000; ST = 0x28000; FL = 0x29000
STAMP = 0x1000000
LW = 131072
def R(j): return LW + 8192 * j + 6144
MLB = R(2); PB = R(3); MODEB = 512
SPIN0 = 40000
LOG2E = 0x3fb8aa3b
SCALE = 0x3db504f3
DPPM = "row_mask:0xf bank_mask:0xf"
EINC = 0x08010101

HEADER = open("cdna_kernels/%s.s.ref" % NAME).read().split("; Override launch")[0]

def gen(stamps=False, opt=None):
    opt = opt or {}
    a0 = Asm()
    class W:
        raw = a0.raw; comment = a0.comment; text = a0.text
        def __call__(self, t): a0(t.replace('@PUB@', '; ' if opt.get('nopub') else ''))
    a = W()
    SPIN = opt.get('spin', SPIN0)
    rotmul = opt.get('rotmul', 37)
    kpre = opt.get('kpre', 4)
    vpre = opt.get('vpre', 8)
    NFAST = opt.get('nfast', 12)
    thr = opt.get('thr', 6)
    LF = opt.get('lf', 'sc1 nt')
    L1F = opt.get('l1f', 'sc1 nt').replace('none', '')
    thr2 = opt.get('thr2', 8); OT = opt.get('otouch', 1); OTF = opt.get('otf', 'sc1 nt'); vthr = opt.get('vthr', 4)
    TOUCH = opt.get('touch', 0)
    nst = [0]
    par = opt.get('par', 0)
    npar = [0]
    def TW(t):
        if not par: return f"s_waitcnt vmcnt({t-1})"
        npar[0] += 1
        return f"""s_waitcnt vmcnt({t-1})
        s_cbranch_vccnz L_par{npar[0]}
        s_waitcnt vmcnt({t-1-par})
        L_par{npar[0]}:"""
    def stamp(name, i=None):
        if opt.get('probe') == name.replace(' ', '_'):
            a("s_memrealtime s[74:75]")
            a("s_waitcnt lgkmcnt(0)")
        if opt.get('probe0') == name.replace(' ', '_'):
            a("s_memrealtime s[76:77]")
            a("s_waitcnt lgkmcnt(0)")
        if not stamps: return
        if i is not None: nst[0] = i
        i = nst[0]; nst[0] += 1
        assert i < 14
        a(f"s_memrealtime s[{72+2*i}:{73+2*i}]")
        a("s_waitcnt lgkmcnt(0)")
    def dpp(op, v, m): a(f"{op}_dpp v{v}, v{v}, v{v} {m} {DPPM}")
    def reduce_g(v, t, op="v_add_f32"):
        a(f"v_mov_b32 v{t}, v{v}")
        a(f"v_permlane16_swap_b32 v{v}, v{t}")
        a(f"{op} v{v}, v{v}, v{t}")
        a(f"v_mov_b32 v{t}, v{v}")
        a(f"v_permlane32_swap_b32 v{v}, v{t}")
        a(f"{op} v{v}, v{v}, v{t}")
    def reduce5(v, t, op="v_add_f32"):
        dpp(op, v, "quad_perm:[2,3,0,1]"); dpp(op, v, "row_ror:4"); dpp(op, v, "row_ror:8")
        reduce_g(v, t, op)
    def reduce4(v, t, op="v_add_f32"):
        dpp(op, v, "row_ror:4"); dpp(op, v, "row_ror:8")
        reduce_g(v, t, op)

    a.raw(HEADER.rstrip())
    a.raw("; @launch grid=(256,1,1) block=(512,1,1) lds=163840")
    a.raw('.amdgcn_target "amdgcn-amd-amdhsa--gfx950"')
    a.raw(".text")
    a.raw(f".globl {NAME}_kernel")
    a.raw(".p2align 12")
    a.raw(".p2align 8")
    a.raw(f".type {NAME}_kernel,@function")
    a.raw(f"{NAME}_kernel:")
    if stamps or opt.get('padto'): a("s_memrealtime s[70:71]")
    if opt.get('probe'): a("s_mov_b32 s74, 0")
    if opt.get('probe'): a("s_mov_b32 s3, 99")
    if opt.get('probe'): a("s_memrealtime s[70:71]")
    if opt.get('probe') and not opt.get('probe0'): a("s_memrealtime s[76:77]")
    a(f"""
    s_cmp_ge_u32 s2, 256
    s_cbranch_scc1 L_end
    s_load_dwordx16 s[8:23], s[0:1], 0
    s_load_dwordx8 s[24:31], s[0:1], 64
    v_lshrrev_b32 v3, 6, v0
    v_and_b32 v0, 63, v0
    v_readfirstlane_b32 s3, v3
    s_getpc_b64 s[56:57]
    s_lshr_b32 s5, s2, 3
    """)
    if not opt.get('nopf'):
        a(f"""
        s_and_b32 s58, s5, 15
        s_lshl_b32 s58, s58, 3
        s_add_u32 s58, s58, s3
        s_lshl_b32 s58, s58, 6
        s_min_u32 s58, s58, L_end-{NAME}_kernel-64
        s_load_dword s39, s[56:57], s58
        """)
    a(f"""
    v_and_b32 v1, 15, v0
    v_lshrrev_b32 v2, 4, v0
    s_and_b32 s4, s2, 7
    s_lshr_b32 s6, s5, 4
    s_and_b32 s7, s5, 15
    {'s_and_b32 s32, s5, 7' if opt.get('map2') else 's_lshr_b32 s32, s5, 2'}
    {'s_lshr_b32 s33, s5, 3' if opt.get('map2') else 's_and_b32 s33, s5, 3'}
    s_lshl_b32 s34, s4, 3
    s_add_u32 s34, s34, s32
    s_lshl_b32 s66, s4, 18
    s_add_u32 s66, s66, {EX}
    v_lshrrev_b32 v6, 3, v0
    v_and_b32 v7, 1, v2
    v_lshlrev_b32 v7, 1, v7
    v_and_b32 v8, 7, v0
    v_xor_b32 v7, v7, v8
    v_lshlrev_b32 v7, 4, v7
    v_lshl_add_u32 v28, v6, 13, v7
    v_xor_b32 v29, 64, v28
    s_and_b32 s46, s32, 1
    s_lshl_b32 s57, s33, 1
    s_add_u32 s46, s46, s57
    s_lshl_b32 s57, s46, 19
    s_and_b32 s58, s3, 3
    s_lshl_b32 s58, s58, 17
    s_add_u32 s57, s57, s58
    s_and_b32 s58, s34, 0xfe
    s_lshr_b32 s60, s3, 2
    s_add_u32 s58, s58, s60
    s_lshl_b32 s58, s58, 7
    s_add_u32 s57, s57, s58
    s_add_u32 s58, s57, 0x10000
    s_lshl_b32 s60, s3, 11
    s_add_u32 s60, s60, {LW}
    s_mov_b32 s50, 0x400000
    s_mov_b32 s51, 0x20000
    s_cmp_ge_u32 s3, 4
    s_cbranch_scc1 L_loader
    """)
    WQ = """
    s_add_u32 s28, s30, s66
    s_addc_u32 s29, s31, 0
    s_mov_b32 s48, s14
    s_mov_b32 s49, s15
    s_mov_b32 m0, s60
    s_add_u32 s60, s60, 1024
    buffer_load_dwordx4 v28, s[48:51], s57 offen nt lds
    s_mov_b32 m0, s60
    s_nop 0
    buffer_load_dwordx4 v29, s[48:51], s58 offen nt lds
    """
    XL = opt.get('xlate', 1)
    XL_ = """
    global_load_dwordx4 v[8:11], v4, s[8:9]
    global_load_dwordx4 v[12:15], v4, s[8:9] offset:16
    global_load_dwordx4 v[16:19], v5, s[8:9]
    """
    FF = """
    ; unit = ((7k+1)>>1) + (rl>>1) ; f = 2*unit + (rl&1) ; valid iff (rl>>1) < 4-(k&1)
    s_mul_i32 s63, s4, 7
    s_add_u32 s63, s63, 1
    s_and_b32 s63, s63, 0xfe
    s_add_u32 s63, s63, s32
    s_lshr_b32 s59, s32, 1
    s_and_b32 s62, s4, 1
    s_add_u32 s59, s59, s62
    s_cmp_lt_u32 s59, 4
    s_cselect_b32 s54, 0x1c0000, 0
    s_lshl_b32 s61, s3, 13
    s_add_u32 s61, s61, %d
    """ % (LW + 8192)
    a(f"""
    v_and_b32 v3, 1, v0
    v_lshlrev_b32 v3, 10, v3
    v_lshrrev_b32 v4, 1, v0
    v_lshl_add_u32 v4, v4, 5, v3
    v_lshrrev_b32 v5, 3, v1
    v_lshl_add_u32 v5, v5, 6, v3
    v_lshl_add_u32 v5, v2, 4, v5
    s_lshl_b32 s61, s46, 7
    v_add_u32 v5, s61, v5
    s_lshl_b32 s59, s7, 7
    s_lshl_b32 s62, s6, 15
    s_add_u32 s62, s62, {OP}
    s_lshl_b32 s64, s6, 11
    s_add_u32 s64, s64, {ST}
    s_cmp_eq_u32 s3, 0
    s_cselect_b32 s62, s62, s64
    s_cselect_b32 s64, 60, 0
    s_add_u32 s62, s62, s59
    v_and_b32 v20, s64, v0
    v_lshlrev_b32 v20, 9, v20
    v_and_b32 v21, 3, v0
    v_lshlrev_b32 v21, 4, v21
    v_add3_u32 v144, s62, v20, v21
    v_mov_b32 v24, -1
    v_mov_b32 v25, -1
    v_mov_b32 v26, -1
    v_mov_b32 v27, -1
    s_waitcnt lgkmcnt(0)
    {'s_memrealtime s[74:75]' if opt.get('probe') == 'karg' else ''}
    {'s_memrealtime s[100:101]' if stamps else ''}
    {'s_cmp_lt_u32 s3, 2' if XL else ''}
    {'s_cbranch_scc0 L_nox' if XL else ''}
    {XL_}
    {'L_nox:' if XL else ''}
    {WQ}
    s_load_dword s35, s[30:31], 0
    s_cmp_lt_u32 s3, 2
    s_cbranch_scc1 L_sx0
    s_barrier
    {FF}
    v_mul_u32_u24 v30, 3584, v6
    v_add_u32 v31, v30, v7
    v_xor_b32 v7, 64, v7
    v_add_u32 v30, v30, v7
    s_mul_i32 s56, s46, {64*3584}
    s_lshr_b32 s59, s63, 1
    s_lshl_b32 s59, s59, 7
    s_add_u32 s56, s56, s59
    s_mov_b32 s42, s54
    s_mov_b32 s43, 0x20000
    s_cmp_eq_u32 s3, 2
    s_cselect_b32 s40, s20, s22
    s_cselect_b32 s41, s21, s23
    s_sub_u32 s60, s61, 8192
    {XL_ if XL == 1 else ''}
    L_tloop:
    s_mov_b32 m0, s60
    s_add_u32 s60, s60, 1024
    buffer_load_dwordx4 v31, s[40:43], s56 offen nt lds
    s_add_u32 s56, s56, {8*3584}
    s_mov_b32 m0, s60
    s_add_u32 s60, s60, 1024
    buffer_load_dwordx4 v30, s[40:43], s56 offen nt lds
    s_add_u32 s56, s56, {8*3584}
    s_cmp_lt_u32 s60, s61
    s_cbranch_scc1 L_tloop
    {XL_ if XL == 2 else ''}
    s_waitcnt vmcnt({11 if XL else 8})
    s_barrier
    s_branch L_service
    L_sx0:
    global_store_dwordx4 v144, v[24:27], s[28:29]
    s_barrier
    {FF}
    s_branch L_service
    """)
    a("L_loader:")
    TLB = """
    s_lshl_b32 s37, s34, 16
    s_load_dword s38, s[12:13], s36
    s_load_dword s38, s[16:17], s37
    s_load_dword s38, s[24:25], 0
    s_load_dword s38, s[26:27], 0
    s_load_dword s38, s[10:11], s36
    s_load_dword s38, s[20:21], 0
    s_load_dword s38, s[22:23], 0
    """ if opt.get('tlb') else ""
    FTCH = f"""
    s_and_b32 s62, s7, 7
    s_lshl_b32 s62, s62, 3
    s_lshl_b32 s63, s56, 1
    s_add_u32 s62, s62, s63
    s_lshl_b64 exec, 3, s62
    global_load_dword v20, v116, s[28:29] {opt.get('ftf', 'sc1 nt')}
    s_mov_b64 exec, -1
    """
    a(f"""
    s_sub_u32 s56, s3, 4
    s_lshl_b32 s36, s56, 2
    v_add_u32 v3, s36, v2
    v_xor_b32 v4, v3, v1
    v_lshlrev_b32 v4, 4, v4
    v_lshl_add_u32 v4, v2, 8, v4
    v_and_b32 v5, 7, v3
    v_lshlrev_b32 v5, 1, v5
    v_xor_b32 v5, v5, v1
    v_lshlrev_b32 v5, 4, v5
    v_lshl_add_u32 v3, v3, 10, v5
    v_lshl_add_u32 v5, v2, 8, v5
    s_lshl_b32 s36, s6, 3
    s_add_u32 s36, s36, s4
    s_lshl_b32 s36, s36, 23
    s_lshl_b32 s59, s7, 16
    s_add_u32 s36, s36, s59
    s_add_u32 s36, s36, 0x700000
    s_mul_i32 s59, s2, {rotmul}
    s_add_u32 s59, s59, s56
    s_and_b32 s59, s59, 63
    s_lshl_b32 s59, s59, 10
    s_mov_b32 s42, 0x10000
    s_mov_b32 s43, 0x20000
    s_mov_b32 s46, 0x10000
    s_mov_b32 s47, 0x20000
    s_waitcnt lgkmcnt(0)
    {WQ}
    s_add_u32 s40, s10, s36
    s_addc_u32 s41, s11, 0
    s_lshl_b32 s60, s56, 10
    {TLB}
    s_barrier
    L_kloop0:
    s_mov_b32 m0, s60
    s_add_u32 s60, s60, 4096
    buffer_load_dwordx4 v4, s[40:43], s59 offen nt lds
    s_add_u32 s59, s59, 4096
    s_and_b32 s59, s59, 0xffff
    s_cmp_lt_u32 s60, {4096*kpre}
    s_cbranch_scc1 L_kloop0
    s_add_u32 s44, s12, s36
    s_addc_u32 s45, s13, 0
    s_mov_b32 s48, s16
    s_mov_b32 s49, s17
    s_lshl_b32 s57, s33, 8
    s_lshl_b32 s61, s34, 16
    s_add_u32 s61, s61, s57
    s_load_dword s35, s[30:31], 0
    s_getreg_b32 s57, hwreg(HW_REG_XCC_ID)
    s_bitcmp1_b32 s57, 0
    s_cselect_b64 vcc, -1, 0
    s_lshl_b32 s57, s6, 14
    s_lshl_b32 s58, s7, 4
    s_add_u32 s57, s57, s58
    s_add_u32 s57, s57, {FP}
    v_lshlrev_b32 v116, 8, v0
    v_add_u32 v116, s57, v116
    v_lshrrev_b32 v120, 1, v2
    v_and_b32 v6, 1, v2
    v_lshl_add_u32 v120, v6, 1, v120
    s_lshl_b32 s57, s4, 5
    s_add_u32 s57, s57, s5
    s_lshl_b32 s57, s57, 3
    v_lshl_add_u32 v120, v120, 1, s57
    s_waitcnt vmcnt({kpre})
    s_barrier
    global_load_ushort v119, v120, s[8:9]
    {FTCH if opt.get('ftch') == 1 else ''}
    {'global_load_ushort v118, v120, s[26:27] ' + opt['otch'].replace('plain', '') if opt.get('otch') else ''}
    L_kloop:
    {TW(thr)}
    s_mov_b32 m0, s60
    s_add_u32 s60, s60, 4096
    buffer_load_dwordx4 v4, s[40:43], s59 offen nt lds
    s_add_u32 s59, s59, 4096
    s_and_b32 s59, s59, 0xffff
    s_cmp_lt_u32 s60, 65536
    s_cbranch_scc1 L_kloop
    L_vloop:
    {TW(thr)}
    s_mov_b32 m0, s60
    s_add_u32 s60, s60, 4096
    buffer_load_dwordx4 v5, s[44:47], s59 offen nt lds
    s_add_u32 s59, s59, 4096
    s_and_b32 s59, s59, 0xffff
    s_cmp_lt_u32 s60, {65536 + 4096*min(vthr, vpre)}
    s_cbranch_scc1 L_vloop
    """)
    if vthr < vpre:
        a(f"""
    L_vloop1:
    {TW(thr2)}
    s_mov_b32 m0, s60
    s_add_u32 s60, s60, 4096
    buffer_load_dwordx4 v5, s[44:47], s59 offen nt lds
    s_add_u32 s59, s59, 4096
    s_and_b32 s59, s59, 0xffff
    s_cmp_lt_u32 s60, {65536 + 4096*vpre}
    s_cbranch_scc1 L_vloop1
    """)
    stamp("L pre issue", 0)
    a(f"s_waitcnt vmcnt({vpre}) lgkmcnt(0)")
    stamp("L K landed")
    a("s_barrier")
    stamp("B1", 5)
    tp = opt.get('tp', 14)
    if opt.get('ftch') == 2: a(FTCH)
    nA = opt.get('nA', (tp - thr2) // 2)
    nB = opt.get('nB', (20 - thr2) // 2)
    def vloop(lbl, end):
        a(f"""
        {lbl}:
        {TW(thr2)}
        s_mov_b32 m0, s60
        s_add_u32 s60, s60, 4096
        buffer_load_dwordx4 v5, s[44:47], s59 offen nt lds
        s_add_u32 s59, s59, 4096
        s_and_b32 s59, s59, 0xffff
        s_cmp_lt_u32 s60, {65536 + 4096*end}
        s_cbranch_scc1 {lbl}
        """)
    vloop("L_vloop2", tp)
    a(f"s_waitcnt vmcnt({tp - 2*nA})")
    stamp("L at Bp", 2)
    a("s_barrier")
    stamp("Bp", 7)
    if tp < 16: vloop("L_vloop3", 16)
    a(f"""
    s_lshl_b32 s60, s56, 13
    s_add_u32 s60, s60, {LW}
    """)
    for t in range(4):
        a(f"""
        s_add_u32 m0, s60, {t*1024}
        {TW(thr2)}
        buffer_load_dwordx4 v3, s[48:51], s61 offen nt lds
        s_add_u32 s61, s61, 16384
        """)
    a(f"s_waitcnt vmcnt({20 - 2*nB})")
    stamp("L at Bq", 3)
    a("s_barrier")
    a("s_waitcnt vmcnt(4)")
    stamp("L V landed", 4)
    a("s_barrier")
    stamp("BB", 8)
    a("s_waitcnt vmcnt(0)")
    stamp("L wo landed", 9)
    a("s_barrier")
    a("s_cmp_eq_u32 s3, 4")
    a("s_cbranch_scc1 L_final")
    a("s_branch L_fin" if stamps else ("s_branch L_end" if opt.get('probe') else "s_endpgm"))

    a("L_service:")
    a(f"""
    s_lshl_b32 s59, s7, 7
    s_mov_b32 s62, 0xffff0000
    s_mov_b32 s64, 0x000f000f
    s_mov_b32 s65, 0x000f000f
    v_and_b32 v4, 3, v1
    v_lshrrev_b32 v5, 2, v1
    v_and_b32 v6, 1, v2
    s_lshl_b32 s57, s3, 2
    v_add_u32 v95, s57, v2
    v_and_b32 v7, 7, v95
    v_lshlrev_b32 v7, 1, v7
    v_xor_b32 v7, v7, v1
    v_lshlrev_b32 v7, 4, v7
    v_lshl_add_u32 v95, v95, 10, v7
    s_lshl_b32 s50, s63, 15
    s_lshl_b32 s57, s33, 8
    s_add_u32 s50, s50, s57
    s_mov_b32 s52, s24
    s_mov_b32 s53, s25
    s_mov_b32 s55, 0x20000
    v_lshrrev_b32 v96, 3, v1
    v_lshl_add_u32 v96, v6, 1, v96
    v_lshlrev_b32 v96, 5, v96
    v_lshl_add_u32 v96, v5, 7, v96
    v_lshl_add_u32 v96, v2, 10, v96
    v_lshl_add_u32 v96, v4, 3, v96
    s_sub_u32 s60, s61, 8192
    v_add_u32 v96, s60, v96
    v_xor_b32 v97, 32, v96
    v_xor_b32 v92, 64, v96
    v_xor_b32 v93, 0x60, v96
    s_cmp_lt_u32 s3, 2
    s_cselect_b32 s57, 14, 8
    v_and_b32 v98, 1, v1
    v_lshlrev_b32 v98, s57, v98
    v_lshrrev_b32 v7, 1, v1
    v_lshl_add_u32 v98, v7, 6, v98
    v_lshl_add_u32 v98, v2, 4, v98
    s_lshr_b32 s56, s32, 1
    s_lshl_b32 s57, s56, 9
    s_lshl_b32 s58, s3, 8
    s_add_u32 s57, s57, s58
    s_lshl_b32 s58, s46, 11
    s_add_u32 s57, s57, s58
    s_add_u32 s57, s57, {QP}
    s_lshl_b32 s63, s56, 13
    s_add_u32 s63, s63, {GP}
    s_lshl_b32 s58, s46, 10
    s_add_u32 s58, s58, s63
    s_lshl_b32 s56, s3, 9
    s_add_u32 s58, s58, s56
    s_sub_u32 s58, s58, 1024
    s_and_b32 s56, s32, 1
    s_lshl_b32 s56, s56, 7
    s_add_u32 s63, s63, s56
    s_cmp_lt_u32 s3, 2
    s_cselect_b32 s57, s57, s58
    v_add_u32 v98, s57, v98
    v_cmp_eq_u32 s[44:45], 1, v7
    v_cmp_eq_u32 s[46:47], 2, v7
    v_cmp_eq_u32 s[48:49], 3, v7
    s_lshl_b32 s57, s6, 14
    s_lshl_b32 s58, s3, 10
    s_add_u32 s57, s57, s58
    s_add_u32 s57, s57, {QP+4096}
    v_lshlrev_b32 v99, 4, v0
    v_add_u32 v99, s57, v99
    v_add_u32 v94, 0x2000, v99
    s_add_u32 s60, s60, 6144
    v_lshlrev_b32 v100, 3, v0
    v_add_u32 v100, s60, v100
    s_lshl_b32 s58, s6, 11
    s_add_u32 s58, s58, s59
    s_add_u32 s58, s58, {ST}
    v_lshlrev_b32 v118, 2, v0
    v_add_u32 v118, s58, v118
    v_mov_b32 v121, 0xff
    s_getreg_b32 s68, hwreg(HW_REG_XCC_ID)
    s_and_b32 s68, s68, 7
    s_cmp_lt_u32 s3, 2
    s_cbranch_scc1 L_ln0
    s_waitcnt vmcnt({0 if XL == 2 else 8})
    s_branch L_ln
    L_ln0:
    s_waitcnt vmcnt(3)
    L_ln:
    """)
    stamp("S x landed", 0)
    for i in range(8):
        a(f"v_lshlrev_b32 v{32+2*i}, 16, v{8+i}")
        a(f"v_and_b32 v{33+2*i}, s62, v{8+i}")
    for i in range(4):
        a(f"v_pk_add_f32 v[{48+2*i}:{49+2*i}], v[{32+4*i}:{33+4*i}], v[{34+4*i}:{35+4*i}]")
    a("v_pk_add_f32 v[48:49], v[48:49], v[50:51]")
    a("v_pk_add_f32 v[52:53], v[52:53], v[54:55]")
    a("v_pk_add_f32 v[48:49], v[48:49], v[52:53]")
    a("v_add_f32 v48, v48, v49")
    reduce5(48, 49)
    a("v_mul_f32 v48, 0xbb000000, v48")
    a("v_mov_b32 v49, v48")
    for i in range(8):
        a(f"v_pk_add_f32 v[{32+2*i}:{33+2*i}], v[{32+2*i}:{33+2*i}], v[48:49]")
    a("v_pk_mul_f32 v[50:51], v[32:33], v[32:33]")
    a("v_pk_mul_f32 v[52:53], v[34:35], v[34:35]")
    for i in range(2, 8):
        d = 50 + 2 * (i & 1)
        a(f"v_pk_fma_f32 v[{d}:{d+1}], v[{32+2*i}:{33+2*i}], v[{32+2*i}:{33+2*i}], v[{d}:{d+1}]")
    a("v_pk_add_f32 v[50:51], v[50:51], v[52:53]")
    a("v_add_f32 v50, v50, v51")
    a("""
    v_cvt_pk_bf16_f32 v48, v48, v48
    v_and_b32 v48, s62, v48
    v_mov_b32 v49, v48
    """)
    dpp("v_add_f32", 50, "quad_perm:[2,3,0,1]")
    fr = []
    for i in range(4):
        fr.append(f"v_lshlrev_b32 v{32+2*i}, 16, v{16+i}")
        fr.append(f"v_and_b32 v{33+2*i}, s62, v{16+i}")
    for i in range(4):
        fr.append(f"v_pk_add_f32 v[{32+2*i}:{33+2*i}], v[{32+2*i}:{33+2*i}], v[48:49]")
    for i in range(4):
        fr.append(f"v_cvt_pk_bf16_f32 v{16+i}, v{32+2*i}, v{33+2*i}")
    for i in range(4):
        fr.append(f"v_lshlrev_b32 v{32+2*i}, 16, v{16+i}")
        fr.append(f"v_and_b32 v{33+2*i}, s62, v{16+i}")
    ch = [f"v_add_f32_dpp v50, v50, v50 row_ror:4 {DPPM}", None, None,
          f"v_add_f32_dpp v50, v50, v50 row_ror:8 {DPPM}", "v_mov_b32 v51, v50", None, None,
          "v_permlane16_swap_b32 v50, v51", "v_add_f32 v50, v50, v51", "v_mov_b32 v51, v50", None, None,
          "v_permlane32_swap_b32 v50, v51", "v_add_f32 v50, v50, v51",
          "v_mul_f32 v50, 0x3b000000, v50", "v_cvt_pk_bf16_f32 v50, v50, v50", "v_and_b32 v50, s62, v50",
          "v_add_f32 v50, 0x3727c5ac, v50", "v_cvt_pk_bf16_f32 v50, v50, v50", "v_and_b32 v50, s62, v50",
          "v_sqrt_f32 v50, v50", None, "v_cvt_pk_bf16_f32 v50, v50, v50", "v_and_b32 v50, s62, v50",
          "v_rcp_f32 v50, v50", None]
    for c in ch:
        a(c if c else fr.pop(0))
    a("v_mov_b32 v51, v50")
    for x in fr: a(x)
    for i in range(4):
        a(f"v_pk_mul_f32 v[{32+2*i}:{33+2*i}], v[{32+2*i}:{33+2*i}], v[50:51]")
    for i in range(4):
        a(f"v_cvt_pk_bf16_f32 v{16+i}, v{32+2*i}, v{33+2*i}")
    for i in range(4):
        a(f"v_mov_b32_dpp v{20+i}, v{16+i} row_ror:8 {DPPM}")
    a(f"""
    s_waitcnt lgkmcnt(0)
    s_add_u32 s35, s35, {EINC}
    s_lshr_b32 s36, s35, 8
    s_lshr_b32 s37, s35, 16
    s_lshr_b32 s38, s35, 24
    s_and_b32 s38, s38, 0xf8
    s_or_b32 s38, s38, s68
    s_and_b32 s39, s35, 0x00ffffff
    s_lshl_b32 s57, s38, 24
    s_or_b32 s39, s39, s57
    """)
    stamp("S LN done")
    a(f"""
    s_cmp_lt_u32 s3, 2
    s_waitcnt vmcnt(0)
    s_cbranch_scc0 L_w3
    s_barrier
    L_w3:
    """)
    stamp("S tile landed")
    TA = [96, 97, 92, 93]
    for aa in range(4):
        for ss in range(2):
            for e in range(2):
                d = 48 + 8 * aa + 4 * ss + 2 * e
                a(f"ds_read_b64_tr_b16 v[{d}:{d+1}], v{TA[aa]} offset:{ss*4096+e*512}")
    def p1mfma(aa):
        for ss in range(2):
            bi = 16 + 4 * ss
            a(f"v_mfma_f32_16x16x32_bf16 v[{32+4*aa}:{35+4*aa}], v[{48+8*aa+4*ss}:{51+8*aa+4*ss}], v[{bi}:{bi+3}], {'0' if ss==0 else f'v[{32+4*aa}:{35+4*aa}]'}")
    for aa in range(4):
        a(f"s_waitcnt lgkmcnt({12-4*aa})")
        p1mfma(aa)
    a("s_mov_b32 s56, 0x00ff00ff")
    a("s_mov_b32 s57, 0x00ff00ff")
    for aa in range(1, 4):
        for i in range(4):
            a(f"v_cndmask_b32 v{32+i}, v{32+i}, v{32+4*aa+i}, s[{42+2*aa}:{43+2*aa}]")
    for i in range(4):
        a(f"v_bfi_b32 v{32+i}, v121, s{35+i}, v{32+i}")
    a(f"""
    s_mov_b64 exec, s[56:57]
    @PUB@global_store_dwordx4 v98, v[32:35], s[28:29]
    s_mov_b64 exec, -1
    """)
    stamp("S published")
    a("""
    s_sub_u32 m0, s61, 4096
    s_add_u32 s51, s50, 16384
    buffer_load_dwordx4 v95, s[52:55], s50 offen nt lds
    s_sub_u32 m0, s61, 3072
    s_nop 0
    buffer_load_dwordx4 v95, s[52:55], s51 offen nt lds
    """)
    a(f"""
    v_xor_b32 v101, v2, v1
    v_lshlrev_b32 v101, 4, v101
    v_lshl_add_u32 v101, v1, 8, v101
    s_lshl_b32 s59, s3, 14
    v_add_u32 v101, s59, v101
    v_xor_b32 v102, 64, v101
    v_xor_b32 v103, 0x80, v101
    v_xor_b32 v104, 0xc0, v101
    v_and_b32 v105, 2, v1
    v_lshlrev_b32 v105, 12, v105
    v_and_b32 v7, 1, v1
    v_lshl_add_u32 v105, v7, 8, v105
    v_lshl_add_u32 v105, v2, 4, v105
    v_add_u32 v105, {R(0)}, v105
    v_lshrrev_b32 v106, 1, v5
    v_lshlrev_b32 v106, 8, v106
    v_lshl_add_u32 v106, v2, 6, v106
    v_lshl_add_u32 v106, v4, 4, v106
    v_and_b32 v8, 1, v5
    v_lshl_add_u32 v106, v8, 3, v106
    s_lshl_b32 s59, s3, 9
    s_add_u32 s59, s59, {PB}
    v_add_u32 v106, s59, v106
    v_lshlrev_b32 v122, 5, v4
    v_add_u32 v122, {MLB}, v122
    s_lshl_b32 s59, s3, 2
    v_add_u32 v107, s59, v122
    s_and_b32 s56, s3, 1
    v_lshlrev_b32 v108, 10, v5
    v_and_b32 v8, 2, v1
    v_lshl_add_u32 v108, v8, 8, v108
    v_lshl_add_u32 v108, v7, 6, v108
    v_lshl_add_u32 v108, v2, 4, v108
    s_lshl_b32 s59, s56, 8
    s_add_u32 s59, s59, s63
    s_add_u32 s59, s59, 2048
    v_add_u32 v108, s59, v108
    s_mov_b32 s57, s56
    s_lshl_b32 s58, s57, 15
    s_lshl_b32 s59, s32, 12
    s_add_u32 s58, s58, s59
    s_add_u32 s58, s58, {OP}
    v_lshlrev_b32 v123, 7, v1
    v_lshl_add_u32 v109, v2, 4, v123
    v_add_u32 v109, s58, v109
    s_lshl_b32 s58, s57, 11
    s_add_u32 s59, s58, {FL}
    v_add_u32 v123, s59, v123
    s_lshr_b32 s59, s32, 1
    s_lshl_b32 s59, s59, 2
    s_add_u32 s58, s58, s59
    s_add_u32 s58, s58, {ST}
    v_lshl_add_u32 v110, v2, 2, v4
    v_lshlrev_b32 v110, 7, v110
    v_add_u32 v110, s58, v110
    v_lshl_add_u32 v8, v6, 2, v5
    s_lshl_b32 s58, s3, 1
    s_and_b32 s58, s58, 4
    v_xor_b32 v8, s58, v8
    v_lshlrev_b32 v8, 5, v8
    v_lshl_add_u32 v111, v5, 8, v8
    v_lshl_add_u32 v111, v4, 3, v111
    v_lshl_add_u32 v111, v2, 13, v111
    v_add_u32 v111, {LW}, v111
    v_xor_b32 v112, 32, v111
    v_xor_b32 v113, 64, v111
    v_xor_b32 v114, 0x60, v111
    v_lshrrev_b32 v115, 1, v2
    v_lshl_add_u32 v115, v6, 1, v115
    v_lshl_add_u32 v115, v115, 4, v1
    v_lshlrev_b32 v115, 2, v115
    s_lshl_b32 s58, s56, 20
    s_lshl_b32 s59, s33, 18
    s_add_u32 s58, s58, s59
    s_lshr_b32 s59, s3, 1
    s_lshl_b32 s59, s59, 14
    s_add_u32 s58, s58, s59
    s_lshl_b32 s59, s34, 8
    s_add_u32 s58, s58, s59
    s_add_u32 s58, s58, {FP+EX}
    v_add_u32 v115, s58, v115
    v_lshlrev_b32 v117, 3, v4
    v_lshrrev_b32 v117, v117, s35
    v_lshlrev_b32 v250, 4, v4
    v_lshl_add_u32 v250, v2, 6, v250
    v_add_u32 v250, {PB}, v250
    v_lshl_add_u32 v248, v2, 2, v5
    v_and_b32 v249, 7, v248
    s_lshl_b32 s58, s3, 1
    v_xor_b32 v249, s58, v249
    v_lshlrev_b32 v249, 5, v249
    v_lshl_add_u32 v248, v248, 8, v249
    v_lshl_add_u32 v248, v4, 3, v248
    v_add_u32 v248, 0x10000, v248
    v_xor_b32 v249, 32, v248
    s_lshl_b32 s58, s6, 15
    s_lshl_b32 s59, s3, 11
    s_add_u32 s58, s58, s59
    s_lshl_b32 s59, s7, 7
    s_add_u32 s58, s58, s59
    s_add_u32 s58, s58, {OP}
    v_lshlrev_b32 v251, 13, v4
    v_lshl_add_u32 v251, v2, 4, v251
    v_add_u32 v251, s58, v251
    s_mov_b32 s58, 0x0c0c0400
    s_mov_b32 s59, 0x04000c0c
    s_mov_b32 s61, 0xf8ffffff
    s_cmp_ge_u32 s3, {0 if opt.get('nogather') else 2}
    s_cbranch_scc1 L_qskip
    {'global_load_dword v144, v144, s[28:29] ' + OTF if OT == 1 else ''}
    {'s_sleep ' + str(opt['qdelay']) if opt.get('qdelay') else ''}
    {'s_waitcnt vmcnt(%d)' % (opt['qwait'] - 1) if opt.get('qwait') else ''}
    s_mov_b32 s57, 0
    """)
    a("L_qpoll:")
    for c in range(8):
        a(f"global_load_dwordx4 v[{32+4*c}:{35+4*c}], v{99 if c < 4 else 94}, s[28:29] offset:{(c&3)*2048-4096} @LF@")
    for c in range(8):
        a(f"s_waitcnt vmcnt({7-c})")
        a(f"v_perm_b32 v{64+2*c}, v{33+4*c}, v{32+4*c}, s58")
        a(f"v_perm_b32 v{65+2*c}, v{35+4*c}, v{34+4*c}, s59")
        a(f"v_or_b32 v{64+2*c}, v{64+2*c}, v{65+2*c}")
        a(f"v_xor_b32 v{64+2*c}, s39, v{64+2*c}")
    a(f"""
    v_or3_b32 v64, v64, v66, v68
    v_or3_b32 v70, v70, v72, v74
    v_or3_b32 v64, v64, v76, v78
    v_or_b32 v80, v64, v70
    v_and_b32 v64, s61, v80
    v_cmp_ne_u32 vcc, 0, v64
    s_add_u32 s57, s57, 1
    s_mov_b64 exec, vcc
    s_cbranch_execz L_qdone
    s_cmp_lt_u32 s57, {NFAST}
    s_cbranch_scc1 L_qpoll
    buffer_wbl2 sc1
    buffer_inv sc1
    s_waitcnt vmcnt(0)
    s_cmp_lt_u32 s57, {SPIN}
    s_cbranch_scc1 L_qpoll
    L_qdone:
    s_mov_b64 exec, -1
    v_cmp_ne_u32 vcc, 0, v80
    s_movk_i32 s56, 0xff00
    """)
    for i in range(32):
        a(f"v_and_b32 v{32+i}, s56, v{32+i}")
    a("s_or_b32 s56, vcc_lo, vcc_hi")
    for step in (4, 8, 16):
        for base in range(32, 64, 2 * step):
            for h in range(2):
                a(f"v_pk_add_f32 v[{base+2*h}:{base+2*h+1}], v[{base+2*h}:{base+2*h+1}], v[{base+step+2*h}:{base+step+2*h+1}]")
    a(f"""
    v_cvt_pk_bf16_f32 v32, v32, v33
    v_cvt_pk_bf16_f32 v33, v34, v35
    v_mov_b32 v34, s56
    v_mov_b32 v35, s60
    ds_write_b64 v100, v[32:33]
    ds_write_b32 v35, v34 offset:{MODEB}
    """)
    if stamps: a("s_mov_b32 s69, s57")
    stamp("S gathered")
    a(f"""
    L_qskip:
    v_mov_b32 v10, {R(0)+MODEB}
    s_waitcnt vmcnt(0) lgkmcnt(0)
    s_barrier
    """)
    stamp("B1", 5)
    a("""
    ds_read_b32 v8, v10
    ds_read_b32 v9, v10 offset:8192
    """)
    for j in range(4):
        a(f"ds_read_b128 v[{16+4*j}:{19+4*j}], v105 offset:{64*j}")
    def kread(blk):
        for j in range(4):
            d = 32 + 16 * blk + 4 * j
            a(f"ds_read_b128 v[{d}:{d+3}], v{101+j} offset:{4096*blk}")
    kread(0); kread(1)
    a("global_load_dwordx4 v[124:127], v108, s[28:29] offset:-2048 @L1@")
    a("global_load_dwordx4 v[12:15], v108, s[28:29] offset:2048 @L1@")
    for blk in range(4):
        a(f"s_waitcnt lgkmcnt({4 if blk < 3 else 0})")
        for j in range(4):
            d = 32 + 16 * blk + 4 * j
            ac = 128 + 4 * blk
            a(f"v_mfma_f32_16x16x32_bf16 v[{ac}:{ac+3}], v[{d}:{d+3}], v[{16+4*j}:{19+4*j}], {'0' if j==0 else f'v[{ac}:{ac+3}]'}")
        if blk + 2 < 4: kread(blk + 2)
        if blk == 0:
            a("v_or_b32 v8, v8, v9")
            a("v_cmp_eq_u32 s[44:45], 1, v5")
            a("v_cmp_eq_u32 s[46:47], 2, v5")
            a("v_cmp_eq_u32 s[48:49], 3, v5")
            a("v_readfirstlane_b32 s60, v8")
            if opt.get('nogather'): a("s_mov_b32 s60, 0")
    a(f"s_mov_b32 s56, {SCALE}")
    a(f"s_mov_b32 s57, {LOG2E}")
    for blk in range(1, 4):
        for i in range(4):
            a(f"v_cndmask_b32 v{128+i}, v{128+i}, v{128+4*blk+i}, s[{42+2*blk}:{43+2*blk}]")
    a("""
    v_cvt_pk_bf16_f32 v40, v128, v129
    v_cvt_pk_bf16_f32 v41, v130, v131
    v_lshlrev_b32 v32, 16, v40
    v_and_b32 v33, s62, v40
    v_lshlrev_b32 v34, 16, v41
    v_and_b32 v35, s62, v41
    """)
    for i in range(4): a(f"v_mul_f32 v{32+i}, s56, v{32+i}")
    a("""
    v_cvt_pk_bf16_f32 v40, v32, v33
    v_cvt_pk_bf16_f32 v41, v34, v35
    v_lshlrev_b32 v32, 16, v40
    v_and_b32 v33, s62, v40
    v_lshlrev_b32 v34, 16, v41
    v_and_b32 v35, s62, v41
    v_max3_f32 v40, v32, v33, v34
    v_max_f32 v40, v40, v35
    """)
    reduce4(40, 41, "v_max_f32")
    for i in range(4): a(f"v_sub_f32 v{32+i}, v{32+i}, v40")
    for i in range(4): a(f"v_mul_f32 v{32+i}, s57, v{32+i}")
    for i in range(4): a(f"v_exp_f32 v{32+i}, v{32+i}")
    a("""
    v_mul_f32 v40, s57, v40
    v_cvt_pk_bf16_f32 v44, v32, v33
    v_cvt_pk_bf16_f32 v45, v34, v35
    ds_write_b64 v106, v[44:45]
    ds_write_b32 v107, v40
    v_add_f32 v32, v32, v33
    v_add_f32 v34, v34, v35
    v_add_f32 v32, v32, v34
    """)
    reduce4(32, 33)
    a("""
    ds_write_b32 v107, v32 offset:16
    s_cmp_eq_u32 s60, 0
    s_cbranch_scc1 L_nowb
    buffer_wbl2 sc1
    L_nowb:
    """)
    stamp("S softmax done", 6)
    a("""
    s_waitcnt lgkmcnt(0)
    s_barrier
    """)
    stamp("Bp", 7)
    PF = 148; VF = 180; AC = 212; AL = 244
    def rd(u):
        for q in range(2):
            for e in range(2):
                d = VF + 8 * (u % 4) + 4 * q + 2 * e
                a(f"ds_read_b64_tr_b16 v[{d}:{d+1}], v{248+q} offset:{8192*u+4096*e}")
    def pvm(u):
        for q in range(2):
            d = VF + 8 * (u % 4) + 4 * q
            ac = AC + 8 * (u >> 1) + 4 * q
            a(f"v_mfma_f32_16x16x32_bf16 v[{ac}:{ac+3}], v[{d}:{d+3}], v[{PF+4*u}:{PF+3+4*u}], {'0' if u % 2 == 0 else f'v[{ac}:{ac+3}]'}")
    a("""
    ds_read_b128 v[40:43], v122
    ds_read_b128 v[44:47], v122 offset:16
    """)
    for u in range(8):
        a(f"ds_read_b128 v[{PF+4*u}:{PF+3+4*u}], v250 offset:{256*u}")
    a("""
    s_waitcnt lgkmcnt(8)
    v_max3_f32 v48, v40, v41, v42
    v_max_f32 v48, v48, v43
    """)
    for i in range(4): a(f"v_sub_f32 v{40+i}, v{40+i}, v48")
    for i in range(4): a(f"v_exp_f32 v{40+i}, v{40+i}")
    a("""
    v_mul_f32 v49, v40, v44
    v_fmac_f32 v49, v41, v45
    v_fmac_f32 v49, v42, v46
    v_fmac_f32 v49, v43, v47
    v_log_f32 v50, v49
    v_rcp_f32 v49, v49
    s_cmp_lg_u32 s3, 3
    s_cbranch_scc1 L_nostat
    v_add_f32 v52, v50, v48
    s_mov_b32 exec_hi, 0
    global_store_dword v118, v52, s[28:29]
    s_mov_b64 exec, -1
    L_nostat:
    s_waitcnt lgkmcnt(0)
    """)
    assert nA <= 4 and nB - nA <= 4 and 8 - nB <= 4
    for u in range(nA): rd(u)
    for i in range(4): a(f"v_mul_f32 v{AL+i}, v{40+i}, v49")
    for u in range(nA):
        a(f"s_waitcnt lgkmcnt({min(15, 4*(nA-1-u))})")
        pvm(u)
    for q in range(4):
        for e in range(2):
            d = 80 + 4 * q + 2 * e
            a(f"ds_read_b64_tr_b16 v[{d}:{d+1}], v{111+q} offset:{(4+e)*1024}")
    a("""
    s_cbranch_scc1 L_nostat1
    s_waitcnt vmcnt(1)
    s_branch L_nostat2
    L_nostat1:
    s_waitcnt vmcnt(0)
    L_nostat2:
    """)
    a(f"""
    s_mov_b32 s57, 0
    L_gcheck:
    v_perm_b32 v48, v125, v124, s58
    v_perm_b32 v49, v127, v126, s59
    v_perm_b32 v50, v13, v12, s58
    v_perm_b32 v51, v15, v14, s59
    v_or_b32 v48, v48, v49
    v_or_b32 v50, v50, v51
    v_xor_b32 v48, s39, v48
    v_xor_b32 v50, s39, v50
    v_or_b32 v48, v48, v50
    v_and_b32 v48, s61, v48
    v_cmp_ne_u32 vcc, 0, v48
    s_movk_i32 s56, 0xff00
    s_cbranch_vccnz L_gpoll
    L_gdone:
    """)
    for i in range(4): a(f"v_and_b32 v{124+i}, s56, v{124+i}")
    for i in range(4): a(f"v_and_b32 v{12+i}, s56, v{12+i}")
    a("v_pk_add_f32 v[124:125], v[124:125], v[12:13]")
    a("v_pk_add_f32 v[126:127], v[126:127], v[14:15]")
    for m in ("row_ror:4", "row_ror:8"):
        for i in range(4): dpp("v_add_f32", 124 + i, m)
    a("""
    v_cvt_pk_bf16_f32 v48, v124, v125
    v_cvt_pk_bf16_f32 v49, v126, v127
    v_lshlrev_b32 v124, 16, v48
    v_and_b32 v125, s62, v48
    v_lshlrev_b32 v126, 16, v49
    v_and_b32 v127, s62, v49
    """)
    for i in range(4): a(f"v_max_f32 v{48+i}, 0, v{124+i}")
    for i in range(4): a(f"v_mul_f32_dpp v{48+i}, v{124+i}, v{48+i} quad_perm:[2,3,0,1] {DPPM}")
    a("""
    v_cmp_eq_u32 s[44:45], 0, v1
    v_cmp_eq_u32 s[46:47], 1, v1
    v_cvt_pk_bf16_f32 v48, v48, v49
    v_cvt_pk_bf16_f32 v49, v50, v51
    v_cndmask_b32 v28, 0, v48, s[44:45]
    v_cndmask_b32 v29, 0, v49, s[44:45]
    v_cndmask_b32 v30, 0, v48, s[46:47]
    v_cndmask_b32 v31, 0, v49, s[46:47]
    s_waitcnt lgkmcnt(0)
    """)
    for q in range(4):
        a(f"v_mfma_f32_16x16x32_bf16 v[{32+4*q}:{35+4*q}], v[28:31], v[{80+4*q}:{83+4*q}], 0")
    SG = "global_load_dword v24, v110, s[28:29] @TF@"
    OG = """
    global_load_dwordx4 v[16:19], v109, s[28:29] @TF@
    global_load_dwordx4 v[20:23], v109, s[28:29] offset:2048 @TF@
    """
    for q in range(4):
        a(f"v_add_f32 v{32+4*q}, v{32+4*q}, v{33+4*q}")
    a("""
    v_mov_b32 v33, s35
    s_mov_b32 s44, 0x11111111
    s_mov_b32 s45, 0x11111111
    v_permlane32_swap_b32 v32, v36
    v_permlane32_swap_b32 v40, v44
    v_add_f32 v32, v32, v36
    v_add_f32 v40, v40, v44
    v_permlane16_swap_b32 v32, v40
    v_add_f32 v36, v32, v40
    s_barrier
    """)
    for u in range(nA, nB): rd(u)
    for u in range(nA, nB):
        a(f"s_waitcnt lgkmcnt({4*(nB-1-u)})")
        pvm(u)
    nW = nB // 2
    for i in range(8): a(f"v_mul_f32 v{AC+i}, v{AC+i}, v{AL}")
    for w_ in range(1, nW):
        for i in range(8): a(f"v_fmac_f32 v{AC+i}, v{AC+8*w_+i}, v{AL+w_}")
    a("s_cmp_eq_u32 s60, 0")
    a("s_barrier")
    stamp("BB", 8)
    for u in range(nB, 8): rd(u)
    a(SG)
    for u in range(nB, 8):
        a(f"s_waitcnt lgkmcnt({4*(7-u)})")
        pvm(u)
    a("s_mov_b64 exec, s[64:65]")
    for h in range(2):
        for w_ in range(nW, 4):
            for i in range(4 * h, 4 * h + 4): a(f"v_fmac_f32 v{AC+i}, v{AC+8*w_+i}, v{AL+w_}")
        for i in range(2 * h, 2 * h + 2):
            a(f"v_cvt_pk_bf16_f32 v{40+i}, v{AC+2*i}, v{AC+1+2*i}")
    a(f"""
    global_store_dwordx4 v251, v[40:43], s[28:29]
    s_mov_b64 exec, -1
    s_mov_b32 s57, 0
    s_cbranch_scc0 L_slow
    {'s_sleep ' + str(opt['ogsl']) if opt.get('ogsl') else ''}
    {OG if opt.get('ogpre') else ''}
    s_barrier
    L_fast2:
    """)
    stamp("BC", 10)
    if opt.get('cut'): a("s_endpgm")
    if not opt.get('ogpre'): a(OG)
    for ks in range(2):
        for q in range(4):
            for e in range(2):
                d = 48 + 16 * ks + 4 * q + 2 * e
                a(f"ds_read_b64_tr_b16 v[{d}:{d+1}], v{111+q} offset:{(2*ks+e)*1024}")
    a(f"""
    s_waitcnt vmcnt(3)
    L_schk:
    v_cmp_eq_u32 vcc, -1, v24
    v_max_f32_dpp v124, v24, v24 quad_perm:[1,0,3,2] {DPPM}
    s_cbranch_vccnz L_spoll
    L_sdone:
    """)
    dpp("v_max_f32", 124, "quad_perm:[2,3,0,1]")
    reduce_g(124, 125, "v_max_f32")
    a(f"""
    v_sub_f32 v8, v24, v124
    v_exp_f32 v8, v8
    v_add_f32_dpp v9, v8, v8 quad_perm:[1,0,3,2] {DPPM}
    """)
    dpp("v_add_f32", 9, "quad_perm:[2,3,0,1]")
    reduce_g(9, 125)
    a(f"""
    v_rcp_f32 v9, v9
    s_mov_b32 s57, 0
    v_mul_f32 v8, v8, v9
    v_mov_b32_dpp v10, v8 quad_perm:[0,0,0,0] {DPPM}
    v_mov_b32_dpp v11, v8 quad_perm:[1,1,1,1] {DPPM}
    v_mov_b32_dpp v12, v8 quad_perm:[2,2,2,2] {DPPM}
    v_mov_b32_dpp v13, v8 quad_perm:[3,3,3,3] {DPPM}
    s_branch L_ochk
    L_opoll:
    {OG}
    L_ochk:
    s_waitcnt vmcnt(0)
    v_max3_u32 v124, v16, v17, v18
    v_max3_u32 v125, v19, v20, v21
    v_max3_u32 v124, v124, v22, v23
    v_max_u32 v124, v124, v125
    v_cmp_eq_u32 vcc, -1, v124
    s_add_u32 s57, s57, 1
    s_mov_b64 exec, vcc
    s_cbranch_execz L_odone
    {'s_sleep ' + str(opt['oback']) if opt.get('oback') else ''}
    s_cmp_lt_u32 s57, {SPIN}
    s_cbranch_scc1 L_opoll
    L_odone:
    s_mov_b64 exec, -1
    s_waitcnt lgkmcnt(0)
    """)
    if stamps: a("s_mov_b32 s68, s57")
    stamp("o gathered", 11)
    def s2m(q):
        for ks in range(2):
            a(f"v_mfma_f32_16x16x32_bf16 v[{128+4*q}:{131+4*q}], v[{16+4*ks}:{19+4*ks}], v[{48+16*ks+4*q}:{51+16*ks+4*q}], {'0' if ks==0 else f'v[{128+4*q}:{131+4*q}]'}")
    def s2f(q):
        a(f"v_mul_f32 v{128+4*q}, v10, v{128+4*q}")
        for i in range(1, 4):
            a(f"v_fmac_f32 v{128+4*q}, v{10+i}, v{128+4*q+i}")
    for q in range(4): s2m(q)
    if opt.get('bd', 4) in (1, 5): a("s_barrier")
    s2f(0); s2f(1); s2f(2)
    a("v_permlane32_swap_b32 v128, v132")
    a("v_add_f32 v128, v128, v132")
    s2f(3)
    a("""
    v_permlane32_swap_b32 v136, v140
    v_add_f32 v136, v136, v140
    v_permlane16_swap_b32 v128, v136
    v_add_f32 v36, v36, v128
    v_add_f32 v36, v36, v136
    v_bfi_b32 v36, v121, v117, v36
    """)
    for i in range(1, 4):
        a(f"v_mov_b32_dpp v{36+i}, v36 quad_perm:[{i},{i},{i},{i}] {DPPM}")
    a(f"""
    s_mov_b64 exec, s[44:45]
    global_store_dwordx4 v115, v[36:39], s[30:31] {opt.get('ffs', 'sc1')}
    {'s_mov_b64 exec, -1' if stamps or opt.get('probe') else ''}
    """)
    stamp("final published")
    if opt.get('ewb'):
        a(f"""
        s_lshl_b32 s56, s5, 2
        s_add_u32 s56, s56, s3
        s_and_b32 s56, s56, {opt['ewb']}
        s_cmp_lg_u32 s56, 1
        s_cbranch_scc1 L_newb
        buffer_wbl2 sc1
        L_newb:
        """)
    if opt.get('bd', 4) == 3: a("s_barrier")
    if opt.get('bd', 4) in (4, 5):
        a("s_waitcnt vmcnt(0)")
        a("s_barrier")
    a("s_branch L_fin1" if stamps else ("s_branch L_end" if opt.get('probe') or opt.get('padto') else "s_endpgm"))
    a(f"""
    L_gpoll:
    s_add_u32 s57, s57, 1
    s_cmp_ge_u32 s57, {SPIN}
    s_cbranch_scc1 L_gdone
    s_cmp_eq_u32 s60, 0
    s_cbranch_scc1 L_gload
    buffer_inv sc1
    s_waitcnt vmcnt(0)
    L_gload:
    global_load_dwordx4 v[124:127], v108, s[28:29] offset:-2048 @LF@
    global_load_dwordx4 v[12:15], v108, s[28:29] offset:2048 @LF@
    s_waitcnt vmcnt(0)
    s_branch L_gcheck
    L_spoll:
    s_add_u32 s57, s57, 1
    s_cmp_ge_u32 s57, {SPIN}
    s_cbranch_scc1 L_sdone
    s_waitcnt vmcnt(0)
    {SG}
    {OG}
    s_waitcnt vmcnt(2)
    s_branch L_schk
    L_slow:
    s_waitcnt vmcnt(0)
    s_barrier
    s_cmp_lg_u32 s3, 0
    s_cbranch_scc1 L_slow2
    buffer_wbl2 sc1
    s_waitcnt vmcnt(0)
    v_add_u32 v34, {FL-ST}, v118
    s_mov_b64 exec, 1
    global_store_dword v34, v33, s[28:29] sc1
    s_mov_b64 exec, -1
    L_slow2:
    global_load_dword v34, v123, s[28:29] sc1
    s_waitcnt vmcnt(0)
    v_cmp_ne_u32 vcc, s35, v34
    s_add_u32 s57, s57, 1
    s_cbranch_vccz L_slow3
    s_cmp_lt_u32 s57, {SPIN}
    s_cbranch_scc1 L_slow2
    L_slow3:
    buffer_inv sc1
    s_waitcnt vmcnt(0)
    {SG}
    {OG if opt.get('ogpre') else ''}
    s_waitcnt vmcnt(0)
    s_mov_b32 s57, 0
    s_branch L_fast2
    """)
    a(f"""
    L_final:
    {'s_endpgm' if opt.get('cut') else ''}
    s_add_u32 s35, s35, {EINC}
    s_mov_b32 s58, 0x0c0c0400
    s_mov_b32 s59, 0x04000c0c
    s_mov_b32 s57, 0
    v_lshlrev_b32 v28, 16, v119
    v_mov_b32 v33, s35
    s_movk_i32 s56, 0xff00
    v_not_b32 v16, v33
    s_barrier
    {'s_barrier' if opt.get('bd', 4) == 5 else ''}
    {'s_memrealtime s[74:75]' if stamps else ''}
    {'s_memrealtime s[76:77]' if stamps else ''}
    {'s_sleep ' + str(opt['fwait']) if opt.get('fwait') else ''}
    {'global_load_dwordx4 v[16:19], v116, s[28:29] sc1' if opt.get('fdepth') else ''}
    {'s_waitcnt vmcnt(0)' if opt.get('fdepth') else ''}
    {'s_branch L_fchk' if opt.get('fdepth') else ''}
    L_fpoll:
    global_load_dwordx4 v[16:19], v116, s[28:29] {opt.get('ffl', 'sc1')}
    s_waitcnt vmcnt({opt.get('fdepth', 0)})
    {'s_sleep ' + str(opt['fsleep']) if opt.get('fsleep') else ''}
    L_fchk:
    v_perm_b32 v24, v17, v16, s58
    v_perm_b32 v25, v19, v18, s59
    v_or_b32 v24, v24, v25
    v_cmp_ne_u32 vcc, s35, v24
    s_add_u32 s57, s57, 1
    s_mov_b64 exec, vcc
    s_cbranch_execz L_fdone
    {'s_sleep ' + str(opt['fback']) if opt.get('fback') else ''}
    s_cmp_lt_u32 s57, {SPIN*8}
    s_cbranch_scc1 L_fpoll
    L_fdone:
    s_mov_b64 exec, -1
    """)
    if opt.get('fdepth'):
        a("""
        s_waitcnt vmcnt(0)
        v_perm_b32 v24, v17, v16, s58
        v_perm_b32 v25, v19, v18, s59
        v_or_b32 v24, v24, v25
        v_cmp_ne_u32 vcc, s35, v24
        """)
        a(f"s_cmp_lt_u32 s57, {SPIN*8}")
        a("s_cselect_b64 vcc, vcc, 0")
        a("s_cbranch_vccnz L_fchk")
    if stamps: a("s_mov_b32 s67, s57")
    if not stamps: stamp("fdone")
    for i in range(4): a(f"v_and_b32 v{16+i}, s56, v{16+i}")
    a("""
    v_permlane32_swap_b32 v16, v17
    v_permlane32_swap_b32 v18, v19
    v_add_f32 v16, v16, v17
    v_add_f32 v18, v18, v19
    s_mov_b32 s44, 0x00010001
    s_mov_b32 s45, 0x00010001
    v_permlane16_swap_b32 v16, v18
    v_add_f32 v16, v16, v18
    """)
    for m in ("quad_perm:[1,0,3,2]", "quad_perm:[2,3,0,1]", "row_ror:4", "row_ror:8"):
        dpp("v_add_f32", 16, m)
    if opt.get('pack'):
        PACK = f"""
        v_mov_b32 v17, v16
        v_permlane32_swap_b32 v16, v17
        v_cvt_pk_bf16_f32 v16, v16, v17
        v_mov_b32 v17, v16
        v_permlane16_swap_b32 v16, v17
        s_mov_b64 exec, 1
        global_store_dwordx2 v120, v[16:17], s[26:27] {opt.get('outf', '')}
        """
    else:
        PACK = f"""
        v_cvt_pk_bf16_f32 v16, v16, v16
        s_mov_b64 exec, s[44:45]
        global_store_short v120, v16, s[26:27] {opt.get('outf', '')}
        """
    a(f"""
    v_add_f32 v16, v16, v28
    {PACK}
    s_cmp_lg_u32 s2, 0
    """)
    a(f"s_cbranch_scc1 {'L_fin0' if stamps else 'L_end'}")
    a("""
    s_mov_b64 exec, 1
    v_mov_b32 v19, 0
    global_store_dword v19, v33, s[30:31]
    """)
    if stamps:
        a("s_branch L_fin0")
        a("L_fin1:")
        a("s_waitcnt vmcnt(0)")
        a("L_fin0:")
        a("s_mov_b64 exec, -1")
        stamp("out stored")
        a("L_fin:")
        a("s_getreg_b32 s66, hwreg(HW_REG_XCC_ID)")
        a("v_mov_b32 v32, s70")
        for i in range(14):
            a(f"v_mov_b32 v{33+i}, s{72+2*i}")
        a("v_mov_b32 v47, s66")
        a("v_mov_b32 v48, s69")
        a("v_mov_b32 v49, s68")
        a("v_mov_b32 v50, s67")
        a("v_mov_b32 v51, s100")
        a(f"""
        s_lshl_b32 s58, s2, 10
        s_lshl_b32 s59, s3, 7
        s_add_u32 s58, s58, s59
        s_add_u32 s58, s58, {STAMP}
        v_mov_b32 v3, s58
        s_mov_b64 exec, 1
        """)
        for j in range(5):
            a(f"global_store_dwordx4 v3, v[{32+4*j}:{35+4*j}], s[30:31] offset:{16*j}")
    a("L_end:")
    if opt.get('probe'):
        a(f"""
        s_cmp_eq_u32 s74, 0
        s_cbranch_scc1 L_padd
        s_cmp_ge_u32 s3, {opt.get('probew', 8)}
        s_cbranch_scc1 L_padd
        s_cmp_lt_u32 s3, {opt.get('probel', 0)}
        s_cbranch_scc1 L_padd
        s_sub_u32 s74, s74, s76
        {'s_sub_u32 s74, 1200, s74' if opt.get('pinv') else ''}
        s_lshl_b32 s74, s74, 3
        s_min_u32 s74, s74, 20000
        s_add_u32 s74, s74, 1200
        L_pad:
        s_memrealtime s[72:73]
        s_waitcnt lgkmcnt(0)
        s_sub_u32 s72, s72, s70
        s_cmp_lt_u32 s72, s74
        s_cbranch_scc1 L_pad
        L_padd:
        """)
    if opt.get('padto'):
        a(f"""
        L_pad:
        s_memrealtime s[72:73]
        s_waitcnt lgkmcnt(0)
        s_sub_u32 s72, s72, s70
        s_cmp_lt_u32 s72, {opt['padto']}
        s_cbranch_scc1 L_pad
        """)
    a("s_endpgm")
    a.raw('.section .rodata,"a"')
    a.raw(".p2align 6")
    a.raw(f".amdhsa_kernel {NAME}_kernel")
    a.raw("  .amdhsa_next_free_vgpr 256")
    a.raw("  .amdhsa_next_free_sgpr 102")
    a.raw("  .amdhsa_accum_offset 256")
    a.raw("  .amdhsa_group_segment_fixed_size 0")
    a.raw("  .amdhsa_kernarg_size 96")
    a.raw("  .amdhsa_user_sgpr_count 2")
    a.raw("  .amdhsa_user_sgpr_kernarg_segment_ptr 1")
    a.raw("  .amdhsa_system_sgpr_workgroup_id_x 1")
    a.raw("  .amdhsa_float_denorm_mode_32 3")
    a.raw(".end_amdhsa_kernel")
    return a.text().replace('@LF@', LF).replace('@L1@', L1F).replace('@TF@', opt.get('tf', 'sc1'))

def parse_opt(s):
    opt = {}
    for kv in s.split(","):
        if kv:
            k, _, v = kv.partition("=")
            opt[k] = (int(v) if v.lstrip('-').isdigit() else v.replace('+', ' ')) if v else 1
    return opt

if __name__ == "__main__":
    ap = argparse.ArgumentParser()
    ap.add_argument("-o", default="k.s")
    ap.add_argument("--stamps", action="store_true")
    ap.add_argument("--opt", default="")
    args = ap.parse_args()
    open(args.o, "w").write(gen(args.stamps, parse_opt(args.opt)))
```

```python
import sys, argparse
from asmgen import Asm
NAME = "parallel_sum__sliding_block_cached__glu_gated_reglu__decode"

EX = 0x40000
QP = 0x0; GP = 0x8000; OP = 0x10000; FP = 0x20000; ST = 0x28000; FL = 0x29000
STAMP = 0x1000000
LW = 131072
def R(j): return LW + 8192 * j + 6144
MLB = R(2); PB = R(3); MODEB = 512
SPIN0 = 40000
LOG2E = 0x3fb8aa3b
SCALE = 0x3db504f3
DPPM = "row_mask:0xf bank_mask:0xf"
EINC = 0x08010101

HEADER = open("cdna_kernels/%s.s.ref" % NAME).read().split("; Override launch")[0]

def gen(stamps=False, opt=None):
    opt = opt or {}
    a0 = Asm()
    class W:
        raw = a0.raw; comment = a0.comment; text = a0.text
        def __call__(self, t): a0(t.replace('@PUB@', '; ' if opt.get('nopub') else ''))
    a = W()
    SPIN = opt.get('spin', SPIN0)
    rotmul = opt.get('rotmul', 37)
    kpre = opt.get('kpre', 4)
    vpre = opt.get('vpre', 8)
    NFAST = opt.get('nfast', 12)
    thr = opt.get('thr', 6)
    LF = opt.get('lf', 'sc1 nt')
    L1F = opt.get('l1f', 'sc1 nt').replace('none', '')
    thr2 = opt.get('thr2', 8); OT = opt.get('otouch', 1); OTF = opt.get('otf', 'sc1 nt'); vthr = opt.get('vthr', 4)
    TOUCH = opt.get('touch', 0)
    nst = [0]
    par = opt.get('par', 0)
    npar = [0]
    def TW(t):
        if not par: return f"s_waitcnt vmcnt({t-1})"
        npar[0] += 1
        return f"""s_waitcnt vmcnt({t-1})
        s_cbranch_vccnz L_par{npar[0]}
        s_waitcnt vmcnt({t-1-par})
        L_par{npar[0]}:"""
    def stamp(name, i=None):
        if opt.get('probe') == name.replace(' ', '_'):
            a("s_memrealtime s[74:75]")
            a("s_waitcnt lgkmcnt(0)")
        if opt.get('probe0') == name.replace(' ', '_'):
            a("s_memrealtime s[76:77]")
            a("s_waitcnt lgkmcnt(0)")
        if not stamps: return
        if i is not None: nst[0] = i
        i = nst[0]; nst[0] += 1
        assert i < 14
        a(f"s_memrealtime s[{72+2*i}:{73+2*i}]")
        a("s_waitcnt lgkmcnt(0)")
    def dpp(op, v, m): a(f"{op}_dpp v{v}, v{v}, v{v} {m} {DPPM}")
    def reduce_g(v, t, op="v_add_f32"):
        a(f"v_mov_b32 v{t}, v{v}")
        a(f"v_permlane16_swap_b32 v{v}, v{t}")
        a(f"{op} v{v}, v{v}, v{t}")
        a(f"v_mov_b32 v{t}, v{v}")
        a(f"v_permlane32_swap_b32 v{v}, v{t}")
        a(f"{op} v{v}, v{v}, v{t}")
    def reduce5(v, t, op="v_add_f32"):
        dpp(op, v, "quad_perm:[2,3,0,1]"); dpp(op, v, "row_ror:4"); dpp(op, v, "row_ror:8")
        reduce_g(v, t, op)
    def reduce4(v, t, op="v_add_f32"):
        dpp(op, v, "row_ror:4"); dpp(op, v, "row_ror:8")
        reduce_g(v, t, op)

    a.raw(HEADER.rstrip())
    a.raw("; @launch grid=(256,1,1) block=(512,1,1) lds=163840")
    a.raw('.amdgcn_target "amdgcn-amd-amdhsa--gfx950"')
    a.raw(".text")
    a.raw(f".globl {NAME}_kernel")
    a.raw(".p2align 12")
    a.raw(".p2align 8")
    a.raw(f".type {NAME}_kernel,@function")
    a.raw(f"{NAME}_kernel:")
    if stamps or opt.get('padto'): a("s_memrealtime s[70:71]")
    if opt.get('probe'): a("s_mov_b32 s74, 0")
    if opt.get('probe'): a("s_mov_b32 s3, 99")
    if opt.get('probe'): a("s_memrealtime s[70:71]")
    if opt.get('probe') and not opt.get('probe0'): a("s_memrealtime s[76:77]")
    a(f"""
    s_cmp_ge_u32 s2, 256
    s_cbranch_scc1 L_end
    s_load_dwordx16 s[8:23], s[0:1], 0
    s_load_dwordx8 s[24:31], s[0:1], 64
    v_lshrrev_b32 v3, 6, v0
    v_and_b32 v0, 63, v0
    v_readfirstlane_b32 s3, v3
    s_getpc_b64 s[56:57]
    s_lshr_b32 s5, s2, 3
    """)
    if not opt.get('nopf'):
        a(f"""
        s_and_b32 s58, s5, 15
        s_lshl_b32 s58, s58, 3
        s_add_u32 s58, s58, s3
        s_lshl_b32 s58, s58, 6
        s_min_u32 s58, s58, L_end-{NAME}_kernel-64
        s_load_dword s39, s[56:57], s58
        """)
    a(f"""
    v_and_b32 v1, 15, v0
    v_lshrrev_b32 v2, 4, v0
    s_and_b32 s4, s2, 7
    s_lshr_b32 s6, s5, 4
    s_and_b32 s7, s5, 15
    {'s_and_b32 s32, s5, 7' if opt.get('map2') else 's_lshr_b32 s32, s5, 2'}
    {'s_lshr_b32 s33, s5, 3' if opt.get('map2') else 's_and_b32 s33, s5, 3'}
    s_lshl_b32 s34, s4, 3
    s_add_u32 s34, s34, s32
    s_lshl_b32 s66, s4, 18
    s_add_u32 s66, s66, {EX}
    v_lshrrev_b32 v6, 3, v0
    v_and_b32 v7, 1, v2
    v_lshlrev_b32 v7, 1, v7
    v_and_b32 v8, 7, v0
    v_xor_b32 v7, v7, v8
    v_lshlrev_b32 v7, 4, v7
    v_lshl_add_u32 v28, v6, 13, v7
    v_xor_b32 v29, 64, v28
    s_and_b32 s46, s32, 1
    s_lshl_b32 s57, s33, 1
    s_add_u32 s46, s46, s57
    s_lshl_b32 s57, s46, 19
    s_and_b32 s58, s3, 3
    s_lshl_b32 s58, s58, 17
    s_add_u32 s57, s57, s58
    s_and_b32 s58, s34, 0xfe
    s_lshr_b32 s60, s3, 2
    s_add_u32 s58, s58, s60
    s_lshl_b32 s58, s58, 7
    s_add_u32 s57, s57, s58
    s_add_u32 s58, s57, 0x10000
    s_lshl_b32 s60, s3, 11
    s_add_u32 s60, s60, {LW}
    s_mov_b32 s50, 0x400000
    s_mov_b32 s51, 0x20000
    s_cmp_ge_u32 s3, 4
    s_cbranch_scc1 L_loader
    """)
    WQ = """
    s_add_u32 s28, s30, s66
    s_addc_u32 s29, s31, 0
    s_mov_b32 s48, s14
    s_mov_b32 s49, s15
    s_mov_b32 m0, s60
    s_add_u32 s60, s60, 1024
    buffer_load_dwordx4 v28, s[48:51], s57 offen nt lds
    s_mov_b32 m0, s60
    s_nop 0
    buffer_load_dwordx4 v29, s[48:51], s58 offen nt lds
    """
    XL = opt.get('xlate', 1)
    XL_ = """
    global_load_dwordx4 v[8:11], v4, s[8:9]
    global_load_dwordx4 v[12:15], v4, s[8:9] offset:16
    global_load_dwordx4 v[16:19], v5, s[8:9]
    """
    FF = """
    ; unit = ((7k+1)>>1) + (rl>>1) ; f = 2*unit + (rl&1) ; valid iff (rl>>1) < 4-(k&1)
    s_mul_i32 s63, s4, 7
    s_add_u32 s63, s63, 1
    s_and_b32 s63, s63, 0xfe
    s_add_u32 s63, s63, s32
    s_lshr_b32 s59, s32, 1
    s_and_b32 s62, s4, 1
    s_add_u32 s59, s59, s62
    s_cmp_lt_u32 s59, 4
    s_cselect_b32 s54, 0x1c0000, 0
    s_lshl_b32 s61, s3, 13
    s_add_u32 s61, s61, %d
    """ % (LW + 8192)
    a(f"""
    v_and_b32 v3, 1, v0
    v_lshlrev_b32 v3, 10, v3
    v_lshrrev_b32 v4, 1, v0
    v_lshl_add_u32 v4, v4, 5, v3
    v_lshrrev_b32 v5, 3, v1
    v_lshl_add_u32 v5, v5, 6, v3
    v_lshl_add_u32 v5, v2, 4, v5
    s_lshl_b32 s61, s46, 7
    v_add_u32 v5, s61, v5
    s_lshl_b32 s59, s7, 7
    s_lshl_b32 s62, s6, 15
    s_add_u32 s62, s62, {OP}
    s_lshl_b32 s64, s6, 11
    s_add_u32 s64, s64, {ST}
    s_cmp_eq_u32 s3, 0
    s_cselect_b32 s62, s62, s64
    s_cselect_b32 s64, 60, 0
    s_add_u32 s62, s62, s59
    v_and_b32 v20, s64, v0
    v_lshlrev_b32 v20, 9, v20
    v_and_b32 v21, 3, v0
    v_lshlrev_b32 v21, 4, v21
    v_add3_u32 v144, s62, v20, v21
    v_mov_b32 v24, -1
    v_mov_b32 v25, -1
    v_mov_b32 v26, -1
    v_mov_b32 v27, -1
    s_waitcnt lgkmcnt(0)
    {'s_memrealtime s[74:75]' if opt.get('probe') == 'karg' else ''}
    {'s_memrealtime s[100:101]' if stamps else ''}
    {'s_cmp_lt_u32 s3, 2' if XL else ''}
    {'s_cbranch_scc0 L_nox' if XL else ''}
    {XL_}
    {'L_nox:' if XL else ''}
    {WQ}
    s_load_dword s35, s[30:31], 0
    s_cmp_lt_u32 s3, 2
    s_cbranch_scc1 L_sx0
    s_barrier
    {FF}
    v_mul_u32_u24 v30, 3584, v6
    v_add_u32 v31, v30, v7
    v_xor_b32 v7, 64, v7
    v_add_u32 v30, v30, v7
    s_mul_i32 s56, s46, {64*3584}
    s_lshr_b32 s59, s63, 1
    s_lshl_b32 s59, s59, 7
    s_add_u32 s56, s56, s59
    s_mov_b32 s42, s54
    s_mov_b32 s43, 0x20000
    s_cmp_eq_u32 s3, 2
    s_cselect_b32 s40, s20, s22
    s_cselect_b32 s41, s21, s23
    s_sub_u32 s60, s61, 8192
    {XL_ if XL == 1 else ''}
    L_tloop:
    s_mov_b32 m0, s60
    s_add_u32 s60, s60, 1024
    buffer_load_dwordx4 v31, s[40:43], s56 offen nt lds
    s_add_u32 s56, s56, {8*3584}
    s_mov_b32 m0, s60
    s_add_u32 s60, s60, 1024
    buffer_load_dwordx4 v30, s[40:43], s56 offen nt lds
    s_add_u32 s56, s56, {8*3584}
    s_cmp_lt_u32 s60, s61
    s_cbranch_scc1 L_tloop
    {XL_ if XL == 2 else ''}
    s_waitcnt vmcnt({11 if XL else 8})
    s_barrier
    s_branch L_service
    L_sx0:
    global_store_dwordx4 v144, v[24:27], s[28:29]
    s_barrier
    {FF}
    s_branch L_service
    """)
    a("L_loader:")
    TLB = """
    s_lshl_b32 s37, s34, 16
    s_load_dword s38, s[12:13], s36
    s_load_dword s38, s[16:17], s37
    s_load_dword s38, s[24:25], 0
    s_load_dword s38, s[26:27], 0
    s_load_dword s38, s[10:11], s36
    s_load_dword s38, s[20:21], 0
    s_load_dword s38, s[22:23], 0
    """ if opt.get('tlb') else ""
    FTCH = f"""
    s_and_b32 s62, s7, 7
    s_lshl_b32 s62, s62, 3
    s_lshl_b32 s63, s56, 1
    s_add_u32 s62, s62, s63
    s_lshl_b64 exec, 3, s62
    global_load_dword v20, v116, s[28:29] {opt.get('ftf', 'sc1 nt')}
    s_mov_b64 exec, -1
    """
    a(f"""
    s_sub_u32 s56, s3, 4
    s_lshl_b32 s36, s56, 2
    v_add_u32 v3, s36, v2
    v_xor_b32 v4, v3, v1
    v_lshlrev_b32 v4, 4, v4
    v_lshl_add_u32 v4, v2, 8, v4
    v_and_b32 v5, 7, v3
    v_lshlrev_b32 v5, 1, v5
    v_xor_b32 v5, v5, v1
    v_lshlrev_b32 v5, 4, v5
    v_lshl_add_u32 v3, v3, 10, v5
    v_lshl_add_u32 v5, v2, 8, v5
    s_lshl_b32 s36, s6, 3
    s_add_u32 s36, s36, s4
    s_lshl_b32 s36, s36, 23
    s_lshl_b32 s59, s7, 16
    s_add_u32 s36, s36, s59
    s_add_u32 s36, s36, 0x700000
    s_mul_i32 s59, s2, {rotmul}
    s_add_u32 s59, s59, s56
    s_and_b32 s59, s59, 63
    s_lshl_b32 s59, s59, 10
    s_mov_b32 s42, 0x10000
    s_mov_b32 s43, 0x20000
    s_mov_b32 s46, 0x10000
    s_mov_b32 s47, 0x20000
    s_waitcnt lgkmcnt(0)
    {WQ}
    s_add_u32 s40, s10, s36
    s_addc_u32 s41, s11, 0
    s_lshl_b32 s60, s56, 10
    {TLB}
    s_barrier
    L_kloop0:
    s_mov_b32 m0, s60
    s_add_u32 s60, s60, 4096
    buffer_load_dwordx4 v4, s[40:43], s59 offen nt lds
    s_add_u32 s59, s59, 4096
    s_and_b32 s59, s59, 0xffff
    s_cmp_lt_u32 s60, {4096*kpre}
    s_cbranch_scc1 L_kloop0
    s_add_u32 s44, s12, s36
    s_addc_u32 s45, s13, 0
    s_mov_b32 s48, s16
    s_mov_b32 s49, s17
    s_lshl_b32 s57, s33, 8
    s_lshl_b32 s61, s34, 16
    s_add_u32 s61, s61, s57
    s_load_dword s35, s[30:31], 0
    s_getreg_b32 s57, hwreg(HW_REG_XCC_ID)
    s_bitcmp1_b32 s57, 0
    s_cselect_b64 vcc, -1, 0
    s_lshl_b32 s57, s6, 14
    s_lshl_b32 s58, s7, 4
    s_add_u32 s57, s57, s58
    s_add_u32 s57, s57, {FP}
    v_lshlrev_b32 v116, 8, v0
    v_add_u32 v116, s57, v116
    v_lshrrev_b32 v120, 1, v2
    v_and_b32 v6, 1, v2
    v_lshl_add_u32 v120, v6, 1, v120
    s_lshl_b32 s57, s4, 5
    s_add_u32 s57, s57, s5
    s_lshl_b32 s57, s57, 3
    v_lshl_add_u32 v120, v120, 1, s57
    s_waitcnt vmcnt({kpre})
    s_barrier
    global_load_ushort v119, v120, s[8:9]
    {FTCH if opt.get('ftch') == 1 else ''}
    {'global_load_ushort v118, v120, s[26:27] ' + opt['otch'].replace('plain', '') if opt.get('otch') else ''}
    L_kloop:
    {TW(thr)}
    s_mov_b32 m0, s60
    s_add_u32 s60, s60, 4096
    buffer_load_dwordx4 v4, s[40:43], s59 offen nt lds
    s_add_u32 s59, s59, 4096
    s_and_b32 s59, s59, 0xffff
    s_cmp_lt_u32 s60, 65536
    s_cbranch_scc1 L_kloop
    L_vloop:
    {TW(thr)}
    s_mov_b32 m0, s60
    s_add_u32 s60, s60, 4096
    buffer_load_dwordx4 v5, s[44:47], s59 offen nt lds
    s_add_u32 s59, s59, 4096
    s_and_b32 s59, s59, 0xffff
    s_cmp_lt_u32 s60, {65536 + 4096*min(vthr, vpre)}
    s_cbranch_scc1 L_vloop
    """)
    if vthr < vpre:
        a(f"""
    L_vloop1:
    {TW(thr2)}
    s_mov_b32 m0, s60
    s_add_u32 s60, s60, 4096
    buffer_load_dwordx4 v5, s[44:47], s59 offen nt lds
    s_add_u32 s59, s59, 4096
    s_and_b32 s59, s59, 0xffff
    s_cmp_lt_u32 s60, {65536 + 4096*vpre}
    s_cbranch_scc1 L_vloop1
    """)
    stamp("L pre issue", 0)
    a(f"s_waitcnt vmcnt({vpre}) lgkmcnt(0)")
    stamp("L K landed")
    a("s_barrier")
    stamp("B1", 5)
    tp = opt.get('tp', 14)
    if opt.get('ftch') == 2: a(FTCH)
    nA = opt.get('nA', (tp - thr2) // 2)
    nB = opt.get('nB', (20 - thr2) // 2)
    def vloop(lbl, end):
        a(f"""
        {lbl}:
        {TW(thr2)}
        s_mov_b32 m0, s60
        s_add_u32 s60, s60, 4096
        buffer_load_dwordx4 v5, s[44:47], s59 offen nt lds
        s_add_u32 s59, s59, 4096
        s_and_b32 s59, s59, 0xffff
        s_cmp_lt_u32 s60, {65536 + 4096*end}
        s_cbranch_scc1 {lbl}
        """)
    vloop("L_vloop2", tp)
    a(f"s_waitcnt vmcnt({tp - 2*nA})")
    stamp("L at Bp", 2)
    a("s_barrier")
    stamp("Bp", 7)
    if tp < 16: vloop("L_vloop3", 16)
    a(f"""
    s_lshl_b32 s60, s56, 13
    s_add_u32 s60, s60, {LW}
    """)
    for t in range(4):
        a(f"""
        s_add_u32 m0, s60, {t*1024}
        {TW(thr2)}
        buffer_load_dwordx4 v3, s[48:51], s61 offen nt lds
        s_add_u32 s61, s61, 16384
        """)
    a(f"s_waitcnt vmcnt({20 - 2*nB})")
    stamp("L at Bq", 3)
    a("s_barrier")
    a("s_waitcnt vmcnt(4)")
    stamp("L V landed", 4)
    a("s_barrier")
    stamp("BB", 8)
    a("s_waitcnt vmcnt(0)")
    stamp("L wo landed", 9)
    a("s_barrier")
    a("s_cmp_eq_u32 s3, 4")
    a("s_cbranch_scc1 L_final")
    a("s_branch L_fin" if stamps else ("s_branch L_end" if opt.get('probe') else "s_endpgm"))

    a("L_service:")
    a(f"""
    s_lshl_b32 s59, s7, 7
    s_mov_b32 s62, 0xffff0000
    s_mov_b32 s64, 0x000f000f
    s_mov_b32 s65, 0x000f000f
    v_and_b32 v4, 3, v1
    v_lshrrev_b32 v5, 2, v1
    v_and_b32 v6, 1, v2
    s_lshl_b32 s57, s3, 2
    v_add_u32 v95, s57, v2
    v_and_b32 v7, 7, v95
    v_lshlrev_b32 v7, 1, v7
    v_xor_b32 v7, v7, v1
    v_lshlrev_b32 v7, 4, v7
    v_lshl_add_u32 v95, v95, 10, v7
    s_lshl_b32 s50, s63, 15
    s_lshl_b32 s57, s33, 8
    s_add_u32 s50, s50, s57
    s_mov_b32 s52, s24
    s_mov_b32 s53, s25
    s_mov_b32 s55, 0x20000
    v_lshrrev_b32 v96, 3, v1
    v_lshl_add_u32 v96, v6, 1, v96
    v_lshlrev_b32 v96, 5, v96
    v_lshl_add_u32 v96, v5, 7, v96
    v_lshl_add_u32 v96, v2, 10, v96
    v_lshl_add_u32 v96, v4, 3, v96
    s_sub_u32 s60, s61, 8192
    v_add_u32 v96, s60, v96
    v_xor_b32 v97, 32, v96
    v_xor_b32 v92, 64, v96
    v_xor_b32 v93, 0x60, v96
    s_cmp_lt_u32 s3, 2
    s_cselect_b32 s57, 14, 8
    v_and_b32 v98, 1, v1
    v_lshlrev_b32 v98, s57, v98
    v_lshrrev_b32 v7, 1, v1
    v_lshl_add_u32 v98, v7, 6, v98
    v_lshl_add_u32 v98, v2, 4, v98
    s_lshr_b32 s56, s32, 1
    s_lshl_b32 s57, s56, 9
    s_lshl_b32 s58, s3, 8
    s_add_u32 s57, s57, s58
    s_lshl_b32 s58, s46, 11
    s_add_u32 s57, s57, s58
    s_add_u32 s57, s57, {QP}
    s_lshl_b32 s63, s56, 13
    s_add_u32 s63, s63, {GP}
    s_lshl_b32 s58, s46, 10
    s_add_u32 s58, s58, s63
    s_lshl_b32 s56, s3, 9
    s_add_u32 s58, s58, s56
    s_sub_u32 s58, s58, 1024
    s_and_b32 s56, s32, 1
    s_lshl_b32 s56, s56, 7
    s_add_u32 s63, s63, s56
    s_cmp_lt_u32 s3, 2
    s_cselect_b32 s57, s57, s58
    v_add_u32 v98, s57, v98
    v_cmp_eq_u32 s[44:45], 1, v7
    v_cmp_eq_u32 s[46:47], 2, v7
    v_cmp_eq_u32 s[48:49], 3, v7
    s_lshl_b32 s57, s6, 14
    s_lshl_b32 s58, s3, 10
    s_add_u32 s57, s57, s58
    s_add_u32 s57, s57, {QP+4096}
    v_lshlrev_b32 v99, 4, v0
    v_add_u32 v99, s57, v99
    v_add_u32 v94, 0x2000, v99
    s_add_u32 s60, s60, 6144
    v_lshlrev_b32 v100, 3, v0
    v_add_u32 v100, s60, v100
    s_lshl_b32 s58, s6, 11
    s_add_u32 s58, s58, s59
    s_add_u32 s58, s58, {ST}
    v_lshlrev_b32 v118, 2, v0
    v_add_u32 v118, s58, v118
    v_mov_b32 v121, 0xff
    s_getreg_b32 s68, hwreg(HW_REG_XCC_ID)
    s_and_b32 s68, s68, 7
    s_cmp_lt_u32 s3, 2
    s_cbranch_scc1 L_ln0
    s_waitcnt vmcnt({0 if XL == 2 else 8})
    s_branch L_ln
    L_ln0:
    s_waitcnt vmcnt(3)
    L_ln:
    """)
    stamp("S x landed", 0)
    for i in range(8):
        a(f"v_lshlrev_b32 v{32+2*i}, 16, v{8+i}")
        a(f"v_and_b32 v{33+2*i}, s62, v{8+i}")
    for i in range(4):
        a(f"v_pk_add_f32 v[{48+2*i}:{49+2*i}], v[{32+4*i}:{33+4*i}], v[{34+4*i}:{35+4*i}]")
    a("v_pk_add_f32 v[48:49], v[48:49], v[50:51]")
    a("v_pk_add_f32 v[52:53], v[52:53], v[54:55]")
    a("v_pk_add_f32 v[48:49], v[48:49], v[52:53]")
    a("v_add_f32 v48, v48, v49")
    reduce5(48, 49)
    a("v_mul_f32 v48, 0xbb000000, v48")
    a("v_mov_b32 v49, v48")
    for i in range(8):
        a(f"v_pk_add_f32 v[{32+2*i}:{33+2*i}], v[{32+2*i}:{33+2*i}], v[48:49]")
    a("v_pk_mul_f32 v[50:51], v[32:33], v[32:33]")
    a("v_pk_mul_f32 v[52:53], v[34:35], v[34:35]")
    for i in range(2, 8):
        d = 50 + 2 * (i & 1)
        a(f"v_pk_fma_f32 v[{d}:{d+1}], v[{32+2*i}:{33+2*i}], v[{32+2*i}:{33+2*i}], v[{d}:{d+1}]")
    a("v_pk_add_f32 v[50:51], v[50:51], v[52:53]")
    a("v_add_f32 v50, v50, v51")
    a("""
    v_cvt_pk_bf16_f32 v48, v48, v48
    v_and_b32 v48, s62, v48
    v_mov_b32 v49, v48
    """)
    dpp("v_add_f32", 50, "quad_perm:[2,3,0,1]")
    fr = []
    for i in range(4):
        fr.append(f"v_lshlrev_b32 v{32+2*i}, 16, v{16+i}")
        fr.append(f"v_and_b32 v{33+2*i}, s62, v{16+i}")
    for i in range(4):
        fr.append(f"v_pk_add_f32 v[{32+2*i}:{33+2*i}], v[{32+2*i}:{33+2*i}], v[48:49]")
    for i in range(4):
        fr.append(f"v_cvt_pk_bf16_f32 v{16+i}, v{32+2*i}, v{33+2*i}")
    for i in range(4):
        fr.append(f"v_lshlrev_b32 v{32+2*i}, 16, v{16+i}")
        fr.append(f"v_and_b32 v{33+2*i}, s62, v{16+i}")
    ch = [f"v_add_f32_dpp v50, v50, v50 row_ror:4 {DPPM}", None, None,
          f"v_add_f32_dpp v50, v50, v50 row_ror:8 {DPPM}", "v_mov_b32 v51, v50", None, None,
          "v_permlane16_swap_b32 v50, v51", "v_add_f32 v50, v50, v51", "v_mov_b32 v51, v50", None, None,
          "v_permlane32_swap_b32 v50, v51", "v_add_f32 v50, v50, v51",
          "v_mul_f32 v50, 0x3b000000, v50", "v_cvt_pk_bf16_f32 v50, v50, v50", "v_and_b32 v50, s62, v50",
          "v_add_f32 v50, 0x3727c5ac, v50", "v_cvt_pk_bf16_f32 v50, v50, v50", "v_and_b32 v50, s62, v50",
          "v_sqrt_f32 v50, v50", None, "v_cvt_pk_bf16_f32 v50, v50, v50", "v_and_b32 v50, s62, v50",
          "v_rcp_f32 v50, v50", None]
    for c in ch:
        a(c if c else fr.pop(0))
    a("v_mov_b32 v51, v50")
    for x in fr: a(x)
    for i in range(4):
        a(f"v_pk_mul_f32 v[{32+2*i}:{33+2*i}], v[{32+2*i}:{33+2*i}], v[50:51]")
    for i in range(4):
        a(f"v_cvt_pk_bf16_f32 v{16+i}, v{32+2*i}, v{33+2*i}")
    for i in range(4):
        a(f"v_mov_b32_dpp v{20+i}, v{16+i} row_ror:8 {DPPM}")
    a(f"""
    s_waitcnt lgkmcnt(0)
    s_add_u32 s35, s35, {EINC}
    s_lshr_b32 s36, s35, 8
    s_lshr_b32 s37, s35, 16
    s_lshr_b32 s38, s35, 24
    s_and_b32 s38, s38, 0xf8
    s_or_b32 s38, s38, s68
    s_and_b32 s39, s35, 0x00ffffff
    s_lshl_b32 s57, s38, 24
    s_or_b32 s39, s39, s57
    """)
    stamp("S LN done")
    a(f"""
    s_cmp_lt_u32 s3, 2
    s_waitcnt vmcnt(0)
    s_cbranch_scc0 L_w3
    s_barrier
    L_w3:
    """)
    stamp("S tile landed")
    TA = [96, 97, 92, 93]
    for aa in range(4):
        for ss in range(2):
            for e in range(2):
                d = 48 + 8 * aa + 4 * ss + 2 * e
                a(f"ds_read_b64_tr_b16 v[{d}:{d+1}], v{TA[aa]} offset:{ss*4096+e*512}")
    def p1mfma(aa):
        for ss in range(2):
            bi = 16 + 4 * ss
            a(f"v_mfma_f32_16x16x32_bf16 v[{32+4*aa}:{35+4*aa}], v[{48+8*aa+4*ss}:{51+8*aa+4*ss}], v[{bi}:{bi+3}], {'0' if ss==0 else f'v[{32+4*aa}:{35+4*aa}]'}")
    for aa in range(4):
        a(f"s_waitcnt lgkmcnt({12-4*aa})")
        p1mfma(aa)
    a("s_mov_b32 s56, 0x00ff00ff")
    a("s_mov_b32 s57, 0x00ff00ff")
    for aa in range(1, 4):
        for i in range(4):
            a(f"v_cndmask_b32 v{32+i}, v{32+i}, v{32+4*aa+i}, s[{42+2*aa}:{43+2*aa}]")
    for i in range(4):
        a(f"v_bfi_b32 v{32+i}, v121, s{35+i}, v{32+i}")
    a(f"""
    s_mov_b64 exec, s[56:57]
    @PUB@global_store_dwordx4 v98, v[32:35], s[28:29]
    s_mov_b64 exec, -1
    """)
    stamp("S published")
    a("""
    s_sub_u32 m0, s61, 4096
    s_add_u32 s51, s50, 16384
    buffer_load_dwordx4 v95, s[52:55], s50 offen nt lds
    s_sub_u32 m0, s61, 3072
    s_nop 0
    buffer_load_dwordx4 v95, s[52:55], s51 offen nt lds
    """)
    a(f"""
    v_xor_b32 v101, v2, v1
    v_lshlrev_b32 v101, 4, v101
    v_lshl_add_u32 v101, v1, 8, v101
    s_lshl_b32 s59, s3, 14
    v_add_u32 v101, s59, v101
    v_xor_b32 v102, 64, v101
    v_xor_b32 v103, 0x80, v101
    v_xor_b32 v104, 0xc0, v101
    v_and_b32 v105, 2, v1
    v_lshlrev_b32 v105, 12, v105
    v_and_b32 v7, 1, v1
    v_lshl_add_u32 v105, v7, 8, v105
    v_lshl_add_u32 v105, v2, 4, v105
    v_add_u32 v105, {R(0)}, v105
    v_lshrrev_b32 v106, 1, v5
    v_lshlrev_b32 v106, 8, v106
    v_lshl_add_u32 v106, v2, 6, v106
    v_lshl_add_u32 v106, v4, 4, v106
    v_and_b32 v8, 1, v5
    v_lshl_add_u32 v106, v8, 3, v106
    s_lshl_b32 s59, s3, 9
    s_add_u32 s59, s59, {PB}
    v_add_u32 v106, s59, v106
    v_lshlrev_b32 v122, 5, v4
    v_add_u32 v122, {MLB}, v122
    s_lshl_b32 s59, s3, 2
    v_add_u32 v107, s59, v122
    s_and_b32 s56, s3, 1
    v_lshlrev_b32 v108, 10, v5
    v_and_b32 v8, 2, v1
    v_lshl_add_u32 v108, v8, 8, v108
    v_lshl_add_u32 v108, v7, 6, v108
    v_lshl_add_u32 v108, v2, 4, v108
    s_lshl_b32 s59, s56, 8
    s_add_u32 s59, s59, s63
    s_add_u32 s59, s59, 2048
    v_add_u32 v108, s59, v108
    s_mov_b32 s57, s56
    s_lshl_b32 s58, s57, 15
    s_lshl_b32 s59, s32, 12
    s_add_u32 s58, s58, s59
    s_add_u32 s58, s58, {OP}
    v_lshlrev_b32 v123, 7, v1
    v_lshl_add_u32 v109, v2, 4, v123
    v_add_u32 v109, s58, v109
    s_lshl_b32 s58, s57, 11
    s_add_u32 s59, s58, {FL}
    v_add_u32 v123, s59, v123
    s_lshr_b32 s59, s32, 1
    s_lshl_b32 s59, s59, 2
    s_add_u32 s58, s58, s59
    s_add_u32 s58, s58, {ST}
    v_lshl_add_u32 v110, v2, 2, v4
    v_lshlrev_b32 v110, 7, v110
    v_add_u32 v110, s58, v110
    v_lshl_add_u32 v8, v6, 2, v5
    s_lshl_b32 s58, s3, 1
    s_and_b32 s58, s58, 4
    v_xor_b32 v8, s58, v8
    v_lshlrev_b32 v8, 5, v8
    v_lshl_add_u32 v111, v5, 8, v8
    v_lshl_add_u32 v111, v4, 3, v111
    v_lshl_add_u32 v111, v2, 13, v111
    v_add_u32 v111, {LW}, v111
    v_xor_b32 v112, 32, v111
    v_xor_b32 v113, 64, v111
    v_xor_b32 v114, 0x60, v111
    v_lshrrev_b32 v115, 1, v2
    v_lshl_add_u32 v115, v6, 1, v115
    v_lshl_add_u32 v115, v115, 4, v1
    v_lshlrev_b32 v115, 2, v115
    s_lshl_b32 s58, s56, 20
    s_lshl_b32 s59, s33, 18
    s_add_u32 s58, s58, s59
    s_lshr_b32 s59, s3, 1
    s_lshl_b32 s59, s59, 14
    s_add_u32 s58, s58, s59
    s_lshl_b32 s59, s34, 8
    s_add_u32 s58, s58, s59
    s_add_u32 s58, s58, {FP+EX}
    v_add_u32 v115, s58, v115
    v_lshlrev_b32 v117, 3, v4
    v_lshrrev_b32 v117, v117, s35
    v_lshlrev_b32 v250, 4, v4
    v_lshl_add_u32 v250, v2, 6, v250
    v_add_u32 v250, {PB}, v250
    v_lshl_add_u32 v248, v2, 2, v5
    v_and_b32 v249, 7, v248
    s_lshl_b32 s58, s3, 1
    v_xor_b32 v249, s58, v249
    v_lshlrev_b32 v249, 5, v249
    v_lshl_add_u32 v248, v248, 8, v249
    v_lshl_add_u32 v248, v4, 3, v248
    v_add_u32 v248, 0x10000, v248
    v_xor_b32 v249, 32, v248
    s_lshl_b32 s58, s6, 15
    s_lshl_b32 s59, s3, 11
    s_add_u32 s58, s58, s59
    s_lshl_b32 s59, s7, 7
    s_add_u32 s58, s58, s59
    s_add_u32 s58, s58, {OP}
    v_lshlrev_b32 v251, 13, v4
    v_lshl_add_u32 v251, v2, 4, v251
    v_add_u32 v251, s58, v251
    s_mov_b32 s58, 0x0c0c0400
    s_mov_b32 s59, 0x04000c0c
    s_mov_b32 s61, 0xf8ffffff
    s_cmp_ge_u32 s3, {0 if opt.get('nogather') else 2}
    s_cbranch_scc1 L_qskip
    {'global_load_dword v144, v144, s[28:29] ' + OTF if OT == 1 else ''}
    {'s_sleep ' + str(opt['qdelay']) if opt.get('qdelay') else ''}
    {'s_waitcnt vmcnt(%d)' % (opt['qwait'] - 1) if opt.get('qwait') else ''}
    s_mov_b32 s57, 0
    """)
    a("L_qpoll:")
    for c in range(8):
        a(f"global_load_dwordx4 v[{32+4*c}:{35+4*c}], v{99 if c < 4 else 94}, s[28:29] offset:{(c&3)*2048-4096} @LF@")
    for c in range(8):
        a(f"s_waitcnt vmcnt({7-c})")
        a(f"v_perm_b32 v{64+2*c}, v{33+4*c}, v{32+4*c}, s58")
        a(f"v_perm_b32 v{65+2*c}, v{35+4*c}, v{34+4*c}, s59")
        a(f"v_or_b32 v{64+2*c}, v{64+2*c}, v{65+2*c}")
        a(f"v_xor_b32 v{64+2*c}, s39, v{64+2*c}")
    a(f"""
    v_or3_b32 v64, v64, v66, v68
    v_or3_b32 v70, v70, v72, v74
    v_or3_b32 v64, v64, v76, v78
    v_or_b32 v80, v64, v70
    v_and_b32 v64, s61, v80
    v_cmp_ne_u32 vcc, 0, v64
    s_add_u32 s57, s57, 1
    s_mov_b64 exec, vcc
    s_cbranch_execz L_qdone
    s_cmp_lt_u32 s57, {NFAST}
    s_cbranch_scc1 L_qpoll
    buffer_wbl2 sc1
    buffer_inv sc1
    s_waitcnt vmcnt(0)
    s_cmp_lt_u32 s57, {SPIN}
    s_cbranch_scc1 L_qpoll
    L_qdone:
    s_mov_b64 exec, -1
    v_cmp_ne_u32 vcc, 0, v80
    s_movk_i32 s56, 0xff00
    """)
    for i in range(32):
        a(f"v_and_b32 v{32+i}, s56, v{32+i}")
    a("s_or_b32 s56, vcc_lo, vcc_hi")
    for step in (4, 8, 16):
        for base in range(32, 64, 2 * step):
            for h in range(2):
                a(f"v_pk_add_f32 v[{base+2*h}:{base+2*h+1}], v[{base+2*h}:{base+2*h+1}], v[{base+step+2*h}:{base+step+2*h+1}]")
    a(f"""
    v_cvt_pk_bf16_f32 v32, v32, v33
    v_cvt_pk_bf16_f32 v33, v34, v35
    v_mov_b32 v34, s56
    v_mov_b32 v35, s60
    ds_write_b64 v100, v[32:33]
    ds_write_b32 v35, v34 offset:{MODEB}
    """)
    if stamps: a("s_mov_b32 s69, s57")
    stamp("S gathered")
    a(f"""
    L_qskip:
    v_mov_b32 v10, {R(0)+MODEB}
    s_waitcnt vmcnt(0) lgkmcnt(0)
    s_barrier
    """)
    stamp("B1", 5)
    a("""
    ds_read_b32 v8, v10
    ds_read_b32 v9, v10 offset:8192
    """)
    for j in range(4):
        a(f"ds_read_b128 v[{16+4*j}:{19+4*j}], v105 offset:{64*j}")
    def kread(blk):
        for j in range(4):
            d = 32 + 16 * blk + 4 * j
            a(f"ds_read_b128 v[{d}:{d+3}], v{101+j} offset:{4096*blk}")
    kread(0); kread(1)
    a("global_load_dwordx4 v[124:127], v108, s[28:29] offset:-2048 @L1@")
    a("global_load_dwordx4 v[12:15], v108, s[28:29] offset:2048 @L1@")
    for blk in range(4):
        a(f"s_waitcnt lgkmcnt({4 if blk < 3 else 0})")
        for j in range(4):
            d = 32 + 16 * blk + 4 * j
            ac = 128 + 4 * blk
            a(f"v_mfma_f32_16x16x32_bf16 v[{ac}:{ac+3}], v[{d}:{d+3}], v[{16+4*j}:{19+4*j}], {'0' if j==0 else f'v[{ac}:{ac+3}]'}")
        if blk + 2 < 4: kread(blk + 2)
        if blk == 0:
            a("v_or_b32 v8, v8, v9")
            a("v_cmp_eq_u32 s[44:45], 1, v5")
            a("v_cmp_eq_u32 s[46:47], 2, v5")
            a("v_cmp_eq_u32 s[48:49], 3, v5")
            a("v_readfirstlane_b32 s60, v8")
            if opt.get('nogather'): a("s_mov_b32 s60, 0")
    a(f"s_mov_b32 s56, {SCALE}")
    a(f"s_mov_b32 s57, {LOG2E}")
    for blk in range(1, 4):
        for i in range(4):
            a(f"v_cndmask_b32 v{128+i}, v{128+i}, v{128+4*blk+i}, s[{42+2*blk}:{43+2*blk}]")
    a("""
    v_cvt_pk_bf16_f32 v40, v128, v129
    v_cvt_pk_bf16_f32 v41, v130, v131
    v_lshlrev_b32 v32, 16, v40
    v_and_b32 v33, s62, v40
    v_lshlrev_b32 v34, 16, v41
    v_and_b32 v35, s62, v41
    """)
    for i in range(4): a(f"v_mul_f32 v{32+i}, s56, v{32+i}")
    a("""
    v_cvt_pk_bf16_f32 v40, v32, v33
    v_cvt_pk_bf16_f32 v41, v34, v35
    v_lshlrev_b32 v32, 16, v40
    v_and_b32 v33, s62, v40
    v_lshlrev_b32 v34, 16, v41
    v_and_b32 v35, s62, v41
    v_max3_f32 v40, v32, v33, v34
    v_max_f32 v40, v40, v35
    """)
    reduce4(40, 41, "v_max_f32")
    for i in range(4): a(f"v_sub_f32 v{32+i}, v{32+i}, v40")
    for i in range(4): a(f"v_mul_f32 v{32+i}, s57, v{32+i}")
    for i in range(4): a(f"v_exp_f32 v{32+i}, v{32+i}")
    a("""
    v_mul_f32 v40, s57, v40
    v_cvt_pk_bf16_f32 v44, v32, v33
    v_cvt_pk_bf16_f32 v45, v34, v35
    ds_write_b64 v106, v[44:45]
    ds_write_b32 v107, v40
    v_add_f32 v32, v32, v33
    v_add_f32 v34, v34, v35
    v_add_f32 v32, v32, v34
    """)
    reduce4(32, 33)
    a("""
    ds_write_b32 v107, v32 offset:16
    s_cmp_eq_u32 s60, 0
    s_cbranch_scc1 L_nowb
    buffer_wbl2 sc1
    L_nowb:
    """)
    stamp("S softmax done", 6)
    a("""
    s_waitcnt lgkmcnt(0)
    s_barrier
    """)
    stamp("Bp", 7)
    PF = 148; VF = 180; AC = 212; AL = 244
    def rd(u):
        for q in range(2):
            for e in range(2):
                d = VF + 8 * (u % 4) + 4 * q + 2 * e
                a(f"ds_read_b64_tr_b16 v[{d}:{d+1}], v{248+q} offset:{8192*u+4096*e}")
    def pvm(u):
        for q in range(2):
            d = VF + 8 * (u % 4) + 4 * q
            ac = AC + 8 * (u >> 1) + 4 * q
            a(f"v_mfma_f32_16x16x32_bf16 v[{ac}:{ac+3}], v[{d}:{d+3}], v[{PF+4*u}:{PF+3+4*u}], {'0' if u % 2 == 0 else f'v[{ac}:{ac+3}]'}")
    a("""
    ds_read_b128 v[40:43], v122
    ds_read_b128 v[44:47], v122 offset:16
    """)
    for u in range(8):
        a(f"ds_read_b128 v[{PF+4*u}:{PF+3+4*u}], v250 offset:{256*u}")
    a("""
    s_waitcnt lgkmcnt(8)
    v_max3_f32 v48, v40, v41, v42
    v_max_f32 v48, v48, v43
    """)
    for i in range(4): a(f"v_sub_f32 v{40+i}, v{40+i}, v48")
    for i in range(4): a(f"v_exp_f32 v{40+i}, v{40+i}")
    a("""
    v_mul_f32 v49, v40, v44
    v_fmac_f32 v49, v41, v45
    v_fmac_f32 v49, v42, v46
    v_fmac_f32 v49, v43, v47
    v_log_f32 v50, v49
    v_rcp_f32 v49, v49
    s_cmp_lg_u32 s3, 3
    s_cbranch_scc1 L_nostat
    v_add_f32 v52, v50, v48
    s_mov_b32 exec_hi, 0
    global_store_dword v118, v52, s[28:29]
    s_mov_b64 exec, -1
    L_nostat:
    s_waitcnt lgkmcnt(0)
    """)
    assert nA <= 4 and nB - nA <= 4 and 8 - nB <= 4
    for u in range(nA): rd(u)
    for i in range(4): a(f"v_mul_f32 v{AL+i}, v{40+i}, v49")
    for u in range(nA):
        a(f"s_waitcnt lgkmcnt({min(15, 4*(nA-1-u))})")
        pvm(u)
    for q in range(4):
        for e in range(2):
            d = 80 + 4 * q + 2 * e
            a(f"ds_read_b64_tr_b16 v[{d}:{d+1}], v{111+q} offset:{(4+e)*1024}")
    a("""
    s_cbranch_scc1 L_nostat1
    s_waitcnt vmcnt(1)
    s_branch L_nostat2
    L_nostat1:
    s_waitcnt vmcnt(0)
    L_nostat2:
    """)
    a(f"""
    s_mov_b32 s57, 0
    L_gcheck:
    v_perm_b32 v48, v125, v124, s58
    v_perm_b32 v49, v127, v126, s59
    v_perm_b32 v50, v13, v12, s58
    v_perm_b32 v51, v15, v14, s59
    v_or_b32 v48, v48, v49
    v_or_b32 v50, v50, v51
    v_xor_b32 v48, s39, v48
    v_xor_b32 v50, s39, v50
    v_or_b32 v48, v48, v50
    v_and_b32 v48, s61, v48
    v_cmp_ne_u32 vcc, 0, v48
    s_movk_i32 s56, 0xff00
    s_cbranch_vccnz L_gpoll
    L_gdone:
    """)
    for i in range(4): a(f"v_and_b32 v{124+i}, s56, v{124+i}")
    for i in range(4): a(f"v_and_b32 v{12+i}, s56, v{12+i}")
    a("v_pk_add_f32 v[124:125], v[124:125], v[12:13]")
    a("v_pk_add_f32 v[126:127], v[126:127], v[14:15]")
    for m in ("row_ror:4", "row_ror:8"):
        for i in range(4): dpp("v_add_f32", 124 + i, m)
    a("""
    v_cvt_pk_bf16_f32 v48, v124, v125
    v_cvt_pk_bf16_f32 v49, v126, v127
    v_lshlrev_b32 v124, 16, v48
    v_and_b32 v125, s62, v48
    v_lshlrev_b32 v126, 16, v49
    v_and_b32 v127, s62, v49
    """)
    for i in range(4): a(f"v_max_f32 v{48+i}, 0, v{124+i}")
    for i in range(4): a(f"v_mul_f32_dpp v{48+i}, v{124+i}, v{48+i} quad_perm:[2,3,0,1] {DPPM}")
    a("""
    v_cmp_eq_u32 s[44:45], 0, v1
    v_cmp_eq_u32 s[46:47], 1, v1
    v_cvt_pk_bf16_f32 v48, v48, v49
    v_cvt_pk_bf16_f32 v49, v50, v51
    v_cndmask_b32 v28, 0, v48, s[44:45]
    v_cndmask_b32 v29, 0, v49, s[44:45]
    v_cndmask_b32 v30, 0, v48, s[46:47]
    v_cndmask_b32 v31, 0, v49, s[46:47]
    s_waitcnt lgkmcnt(0)
    """)
    for q in range(4):
        a(f"v_mfma_f32_16x16x32_bf16 v[{32+4*q}:{35+4*q}], v[28:31], v[{80+4*q}:{83+4*q}], 0")
    SG = "global_load_dword v24, v110, s[28:29] @TF@"
    OG = """
    global_load_dwordx4 v[16:19], v109, s[28:29] @TF@
    global_load_dwordx4 v[20:23], v109, s[28:29] offset:2048 @TF@
    """
    for q in range(4):
        a(f"v_add_f32 v{32+4*q}, v{32+4*q}, v{33+4*q}")
    a("""
    v_mov_b32 v33, s35
    s_mov_b32 s44, 0x11111111
    s_mov_b32 s45, 0x11111111
    v_permlane32_swap_b32 v32, v36
    v_permlane32_swap_b32 v40, v44
    v_add_f32 v32, v32, v36
    v_add_f32 v40, v40, v44
    v_permlane16_swap_b32 v32, v40
    v_add_f32 v36, v32, v40
    s_barrier
    """)
    for u in range(nA, nB): rd(u)
    for u in range(nA, nB):
        a(f"s_waitcnt lgkmcnt({4*(nB-1-u)})")
        pvm(u)
    nW = nB // 2
    for i in range(8): a(f"v_mul_f32 v{AC+i}, v{AC+i}, v{AL}")
    for w_ in range(1, nW):
        for i in range(8): a(f"v_fmac_f32 v{AC+i}, v{AC+8*w_+i}, v{AL+w_}")
    a("s_cmp_eq_u32 s60, 0")
    a("s_barrier")
    stamp("BB", 8)
    for u in range(nB, 8): rd(u)
    a(SG)
    for u in range(nB, 8):
        a(f"s_waitcnt lgkmcnt({4*(7-u)})")
        pvm(u)
    a("s_mov_b64 exec, s[64:65]")
    for h in range(2):
        for w_ in range(nW, 4):
            for i in range(4 * h, 4 * h + 4): a(f"v_fmac_f32 v{AC+i}, v{AC+8*w_+i}, v{AL+w_}")
        for i in range(2 * h, 2 * h + 2):
            a(f"v_cvt_pk_bf16_f32 v{40+i}, v{AC+2*i}, v{AC+1+2*i}")
    a(f"""
    global_store_dwordx4 v251, v[40:43], s[28:29]
    s_mov_b64 exec, -1
    s_mov_b32 s57, 0
    s_cbranch_scc0 L_slow
    {'s_sleep ' + str(opt['ogsl']) if opt.get('ogsl') else ''}
    {OG if opt.get('ogpre') else ''}
    s_barrier
    L_fast2:
    """)
    stamp("BC", 10)
    if opt.get('cut'): a("s_endpgm")
    if not opt.get('ogpre'): a(OG)
    for ks in range(2):
        for q in range(4):
            for e in range(2):
                d = 48 + 16 * ks + 4 * q + 2 * e
                a(f"ds_read_b64_tr_b16 v[{d}:{d+1}], v{111+q} offset:{(2*ks+e)*1024}")
    a(f"""
    s_waitcnt vmcnt(3)
    L_schk:
    v_cmp_eq_u32 vcc, -1, v24
    v_max_f32_dpp v124, v24, v24 quad_perm:[1,0,3,2] {DPPM}
    s_cbranch_vccnz L_spoll
    L_sdone:
    """)
    dpp("v_max_f32", 124, "quad_perm:[2,3,0,1]")
    reduce_g(124, 125, "v_max_f32")
    a(f"""
    v_sub_f32 v8, v24, v124
    v_exp_f32 v8, v8
    v_add_f32_dpp v9, v8, v8 quad_perm:[1,0,3,2] {DPPM}
    """)
    dpp("v_add_f32", 9, "quad_perm:[2,3,0,1]")
    reduce_g(9, 125)
    a(f"""
    v_rcp_f32 v9, v9
    s_mov_b32 s57, 0
    v_mul_f32 v8, v8, v9
    v_mov_b32_dpp v10, v8 quad_perm:[0,0,0,0] {DPPM}
    v_mov_b32_dpp v11, v8 quad_perm:[1,1,1,1] {DPPM}
    v_mov_b32_dpp v12, v8 quad_perm:[2,2,2,2] {DPPM}
    v_mov_b32_dpp v13, v8 quad_perm:[3,3,3,3] {DPPM}
    s_branch L_ochk
    L_opoll:
    {OG}
    L_ochk:
    s_waitcnt vmcnt(0)
    v_max3_u32 v124, v16, v17, v18
    v_max3_u32 v125, v19, v20, v21
    v_max3_u32 v124, v124, v22, v23
    v_max_u32 v124, v124, v125
    v_cmp_eq_u32 vcc, -1, v124
    s_add_u32 s57, s57, 1
    s_mov_b64 exec, vcc
    s_cbranch_execz L_odone
    {'s_sleep ' + str(opt['oback']) if opt.get('oback') else ''}
    s_cmp_lt_u32 s57, {SPIN}
    s_cbranch_scc1 L_opoll
    L_odone:
    s_mov_b64 exec, -1
    s_waitcnt lgkmcnt(0)
    """)
    if stamps: a("s_mov_b32 s68, s57")
    stamp("o gathered", 11)
    def s2m(q):
        for ks in range(2):
            a(f"v_mfma_f32_16x16x32_bf16 v[{128+4*q}:{131+4*q}], v[{16+4*ks}:{19+4*ks}], v[{48+16*ks+4*q}:{51+16*ks+4*q}], {'0' if ks==0 else f'v[{128+4*q}:{131+4*q}]'}")
    def s2f(q):
        a(f"v_mul_f32 v{128+4*q}, v10, v{128+4*q}")
        for i in range(1, 4):
            a(f"v_fmac_f32 v{128+4*q}, v{10+i}, v{128+4*q+i}")
    for q in range(4): s2m(q)
    if opt.get('bd', 4) in (1, 5): a("s_barrier")
    s2f(0); s2f(1); s2f(2)
    a("v_permlane32_swap_b32 v128, v132")
    a("v_add_f32 v128, v128, v132")
    s2f(3)
    a("""
    v_permlane32_swap_b32 v136, v140
    v_add_f32 v136, v136, v140
    v_permlane16_swap_b32 v128, v136
    v_add_f32 v36, v36, v128
    v_add_f32 v36, v36, v136
    v_bfi_b32 v36, v121, v117, v36
    """)
    for i in range(1, 4):
        a(f"v_mov_b32_dpp v{36+i}, v36 quad_perm:[{i},{i},{i},{i}] {DPPM}")
    a(f"""
    s_mov_b64 exec, s[44:45]
    global_store_dwordx4 v115, v[36:39], s[30:31] {opt.get('ffs', 'sc1')}
    {'s_mov_b64 exec, -1' if stamps or opt.get('probe') else ''}
    """)
    stamp("final published")
    if opt.get('ewb'):
        a(f"""
        s_lshl_b32 s56, s5, 2
        s_add_u32 s56, s56, s3
        s_and_b32 s56, s56, {opt['ewb']}
        s_cmp_lg_u32 s56, 1
        s_cbranch_scc1 L_newb
        buffer_wbl2 sc1
        L_newb:
        """)
    if opt.get('bd', 4) == 3: a("s_barrier")
    if opt.get('bd', 4) in (4, 5):
        a("s_waitcnt vmcnt(0)")
        a("s_barrier")
    a("s_branch L_fin1" if stamps else ("s_branch L_end" if opt.get('probe') or opt.get('padto') else "s_endpgm"))
    a(f"""
    L_gpoll:
    s_add_u32 s57, s57, 1
    s_cmp_ge_u32 s57, {SPIN}
    s_cbranch_scc1 L_gdone
    s_cmp_eq_u32 s60, 0
    s_cbranch_scc1 L_gload
    buffer_inv sc1
    s_waitcnt vmcnt(0)
    L_gload:
    global_load_dwordx4 v[124:127], v108, s[28:29] offset:-2048 @LF@
    global_load_dwordx4 v[12:15], v108, s[28:29] offset:2048 @LF@
    s_waitcnt vmcnt(0)
    s_branch L_gcheck
    L_spoll:
    s_add_u32 s57, s57, 1
    s_cmp_ge_u32 s57, {SPIN}
    s_cbranch_scc1 L_sdone
    s_waitcnt vmcnt(0)
    {SG}
    {OG}
    s_waitcnt vmcnt(2)
    s_branch L_schk
    L_slow:
    s_waitcnt vmcnt(0)
    s_barrier
    s_cmp_lg_u32 s3, 0
    s_cbranch_scc1 L_slow2
    buffer_wbl2 sc1
    s_waitcnt vmcnt(0)
    v_add_u32 v34, {FL-ST}, v118
    s_mov_b64 exec, 1
    global_store_dword v34, v33, s[28:29] sc1
    s_mov_b64 exec, -1
    L_slow2:
    global_load_dword v34, v123, s[28:29] sc1
    s_waitcnt vmcnt(0)
    v_cmp_ne_u32 vcc, s35, v34
    s_add_u32 s57, s57, 1
    s_cbranch_vccz L_slow3
    s_cmp_lt_u32 s57, {SPIN}
    s_cbranch_scc1 L_slow2
    L_slow3:
    buffer_inv sc1
    s_waitcnt vmcnt(0)
    {SG}
    {OG if opt.get('ogpre') else ''}
    s_waitcnt vmcnt(0)
    s_mov_b32 s57, 0
    s_branch L_fast2
    """)
    a(f"""
    L_final:
    {'s_endpgm' if opt.get('cut') else ''}
    s_add_u32 s35, s35, {EINC}
    s_mov_b32 s58, 0x0c0c0400
    s_mov_b32 s59, 0x04000c0c
    s_mov_b32 s57, 0
    v_lshlrev_b32 v28, 16, v119
    v_mov_b32 v33, s35
    s_movk_i32 s56, 0xff00
    v_not_b32 v16, v33
    s_barrier
    {'s_barrier' if opt.get('bd', 4) == 5 else ''}
    {'s_memrealtime s[74:75]' if stamps else ''}
    {'s_memrealtime s[76:77]' if stamps else ''}
    {'s_sleep ' + str(opt['fwait']) if opt.get('fwait') else ''}
    {'global_load_dwordx4 v[16:19], v116, s[28:29] sc1' if opt.get('fdepth') else ''}
    {'s_waitcnt vmcnt(0)' if opt.get('fdepth') else ''}
    {'s_branch L_fchk' if opt.get('fdepth') else ''}
    L_fpoll:
    global_load_dwordx4 v[16:19], v116, s[28:29] {opt.get('ffl', 'sc1')}
    s_waitcnt vmcnt({opt.get('fdepth', 0)})
    {'s_sleep ' + str(opt['fsleep']) if opt.get('fsleep') else ''}
    L_fchk:
    v_perm_b32 v24, v17, v16, s58
    v_perm_b32 v25, v19, v18, s59
    v_or_b32 v24, v24, v25
    v_cmp_ne_u32 vcc, s35, v24
    s_add_u32 s57, s57, 1
    s_mov_b64 exec, vcc
    s_cbranch_execz L_fdone
    {'s_sleep ' + str(opt['fback']) if opt.get('fback') else ''}
    s_cmp_lt_u32 s57, {SPIN*8}
    s_cbranch_scc1 L_fpoll
    L_fdone:
    s_mov_b64 exec, -1
    """)
    if opt.get('fdepth'):
        a("""
        s_waitcnt vmcnt(0)
        v_perm_b32 v24, v17, v16, s58
        v_perm_b32 v25, v19, v18, s59
        v_or_b32 v24, v24, v25
        v_cmp_ne_u32 vcc, s35, v24
        """)
        a(f"s_cmp_lt_u32 s57, {SPIN*8}")
        a("s_cselect_b64 vcc, vcc, 0")
        a("s_cbranch_vccnz L_fchk")
    if stamps: a("s_mov_b32 s67, s57")
    if not stamps: stamp("fdone")
    for i in range(4): a(f"v_and_b32 v{16+i}, s56, v{16+i}")
    a("""
    v_permlane32_swap_b32 v16, v17
    v_permlane32_swap_b32 v18, v19
    v_add_f32 v16, v16, v17
    v_add_f32 v18, v18, v19
    s_mov_b32 s44, 0x00010001
    s_mov_b32 s45, 0x00010001
    v_permlane16_swap_b32 v16, v18
    v_add_f32 v16, v16, v18
    """)
    for m in ("quad_perm:[1,0,3,2]", "quad_perm:[2,3,0,1]", "row_ror:4", "row_ror:8"):
        dpp("v_add_f32", 16, m)
    if opt.get('pack'):
        PACK = f"""
        v_mov_b32 v17, v16
        v_permlane32_swap_b32 v16, v17
        v_cvt_pk_bf16_f32 v16, v16, v17
        v_mov_b32 v17, v16
        v_permlane16_swap_b32 v16, v17
        s_mov_b64 exec, 1
        global_store_dwordx2 v120, v[16:17], s[26:27] {opt.get('outf', '')}
        """
    else:
        PACK = f"""
        v_cvt_pk_bf16_f32 v16, v16, v16
        s_mov_b64 exec, s[44:45]
        global_store_short v120, v16, s[26:27] {opt.get('outf', '')}
        """
    a(f"""
    v_add_f32 v16, v16, v28
    {PACK}
    s_cmp_lg_u32 s2, 0
    """)
    a(f"s_cbranch_scc1 {'L_fin0' if stamps else 'L_end'}")
    a("""
    s_mov_b64 exec, 1
    v_mov_b32 v19, 0
    global_store_dword v19, v33, s[30:31]
    """)
    if stamps:
        a("s_branch L_fin0")
        a("L_fin1:")
        a("s_waitcnt vmcnt(0)")
        a("L_fin0:")
        a("s_mov_b64 exec, -1")
        stamp("out stored")
        a("L_fin:")
        a("s_getreg_b32 s66, hwreg(HW_REG_XCC_ID)")
        a("v_mov_b32 v32, s70")
        for i in range(14):
            a(f"v_mov_b32 v{33+i}, s{72+2*i}")
        a("v_mov_b32 v47, s66")
        a("v_mov_b32 v48, s69")
        a("v_mov_b32 v49, s68")
        a("v_mov_b32 v50, s67")
        a("v_mov_b32 v51, s100")
        a(f"""
        s_lshl_b32 s58, s2, 10
        s_lshl_b32 s59, s3, 7
        s_add_u32 s58, s58, s59
        s_add_u32 s58, s58, {STAMP}
        v_mov_b32 v3, s58
        s_mov_b64 exec, 1
        """)
        for j in range(5):
            a(f"global_store_dwordx4 v3, v[{32+4*j}:{35+4*j}], s[30:31] offset:{16*j}")
    a("L_end:")
    if opt.get('tailpad'):
        a(f"""
        s_memrealtime s[74:75]
        L_tp:
        s_memrealtime s[72:73]
        s_waitcnt lgkmcnt(0)
        s_sub_u32 s72, s72, s74
        s_cmp_lt_u32 s72, {opt['tailpad']}
        s_cbranch_scc1 L_tp
        """)
    if opt.get('probe'):
        a(f"""
        s_cmp_eq_u32 s74, 0
        s_cbranch_scc1 L_padd
        s_cmp_ge_u32 s3, {opt.get('probew', 8)}
        s_cbranch_scc1 L_padd
        s_cmp_lt_u32 s3, {opt.get('probel', 0)}
        s_cbranch_scc1 L_padd
        s_sub_u32 s74, s74, s76
        {'s_sub_u32 s74, 1200, s74' if opt.get('pinv') else ''}
        s_lshl_b32 s74, s74, 3
        s_min_u32 s74, s74, 20000
        s_add_u32 s74, s74, 1200
        L_pad:
        s_memrealtime s[72:73]
        s_waitcnt lgkmcnt(0)
        s_sub_u32 s72, s72, s70
        s_cmp_lt_u32 s72, s74
        s_cbranch_scc1 L_pad
        L_padd:
        """)
    if opt.get('padto'):
        a(f"""
        L_pad:
        s_memrealtime s[72:73]
        s_waitcnt lgkmcnt(0)
        s_sub_u32 s72, s72, s70
        s_cmp_lt_u32 s72, {opt['padto']}
        s_cbranch_scc1 L_pad
        """)
    a("s_endpgm")
    a.raw('.section .rodata,"a"')
    a.raw(".p2align 6")
    a.raw(f".amdhsa_kernel {NAME}_kernel")
    a.raw("  .amdhsa_next_free_vgpr 256")
    a.raw("  .amdhsa_next_free_sgpr 102")
    a.raw("  .amdhsa_accum_offset 256")
    a.raw("  .amdhsa_group_segment_fixed_size 0")
    a.raw("  .amdhsa_kernarg_size 96")
    a.raw("  .amdhsa_user_sgpr_count 2")
    a.raw("  .amdhsa_user_sgpr_kernarg_segment_ptr 1")
    a.raw("  .amdhsa_system_sgpr_workgroup_id_x 1")
    a.raw("  .amdhsa_float_denorm_mode_32 3")
    a.raw(".end_amdhsa_kernel")
    return a.text().replace('@LF@', LF).replace('@L1@', L1F).replace('@TF@', opt.get('tf', 'sc1'))

def parse_opt(s):
    opt = {}
    for kv in s.split(","):
        if kv:
            k, _, v = kv.partition("=")
            opt[k] = (int(v) if v.lstrip('-').isdigit() else v.replace('+', ' ')) if v else 1
    return opt

if __name__ == "__main__":
    ap = argparse.ArgumentParser()
    ap.add_argument("-o", default="k.s")
    ap.add_argument("--stamps", action="store_true")
    ap.add_argument("--opt", default="")
    args = ap.parse_args()
    open(args.o, "w").write(gen(args.stamps, parse_opt(args.opt)))
```

```python
import sys, argparse
from asmgen import Asm
NAME = "parallel_sum__sliding_block_cached__glu_gated_reglu__decode"

EX = 0x40000
QP = 0x0; GP = 0x8000; OP = 0x10000; FP = 0x20000; ST = 0x28000; FL = 0x29000
STAMP = 0x1000000
LW = 131072
def R(j): return LW + 8192 * j + 6144
MLB = R(2); PB = R(3); MODEB = 512
SPIN0 = 40000
LOG2E = 0x3fb8aa3b
SCALE = 0x3db504f3
DPPM = "row_mask:0xf bank_mask:0xf"
EINC = 0x08010101

HEADER = open("cdna_kernels/%s.s.ref" % NAME).read().split("; Override launch")[0]

def gen(stamps=False, opt=None):
    opt = opt or {}
    a0 = Asm()
    class W:
        raw = a0.raw; comment = a0.comment; text = a0.text
        def __call__(self, t): a0(t.replace('@PUB@', '; ' if opt.get('nopub') else ''))
    a = W()
    SPIN = opt.get('spin', SPIN0)
    rotmul = opt.get('rotmul', 37)
    kpre = opt.get('kpre', 4)
    vpre = opt.get('vpre', 8)
    NFAST = opt.get('nfast', 12)
    thr = opt.get('thr', 6)
    LF = opt.get('lf', 'sc1 nt')
    L1F = opt.get('l1f', 'sc1 nt').replace('none', '')
    thr2 = opt.get('thr2', 8); OT = opt.get('otouch', 1); OTF = opt.get('otf', 'sc1 nt'); vthr = opt.get('vthr', 4)
    TOUCH = opt.get('touch', 0)
    nst = [0]
    par = opt.get('par', 0)
    npar = [0]
    def TW(t):
        if not par: return f"s_waitcnt vmcnt({t-1})"
        npar[0] += 1
        return f"""s_waitcnt vmcnt({t-1})
        s_cbranch_vccnz L_par{npar[0]}
        s_waitcnt vmcnt({t-1-par})
        L_par{npar[0]}:"""
    def stamp(name, i=None):
        if opt.get('probe') == name.replace(' ', '_'):
            a("s_memrealtime s[74:75]")
            a("s_waitcnt lgkmcnt(0)")
        if opt.get('probe0') == name.replace(' ', '_'):
            a("s_memrealtime s[76:77]")
            a("s_waitcnt lgkmcnt(0)")
        if not stamps: return
        if i is not None: nst[0] = i
        i = nst[0]; nst[0] += 1
        assert i < 14
        a(f"s_memrealtime s[{72+2*i}:{73+2*i}]")
        a("s_waitcnt lgkmcnt(0)")
    def dpp(op, v, m): a(f"{op}_dpp v{v}, v{v}, v{v} {m} {DPPM}")
    def reduce_g(v, t, op="v_add_f32"):
        a(f"v_mov_b32 v{t}, v{v}")
        a(f"v_permlane16_swap_b32 v{v}, v{t}")
        a(f"{op} v{v}, v{v}, v{t}")
        a(f"v_mov_b32 v{t}, v{v}")
        a(f"v_permlane32_swap_b32 v{v}, v{t}")
        a(f"{op} v{v}, v{v}, v{t}")
    def reduce5(v, t, op="v_add_f32"):
        dpp(op, v, "quad_perm:[2,3,0,1]"); dpp(op, v, "row_ror:4"); dpp(op, v, "row_ror:8")
        reduce_g(v, t, op)
    def reduce4(v, t, op="v_add_f32"):
        dpp(op, v, "row_ror:4"); dpp(op, v, "row_ror:8")
        reduce_g(v, t, op)

    a.raw(HEADER.rstrip())
    a.raw("; @launch grid=(256,1,1) block=(512,1,1) lds=163840")
    a.raw('.amdgcn_target "amdgcn-amd-amdhsa--gfx950"')
    a.raw(".text")
    a.raw(f".globl {NAME}_kernel")
    a.raw(".p2align 12")
    a.raw(".p2align 8")
    a.raw(f".type {NAME}_kernel,@function")
    a.raw(f"{NAME}_kernel:")
    if stamps or opt.get('padto'): a("s_memrealtime s[70:71]")
    if opt.get('probe'): a("s_mov_b32 s74, 0")
    if opt.get('probe'): a("s_mov_b32 s3, 99")
    if opt.get('probe'): a("s_memrealtime s[70:71]")
    if opt.get('probe') and not opt.get('probe0'): a("s_memrealtime s[76:77]")
    a(f"""
    s_cmp_ge_u32 s2, 256
    s_cbranch_scc1 L_end
    s_load_dwordx16 s[8:23], s[0:1], 0
    s_load_dwordx8 s[24:31], s[0:1], 64
    v_lshrrev_b32 v3, 6, v0
    v_and_b32 v0, 63, v0
    v_readfirstlane_b32 s3, v3
    s_getpc_b64 s[56:57]
    s_lshr_b32 s5, s2, 3
    """)
    if not opt.get('nopf'):
        a(f"""
        s_and_b32 s58, s5, 15
        s_lshl_b32 s58, s58, 3
        s_add_u32 s58, s58, s3
        s_lshl_b32 s58, s58, 6
        s_min_u32 s58, s58, L_end-{NAME}_kernel-64
        s_load_dword s39, s[56:57], s58
        """)
    a(f"""
    v_and_b32 v1, 15, v0
    v_lshrrev_b32 v2, 4, v0
    s_and_b32 s4, s2, 7
    s_lshr_b32 s6, s5, 4
    s_and_b32 s7, s5, 15
    {'s_and_b32 s32, s5, 7' if opt.get('map2') else 's_lshr_b32 s32, s5, 2'}
    {'s_lshr_b32 s33, s5, 3' if opt.get('map2') else 's_and_b32 s33, s5, 3'}
    s_lshl_b32 s34, s4, 3
    s_add_u32 s34, s34, s32
    s_lshl_b32 s66, s4, 18
    s_add_u32 s66, s66, {EX}
    v_lshrrev_b32 v6, 3, v0
    v_and_b32 v7, 1, v2
    v_lshlrev_b32 v7, 1, v7
    v_and_b32 v8, 7, v0
    v_xor_b32 v7, v7, v8
    v_lshlrev_b32 v7, 4, v7
    v_lshl_add_u32 v28, v6, 13, v7
    v_xor_b32 v29, 64, v28
    s_and_b32 s46, s32, 1
    s_lshl_b32 s57, s33, 1
    s_add_u32 s46, s46, s57
    s_lshl_b32 s57, s46, 19
    s_and_b32 s58, s3, 3
    s_lshl_b32 s58, s58, 17
    s_add_u32 s57, s57, s58
    s_and_b32 s58, s34, 0xfe
    s_lshr_b32 s60, s3, 2
    s_add_u32 s58, s58, s60
    s_lshl_b32 s58, s58, 7
    s_add_u32 s57, s57, s58
    s_add_u32 s58, s57, 0x10000
    s_lshl_b32 s60, s3, 11
    s_add_u32 s60, s60, {LW}
    s_mov_b32 s50, 0x400000
    s_mov_b32 s51, 0x20000
    s_cmp_ge_u32 s3, 4
    s_cbranch_scc1 L_loader
    """)
    WQ = """
    s_add_u32 s28, s30, s66
    s_addc_u32 s29, s31, 0
    s_mov_b32 s48, s14
    s_mov_b32 s49, s15
    s_mov_b32 m0, s60
    s_add_u32 s60, s60, 1024
    buffer_load_dwordx4 v28, s[48:51], s57 offen nt lds
    s_mov_b32 m0, s60
    s_nop 0
    buffer_load_dwordx4 v29, s[48:51], s58 offen nt lds
    """
    XL = opt.get('xlate', 1)
    XL_ = """
    global_load_dwordx4 v[8:11], v4, s[8:9]
    global_load_dwordx4 v[12:15], v4, s[8:9] offset:16
    global_load_dwordx4 v[16:19], v5, s[8:9]
    """
    FF = """
    ; unit = ((7k+1)>>1) + (rl>>1) ; f = 2*unit + (rl&1) ; valid iff (rl>>1) < 4-(k&1)
    s_mul_i32 s63, s4, 7
    s_add_u32 s63, s63, 1
    s_and_b32 s63, s63, 0xfe
    s_add_u32 s63, s63, s32
    s_lshr_b32 s59, s32, 1
    s_and_b32 s62, s4, 1
    s_add_u32 s59, s59, s62
    s_cmp_lt_u32 s59, 4
    s_cselect_b32 s54, 0x1c0000, 0
    s_lshl_b32 s61, s3, 13
    s_add_u32 s61, s61, %d
    """ % (LW + 8192)
    a(f"""
    v_and_b32 v3, 1, v0
    v_lshlrev_b32 v3, 10, v3
    v_lshrrev_b32 v4, 1, v0
    v_lshl_add_u32 v4, v4, 5, v3
    v_lshrrev_b32 v5, 3, v1
    v_lshl_add_u32 v5, v5, 6, v3
    v_lshl_add_u32 v5, v2, 4, v5
    s_lshl_b32 s61, s46, 7
    v_add_u32 v5, s61, v5
    s_lshl_b32 s59, s7, 7
    s_lshl_b32 s62, s6, 15
    s_add_u32 s62, s62, {OP}
    s_lshl_b32 s64, s6, 11
    s_add_u32 s64, s64, {ST}
    s_cmp_eq_u32 s3, 0
    s_cselect_b32 s62, s62, s64
    s_cselect_b32 s64, 60, 0
    s_add_u32 s62, s62, s59
    v_and_b32 v20, s64, v0
    v_lshlrev_b32 v20, 9, v20
    v_and_b32 v21, 3, v0
    v_lshlrev_b32 v21, 4, v21
    v_add3_u32 v144, s62, v20, v21
    v_mov_b32 v24, -1
    v_mov_b32 v25, -1
    v_mov_b32 v26, -1
    v_mov_b32 v27, -1
    s_waitcnt lgkmcnt(0)
    {'s_memrealtime s[74:75]' if opt.get('probe') == 'karg' else ''}
    {'s_memrealtime s[100:101]' if stamps else ''}
    {'s_cmp_lt_u32 s3, 2' if XL else ''}
    {'s_cbranch_scc0 L_nox' if XL else ''}
    {XL_}
    {'L_nox:' if XL else ''}
    {WQ}
    s_load_dword s35, s[30:31], 0
    s_cmp_lt_u32 s3, 2
    s_cbranch_scc1 L_sx0
    s_barrier
    {FF}
    v_mul_u32_u24 v30, 3584, v6
    v_add_u32 v31, v30, v7
    v_xor_b32 v7, 64, v7
    v_add_u32 v30, v30, v7
    s_mul_i32 s56, s46, {64*3584}
    s_lshr_b32 s59, s63, 1
    s_lshl_b32 s59, s59, 7
    s_add_u32 s56, s56, s59
    s_mov_b32 s42, s54
    s_mov_b32 s43, 0x20000
    s_cmp_eq_u32 s3, 2
    s_cselect_b32 s40, s20, s22
    s_cselect_b32 s41, s21, s23
    s_sub_u32 s60, s61, 8192
    {XL_ if XL == 1 else ''}
    L_tloop:
    s_mov_b32 m0, s60
    s_add_u32 s60, s60, 1024
    buffer_load_dwordx4 v31, s[40:43], s56 offen nt lds
    s_add_u32 s56, s56, {8*3584}
    s_mov_b32 m0, s60
    s_add_u32 s60, s60, 1024
    buffer_load_dwordx4 v30, s[40:43], s56 offen nt lds
    s_add_u32 s56, s56, {8*3584}
    s_cmp_lt_u32 s60, s61
    s_cbranch_scc1 L_tloop
    {XL_ if XL == 2 else ''}
    s_waitcnt vmcnt({11 if XL else 8})
    s_barrier
    s_branch L_service
    L_sx0:
    global_store_dwordx4 v144, v[24:27], s[28:29]
    s_barrier
    {FF}
    s_branch L_service
    """)
    a("L_loader:")
    TLB = """
    s_lshl_b32 s37, s34, 16
    s_load_dword s38, s[12:13], s36
    s_load_dword s38, s[16:17], s37
    s_load_dword s38, s[24:25], 0
    s_load_dword s38, s[26:27], 0
    s_load_dword s38, s[10:11], s36
    s_load_dword s38, s[20:21], 0
    s_load_dword s38, s[22:23], 0
    """ if opt.get('tlb') else ""
    FTCH = f"""
    s_and_b32 s62, s7, 7
    s_lshl_b32 s62, s62, 3
    s_lshl_b32 s63, s56, 1
    s_add_u32 s62, s62, s63
    s_lshl_b64 exec, 3, s62
    global_load_dword v20, v116, s[28:29] {opt.get('ftf', 'sc1 nt')}
    s_mov_b64 exec, -1
    """
    a(f"""
    s_sub_u32 s56, s3, 4
    s_lshl_b32 s36, s56, 2
    v_add_u32 v3, s36, v2
    v_xor_b32 v4, v3, v1
    v_lshlrev_b32 v4, 4, v4
    v_lshl_add_u32 v4, v2, 8, v4
    v_and_b32 v5, 7, v3
    v_lshlrev_b32 v5, 1, v5
    v_xor_b32 v5, v5, v1
    v_lshlrev_b32 v5, 4, v5
    v_lshl_add_u32 v3, v3, 10, v5
    v_lshl_add_u32 v5, v2, 8, v5
    s_lshl_b32 s36, s6, 3
    s_add_u32 s36, s36, s4
    s_lshl_b32 s36, s36, 23
    s_lshl_b32 s59, s7, 16
    s_add_u32 s36, s36, s59
    s_add_u32 s36, s36, 0x700000
    s_mul_i32 s59, s2, {rotmul}
    s_add_u32 s59, s59, s56
    s_and_b32 s59, s59, 63
    s_lshl_b32 s59, s59, 10
    s_mov_b32 s42, 0x10000
    s_mov_b32 s43, 0x20000
    s_mov_b32 s46, 0x10000
    s_mov_b32 s47, 0x20000
    s_waitcnt lgkmcnt(0)
    {WQ}
    s_add_u32 s40, s10, s36
    s_addc_u32 s41, s11, 0
    s_lshl_b32 s60, s56, 10
    {TLB}
    s_barrier
    L_kloop0:
    s_mov_b32 m0, s60
    s_add_u32 s60, s60, 4096
    buffer_load_dwordx4 v4, s[40:43], s59 offen nt lds
    s_add_u32 s59, s59, 4096
    s_and_b32 s59, s59, 0xffff
    s_cmp_lt_u32 s60, {4096*kpre}
    s_cbranch_scc1 L_kloop0
    s_add_u32 s44, s12, s36
    s_addc_u32 s45, s13, 0
    s_mov_b32 s48, s16
    s_mov_b32 s49, s17
    s_lshl_b32 s57, s33, 8
    s_lshl_b32 s61, s34, 16
    s_add_u32 s61, s61, s57
    s_load_dword s35, s[30:31], 0
    s_getreg_b32 s57, hwreg(HW_REG_XCC_ID)
    s_bitcmp1_b32 s57, 0
    s_cselect_b64 vcc, -1, 0
    s_lshl_b32 s57, s6, 14
    s_lshl_b32 s58, s7, 4
    s_add_u32 s57, s57, s58
    s_add_u32 s57, s57, {FP}
    v_lshlrev_b32 v116, 8, v0
    v_add_u32 v116, s57, v116
    v_lshrrev_b32 v120, 1, v2
    v_and_b32 v6, 1, v2
    v_lshl_add_u32 v120, v6, 1, v120
    s_lshl_b32 s57, s4, 5
    s_add_u32 s57, s57, s5
    s_lshl_b32 s57, s57, 3
    v_lshl_add_u32 v120, v120, 1, s57
    s_waitcnt vmcnt({kpre})
    s_barrier
    global_load_ushort v119, v120, s[8:9]
    {FTCH if opt.get('ftch') == 1 else ''}
    {'global_load_ushort v118, v120, s[26:27] ' + opt['otch'].replace('plain', '') if opt.get('otch') else ''}
    L_kloop:
    {TW(thr)}
    s_mov_b32 m0, s60
    s_add_u32 s60, s60, 4096
    buffer_load_dwordx4 v4, s[40:43], s59 offen nt lds
    s_add_u32 s59, s59, 4096
    s_and_b32 s59, s59, 0xffff
    s_cmp_lt_u32 s60, 65536
    s_cbranch_scc1 L_kloop
    L_vloop:
    {TW(thr)}
    s_mov_b32 m0, s60
    s_add_u32 s60, s60, 4096
    buffer_load_dwordx4 v5, s[44:47], s59 offen nt lds
    s_add_u32 s59, s59, 4096
    s_and_b32 s59, s59, 0xffff
    s_cmp_lt_u32 s60, {65536 + 4096*min(vthr, vpre)}
    s_cbranch_scc1 L_vloop
    """)
    if vthr < vpre:
        a(f"""
    L_vloop1:
    {TW(thr2)}
    s_mov_b32 m0, s60
    s_add_u32 s60, s60, 4096
    buffer_load_dwordx4 v5, s[44:47], s59 offen nt lds
    s_add_u32 s59, s59, 4096
    s_and_b32 s59, s59, 0xffff
    s_cmp_lt_u32 s60, {65536 + 4096*vpre}
    s_cbranch_scc1 L_vloop1
    """)
    stamp("L pre issue", 0)
    a(f"s_waitcnt vmcnt({vpre}) lgkmcnt(0)")
    stamp("L K landed")
    a("s_barrier")
    stamp("B1", 5)
    tp = opt.get('tp', 14)
    if opt.get('ftch') == 2: a(FTCH)
    nA = opt.get('nA', (tp - thr2) // 2)
    nB = opt.get('nB', (20 - thr2) // 2)
    def vloop(lbl, end):
        a(f"""
        {lbl}:
        {TW(thr2)}
        s_mov_b32 m0, s60
        s_add_u32 s60, s60, 4096
        buffer_load_dwordx4 v5, s[44:47], s59 offen nt lds
        s_add_u32 s59, s59, 4096
        s_and_b32 s59, s59, 0xffff
        s_cmp_lt_u32 s60, {65536 + 4096*end}
        s_cbranch_scc1 {lbl}
        """)
    vloop("L_vloop2", tp)
    a(f"s_waitcnt vmcnt({tp - 2*nA})")
    stamp("L at Bp", 2)
    a("s_barrier")
    stamp("Bp", 7)
    if tp < 16: vloop("L_vloop3", 16)
    a(f"""
    s_lshl_b32 s60, s56, 13
    s_add_u32 s60, s60, {LW}
    """)
    for t in range(4):
        a(f"""
        s_add_u32 m0, s60, {t*1024}
        {TW(thr2)}
        buffer_load_dwordx4 v3, s[48:51], s61 offen nt lds
        s_add_u32 s61, s61, 16384
        """)
    a(f"s_waitcnt vmcnt({20 - 2*nB})")
    stamp("L at Bq", 3)
    a("s_barrier")
    a("s_waitcnt vmcnt(4)")
    stamp("L V landed", 4)
    a("s_barrier")
    stamp("BB", 8)
    a("s_waitcnt vmcnt(0)")
    stamp("L wo landed", 9)
    a("s_barrier")
    a("s_cmp_eq_u32 s3, 4")
    a("s_cbranch_scc1 L_final")
    a("s_branch L_fin" if stamps else ("s_branch L_end" if opt.get('probe') else "s_endpgm"))

    a("L_service:")
    a(f"""
    s_lshl_b32 s59, s7, 7
    s_mov_b32 s62, 0xffff0000
    s_mov_b32 s64, 0x000f000f
    s_mov_b32 s65, 0x000f000f
    v_and_b32 v4, 3, v1
    v_lshrrev_b32 v5, 2, v1
    v_and_b32 v6, 1, v2
    s_lshl_b32 s57, s3, 2
    v_add_u32 v95, s57, v2
    v_and_b32 v7, 7, v95
    v_lshlrev_b32 v7, 1, v7
    v_xor_b32 v7, v7, v1
    v_lshlrev_b32 v7, 4, v7
    v_lshl_add_u32 v95, v95, 10, v7
    s_lshl_b32 s50, s63, 15
    s_lshl_b32 s57, s33, 8
    s_add_u32 s50, s50, s57
    s_mov_b32 s52, s24
    s_mov_b32 s53, s25
    s_mov_b32 s55, 0x20000
    v_lshrrev_b32 v96, 3, v1
    v_lshl_add_u32 v96, v6, 1, v96
    v_lshlrev_b32 v96, 5, v96
    v_lshl_add_u32 v96, v5, 7, v96
    v_lshl_add_u32 v96, v2, 10, v96
    v_lshl_add_u32 v96, v4, 3, v96
    s_sub_u32 s60, s61, 8192
    v_add_u32 v96, s60, v96
    v_xor_b32 v97, 32, v96
    v_xor_b32 v92, 64, v96
    v_xor_b32 v93, 0x60, v96
    s_cmp_lt_u32 s3, 2
    s_cselect_b32 s57, 14, 8
    v_and_b32 v98, 1, v1
    v_lshlrev_b32 v98, s57, v98
    v_lshrrev_b32 v7, 1, v1
    v_lshl_add_u32 v98, v7, 6, v98
    v_lshl_add_u32 v98, v2, 4, v98
    s_lshr_b32 s56, s32, 1
    s_lshl_b32 s57, s56, 9
    s_lshl_b32 s58, s3, 8
    s_add_u32 s57, s57, s58
    s_lshl_b32 s58, s46, 11
    s_add_u32 s57, s57, s58
    s_add_u32 s57, s57, {QP}
    s_lshl_b32 s63, s56, 13
    s_add_u32 s63, s63, {GP}
    s_lshl_b32 s58, s46, 10
    s_add_u32 s58, s58, s63
    s_lshl_b32 s56, s3, 9
    s_add_u32 s58, s58, s56
    s_sub_u32 s58, s58, 1024
    s_and_b32 s56, s32, 1
    s_lshl_b32 s56, s56, 7
    s_add_u32 s63, s63, s56
    s_cmp_lt_u32 s3, 2
    s_cselect_b32 s57, s57, s58
    v_add_u32 v98, s57, v98
    v_cmp_eq_u32 s[44:45], 1, v7
    v_cmp_eq_u32 s[46:47], 2, v7
    v_cmp_eq_u32 s[48:49], 3, v7
    s_lshl_b32 s57, s6, 14
    s_lshl_b32 s58, s3, 10
    s_add_u32 s57, s57, s58
    s_add_u32 s57, s57, {QP+4096}
    v_lshlrev_b32 v99, 4, v0
    v_add_u32 v99, s57, v99
    v_add_u32 v94, 0x2000, v99
    s_add_u32 s60, s60, 6144
    v_lshlrev_b32 v100, 3, v0
    v_add_u32 v100, s60, v100
    s_lshl_b32 s58, s6, 11
    s_add_u32 s58, s58, s59
    s_add_u32 s58, s58, {ST}
    v_lshlrev_b32 v118, 2, v0
    v_add_u32 v118, s58, v118
    v_mov_b32 v121, 0xff
    s_getreg_b32 s68, hwreg(HW_REG_XCC_ID)
    s_and_b32 s68, s68, 7
    s_cmp_lt_u32 s3, 2
    s_cbranch_scc1 L_ln0
    s_waitcnt vmcnt({0 if XL == 2 else 8})
    s_branch L_ln
    L_ln0:
    s_waitcnt vmcnt(3)
    L_ln:
    """)
    stamp("S x landed", 0)
    for i in range(8):
        a(f"v_lshlrev_b32 v{32+2*i}, 16, v{8+i}")
        a(f"v_and_b32 v{33+2*i}, s62, v{8+i}")
    for i in range(4):
        a(f"v_pk_add_f32 v[{48+2*i}:{49+2*i}], v[{32+4*i}:{33+4*i}], v[{34+4*i}:{35+4*i}]")
    a("v_pk_add_f32 v[48:49], v[48:49], v[50:51]")
    a("v_pk_add_f32 v[52:53], v[52:53], v[54:55]")
    a("v_pk_add_f32 v[48:49], v[48:49], v[52:53]")
    a("v_add_f32 v48, v48, v49")
    reduce5(48, 49)
    a("v_mul_f32 v48, 0xbb000000, v48")
    a("v_mov_b32 v49, v48")
    for i in range(8):
        a(f"v_pk_add_f32 v[{32+2*i}:{33+2*i}], v[{32+2*i}:{33+2*i}], v[48:49]")
    a("v_pk_mul_f32 v[50:51], v[32:33], v[32:33]")
    a("v_pk_mul_f32 v[52:53], v[34:35], v[34:35]")
    for i in range(2, 8):
        d = 50 + 2 * (i & 1)
        a(f"v_pk_fma_f32 v[{d}:{d+1}], v[{32+2*i}:{33+2*i}], v[{32+2*i}:{33+2*i}], v[{d}:{d+1}]")
    a("v_pk_add_f32 v[50:51], v[50:51], v[52:53]")
    a("v_add_f32 v50, v50, v51")
    a("""
    v_cvt_pk_bf16_f32 v48, v48, v48
    v_and_b32 v48, s62, v48
    v_mov_b32 v49, v48
    """)
    dpp("v_add_f32", 50, "quad_perm:[2,3,0,1]")
    fr = []
    for i in range(4):
        fr.append(f"v_lshlrev_b32 v{32+2*i}, 16, v{16+i}")
        fr.append(f"v_and_b32 v{33+2*i}, s62, v{16+i}")
    for i in range(4):
        fr.append(f"v_pk_add_f32 v[{32+2*i}:{33+2*i}], v[{32+2*i}:{33+2*i}], v[48:49]")
    for i in range(4):
        fr.append(f"v_cvt_pk_bf16_f32 v{16+i}, v{32+2*i}, v{33+2*i}")
    for i in range(4):
        fr.append(f"v_lshlrev_b32 v{32+2*i}, 16, v{16+i}")
        fr.append(f"v_and_b32 v{33+2*i}, s62, v{16+i}")
    ch = [f"v_add_f32_dpp v50, v50, v50 row_ror:4 {DPPM}", None, None,
          f"v_add_f32_dpp v50, v50, v50 row_ror:8 {DPPM}", "v_mov_b32 v51, v50", None, None,
          "v_permlane16_swap_b32 v50, v51", "v_add_f32 v50, v50, v51", "v_mov_b32 v51, v50", None, None,
          "v_permlane32_swap_b32 v50, v51", "v_add_f32 v50, v50, v51",
          "v_mul_f32 v50, 0x3b000000, v50", "v_cvt_pk_bf16_f32 v50, v50, v50", "v_and_b32 v50, s62, v50",
          "v_add_f32 v50, 0x3727c5ac, v50", "v_cvt_pk_bf16_f32 v50, v50, v50", "v_and_b32 v50, s62, v50",
          "v_sqrt_f32 v50, v50", None, "v_cvt_pk_bf16_f32 v50, v50, v50", "v_and_b32 v50, s62, v50",
          "v_rcp_f32 v50, v50", None]
    for c in ch:
        a(c if c else fr.pop(0))
    a("v_mov_b32 v51, v50")
    for x in fr: a(x)
    for i in range(4):
        a(f"v_pk_mul_f32 v[{32+2*i}:{33+2*i}], v[{32+2*i}:{33+2*i}], v[50:51]")
    for i in range(4):
        a(f"v_cvt_pk_bf16_f32 v{16+i}, v{32+2*i}, v{33+2*i}")
    for i in range(4):
        a(f"v_mov_b32_dpp v{20+i}, v{16+i} row_ror:8 {DPPM}")
    a(f"""
    s_waitcnt lgkmcnt(0)
    s_add_u32 s35, s35, {EINC}
    s_lshr_b32 s36, s35, 8
    s_lshr_b32 s37, s35, 16
    s_lshr_b32 s38, s35, 24
    s_and_b32 s38, s38, 0xf8
    s_or_b32 s38, s38, s68
    s_and_b32 s39, s35, 0x00ffffff
    s_lshl_b32 s57, s38, 24
    s_or_b32 s39, s39, s57
    """)
    stamp("S LN done")
    a(f"""
    s_cmp_lt_u32 s3, 2
    s_waitcnt vmcnt(0)
    s_cbranch_scc0 L_w3
    s_barrier
    L_w3:
    """)
    stamp("S tile landed")
    TA = [96, 97, 92, 93]
    for aa in range(4):
        for ss in range(2):
            for e in range(2):
                d = 48 + 8 * aa + 4 * ss + 2 * e
                a(f"ds_read_b64_tr_b16 v[{d}:{d+1}], v{TA[aa]} offset:{ss*4096+e*512}")
    def p1mfma(aa):
        for ss in range(2):
            bi = 16 + 4 * ss
            a(f"v_mfma_f32_16x16x32_bf16 v[{32+4*aa}:{35+4*aa}], v[{48+8*aa+4*ss}:{51+8*aa+4*ss}], v[{bi}:{bi+3}], {'0' if ss==0 else f'v[{32+4*aa}:{35+4*aa}]'}")
    for aa in range(4):
        a(f"s_waitcnt lgkmcnt({12-4*aa})")
        p1mfma(aa)
    a("s_mov_b32 s56, 0x00ff00ff")
    a("s_mov_b32 s57, 0x00ff00ff")
    for aa in range(1, 4):
        for i in range(4):
            a(f"v_cndmask_b32 v{32+i}, v{32+i}, v{32+4*aa+i}, s[{42+2*aa}:{43+2*aa}]")
    for i in range(4):
        a(f"v_bfi_b32 v{32+i}, v121, s{35+i}, v{32+i}")
    a(f"""
    s_mov_b64 exec, s[56:57]
    @PUB@global_store_dwordx4 v98, v[32:35], s[28:29]
    s_mov_b64 exec, -1
    """)
    stamp("S published")
    a("""
    s_sub_u32 m0, s61, 4096
    s_add_u32 s51, s50, 16384
    buffer_load_dwordx4 v95, s[52:55], s50 offen nt lds
    s_sub_u32 m0, s61, 3072
    s_nop 0
    buffer_load_dwordx4 v95, s[52:55], s51 offen nt lds
    """)
    a(f"""
    v_xor_b32 v101, v2, v1
    v_lshlrev_b32 v101, 4, v101
    v_lshl_add_u32 v101, v1, 8, v101
    s_lshl_b32 s59, s3, 14
    v_add_u32 v101, s59, v101
    v_xor_b32 v102, 64, v101
    v_xor_b32 v103, 0x80, v101
    v_xor_b32 v104, 0xc0, v101
    v_and_b32 v105, 2, v1
    v_lshlrev_b32 v105, 12, v105
    v_and_b32 v7, 1, v1
    v_lshl_add_u32 v105, v7, 8, v105
    v_lshl_add_u32 v105, v2, 4, v105
    v_add_u32 v105, {R(0)}, v105
    v_lshrrev_b32 v106, 1, v5
    v_lshlrev_b32 v106, 8, v106
    v_lshl_add_u32 v106, v2, 6, v106
    v_lshl_add_u32 v106, v4, 4, v106
    v_and_b32 v8, 1, v5
    v_lshl_add_u32 v106, v8, 3, v106
    s_lshl_b32 s59, s3, 9
    s_add_u32 s59, s59, {PB}
    v_add_u32 v106, s59, v106
    v_lshlrev_b32 v122, 5, v4
    v_add_u32 v122, {MLB}, v122
    s_lshl_b32 s59, s3, 2
    v_add_u32 v107, s59, v122
    s_and_b32 s56, s3, 1
    v_lshlrev_b32 v108, 10, v5
    v_and_b32 v8, 2, v1
    v_lshl_add_u32 v108, v8, 8, v108
    v_lshl_add_u32 v108, v7, 6, v108
    v_lshl_add_u32 v108, v2, 4, v108
    s_lshl_b32 s59, s56, 8
    s_add_u32 s59, s59, s63
    s_add_u32 s59, s59, 2048
    v_add_u32 v108, s59, v108
    s_mov_b32 s57, s56
    s_lshl_b32 s58, s57, 15
    s_lshl_b32 s59, s32, 12
    s_add_u32 s58, s58, s59
    s_add_u32 s58, s58, {OP}
    v_lshlrev_b32 v123, 7, v1
    v_lshl_add_u32 v109, v2, 4, v123
    v_add_u32 v109, s58, v109
    s_lshl_b32 s58, s57, 11
    s_add_u32 s59, s58, {FL}
    v_add_u32 v123, s59, v123
    s_lshr_b32 s59, s32, 1
    s_lshl_b32 s59, s59, 2
    s_add_u32 s58, s58, s59
    s_add_u32 s58, s58, {ST}
    v_lshl_add_u32 v110, v2, 2, v4
    v_lshlrev_b32 v110, 7, v110
    v_add_u32 v110, s58, v110
    v_lshl_add_u32 v8, v6, 2, v5
    s_lshl_b32 s58, s3, 1
    s_and_b32 s58, s58, 4
    v_xor_b32 v8, s58, v8
    v_lshlrev_b32 v8, 5, v8
    v_lshl_add_u32 v111, v5, 8, v8
    v_lshl_add_u32 v111, v4, 3, v111
    v_lshl_add_u32 v111, v2, 13, v111
    v_add_u32 v111, {LW}, v111
    v_xor_b32 v112, 32, v111
    v_xor_b32 v113, 64, v111
    v_xor_b32 v114, 0x60, v111
    v_lshrrev_b32 v115, 1, v2
    v_lshl_add_u32 v115, v6, 1, v115
    v_lshl_add_u32 v115, v115, 4, v1
    v_lshlrev_b32 v115, 2, v115
    s_lshl_b32 s58, s56, 20
    s_lshl_b32 s59, s33, 18
    s_add_u32 s58, s58, s59
    s_lshr_b32 s59, s3, 1
    s_lshl_b32 s59, s59, 14
    s_add_u32 s58, s58, s59
    s_lshl_b32 s59, s34, 8
    s_add_u32 s58, s58, s59
    s_add_u32 s58, s58, {FP+EX}
    v_add_u32 v115, s58, v115
    v_lshlrev_b32 v117, 3, v4
    v_lshrrev_b32 v117, v117, s35
    v_lshlrev_b32 v250, 4, v4
    v_lshl_add_u32 v250, v2, 6, v250
    v_add_u32 v250, {PB}, v250
    v_lshl_add_u32 v248, v2, 2, v5
    v_and_b32 v249, 7, v248
    s_lshl_b32 s58, s3, 1
    v_xor_b32 v249, s58, v249
    v_lshlrev_b32 v249, 5, v249
    v_lshl_add_u32 v248, v248, 8, v249
    v_lshl_add_u32 v248, v4, 3, v248
    v_add_u32 v248, 0x10000, v248
    v_xor_b32 v249, 32, v248
    s_lshl_b32 s58, s6, 15
    s_lshl_b32 s59, s3, 11
    s_add_u32 s58, s58, s59
    s_lshl_b32 s59, s7, 7
    s_add_u32 s58, s58, s59
    s_add_u32 s58, s58, {OP}
    v_lshlrev_b32 v251, 13, v4
    v_lshl_add_u32 v251, v2, 4, v251
    v_add_u32 v251, s58, v251
    s_mov_b32 s58, 0x0c0c0400
    s_mov_b32 s59, 0x04000c0c
    s_mov_b32 s61, 0xf8ffffff
    s_cmp_ge_u32 s3, {0 if opt.get('nogather') else 2}
    s_cbranch_scc1 L_qskip
    {'global_load_dword v144, v144, s[28:29] ' + OTF if OT == 1 else ''}
    {'s_sleep ' + str(opt['qdelay']) if opt.get('qdelay') else ''}
    {'s_waitcnt vmcnt(%d)' % (opt['qwait'] - 1) if opt.get('qwait') else ''}
    s_mov_b32 s57, 0
    """)
    a("L_qpoll:")
    for c in range(8):
        a(f"global_load_dwordx4 v[{32+4*c}:{35+4*c}], v{99 if c < 4 else 94}, s[28:29] offset:{(c&3)*2048-4096} @LF@")
    for c in range(8):
        a(f"s_waitcnt vmcnt({7-c})")
        a(f"v_perm_b32 v{64+2*c}, v{33+4*c}, v{32+4*c}, s58")
        a(f"v_perm_b32 v{65+2*c}, v{35+4*c}, v{34+4*c}, s59")
        a(f"v_or_b32 v{64+2*c}, v{64+2*c}, v{65+2*c}")
        a(f"v_xor_b32 v{64+2*c}, s39, v{64+2*c}")
    a(f"""
    v_or3_b32 v64, v64, v66, v68
    v_or3_b32 v70, v70, v72, v74
    v_or3_b32 v64, v64, v76, v78
    v_or_b32 v80, v64, v70
    v_and_b32 v64, s61, v80
    v_cmp_ne_u32 vcc, 0, v64
    s_add_u32 s57, s57, 1
    s_mov_b64 exec, vcc
    s_cbranch_execz L_qdone
    s_cmp_lt_u32 s57, {NFAST}
    s_cbranch_scc1 L_qpoll
    buffer_wbl2 sc1
    buffer_inv sc1
    s_waitcnt vmcnt(0)
    s_cmp_lt_u32 s57, {SPIN}
    s_cbranch_scc1 L_qpoll
    L_qdone:
    s_mov_b64 exec, -1
    v_cmp_ne_u32 vcc, 0, v80
    s_movk_i32 s56, 0xff00
    """)
    for i in range(32):
        a(f"v_and_b32 v{32+i}, s56, v{32+i}")
    a("s_or_b32 s56, vcc_lo, vcc_hi")
    for step in (4, 8, 16):
        for base in range(32, 64, 2 * step):
            for h in range(2):
                a(f"v_pk_add_f32 v[{base+2*h}:{base+2*h+1}], v[{base+2*h}:{base+2*h+1}], v[{base+step+2*h}:{base+step+2*h+1}]")
    a(f"""
    v_cvt_pk_bf16_f32 v32, v32, v33
    v_cvt_pk_bf16_f32 v33, v34, v35
    v_mov_b32 v34, s56
    v_mov_b32 v35, s60
    ds_write_b64 v100, v[32:33]
    ds_write_b32 v35, v34 offset:{MODEB}
    """)
    if stamps: a("s_mov_b32 s69, s57")
    stamp("S gathered")
    a(f"""
    L_qskip:
    v_mov_b32 v10, {R(0)+MODEB}
    s_waitcnt vmcnt(0) lgkmcnt(0)
    s_barrier
    """)
    stamp("B1", 5)
    a("""
    ds_read_b32 v8, v10
    ds_read_b32 v9, v10 offset:8192
    """)
    for j in range(4):
        a(f"ds_read_b128 v[{16+4*j}:{19+4*j}], v105 offset:{64*j}")
    def kread(blk):
        for j in range(4):
            d = 32 + 16 * blk + 4 * j
            a(f"ds_read_b128 v[{d}:{d+3}], v{101+j} offset:{4096*blk}")
    kread(0); kread(1)
    a("global_load_dwordx4 v[124:127], v108, s[28:29] offset:-2048 @L1@")
    a("global_load_dwordx4 v[12:15], v108, s[28:29] offset:2048 @L1@")
    for blk in range(4):
        a(f"s_waitcnt lgkmcnt({4 if blk < 3 else 0})")
        for j in range(4):
            d = 32 + 16 * blk + 4 * j
            ac = 128 + 4 * blk
            a(f"v_mfma_f32_16x16x32_bf16 v[{ac}:{ac+3}], v[{d}:{d+3}], v[{16+4*j}:{19+4*j}], {'0' if j==0 else f'v[{ac}:{ac+3}]'}")
        if blk + 2 < 4: kread(blk + 2)
        if blk == 0:
            a("v_or_b32 v8, v8, v9")
            a("v_cmp_eq_u32 s[44:45], 1, v5")
            a("v_cmp_eq_u32 s[46:47], 2, v5")
            a("v_cmp_eq_u32 s[48:49], 3, v5")
            a("v_readfirstlane_b32 s60, v8")
            if opt.get('nogather'): a("s_mov_b32 s60, 0")
    a(f"s_mov_b32 s56, {SCALE}")
    a(f"s_mov_b32 s57, {LOG2E}")
    for blk in range(1, 4):
        for i in range(4):
            a(f"v_cndmask_b32 v{128+i}, v{128+i}, v{128+4*blk+i}, s[{42+2*blk}:{43+2*blk}]")
    a("""
    v_cvt_pk_bf16_f32 v40, v128, v129
    v_cvt_pk_bf16_f32 v41, v130, v131
    v_lshlrev_b32 v32, 16, v40
    v_and_b32 v33, s62, v40
    v_lshlrev_b32 v34, 16, v41
    v_and_b32 v35, s62, v41
    """)
    for i in range(4): a(f"v_mul_f32 v{32+i}, s56, v{32+i}")
    a("""
    v_cvt_pk_bf16_f32 v40, v32, v33
    v_cvt_pk_bf16_f32 v41, v34, v35
    v_lshlrev_b32 v32, 16, v40
    v_and_b32 v33, s62, v40
    v_lshlrev_b32 v34, 16, v41
    v_and_b32 v35, s62, v41
    v_max3_f32 v40, v32, v33, v34
    v_max_f32 v40, v40, v35
    """)
    reduce4(40, 41, "v_max_f32")
    for i in range(4): a(f"v_sub_f32 v{32+i}, v{32+i}, v40")
    for i in range(4): a(f"v_mul_f32 v{32+i}, s57, v{32+i}")
    for i in range(4): a(f"v_exp_f32 v{32+i}, v{32+i}")
    a("""
    v_mul_f32 v40, s57, v40
    v_cvt_pk_bf16_f32 v44, v32, v33
    v_cvt_pk_bf16_f32 v45, v34, v35
    ds_write_b64 v106, v[44:45]
    ds_write_b32 v107, v40
    v_add_f32 v32, v32, v33
    v_add_f32 v34, v34, v35
    v_add_f32 v32, v32, v34
    """)
    reduce4(32, 33)
    a("""
    ds_write_b32 v107, v32 offset:16
    s_cmp_eq_u32 s60, 0
    s_cbranch_scc1 L_nowb
    buffer_wbl2 sc1
    L_nowb:
    """)
    stamp("S softmax done", 6)
    a("""
    s_waitcnt lgkmcnt(0)
    s_barrier
    """)
    stamp("Bp", 7)
    PF = 148; VF = 180; AC = 212; AL = 244
    def rd(u):
        for q in range(2):
            for e in range(2):
                d = VF + 8 * (u % 4) + 4 * q + 2 * e
                a(f"ds_read_b64_tr_b16 v[{d}:{d+1}], v{248+q} offset:{8192*u+4096*e}")
    def pvm(u):
        for q in range(2):
            d = VF + 8 * (u % 4) + 4 * q
            ac = AC + 8 * (u >> 1) + 4 * q
            a(f"v_mfma_f32_16x16x32_bf16 v[{ac}:{ac+3}], v[{d}:{d+3}], v[{PF+4*u}:{PF+3+4*u}], {'0' if u % 2 == 0 else f'v[{ac}:{ac+3}]'}")
    a("""
    ds_read_b128 v[40:43], v122
    ds_read_b128 v[44:47], v122 offset:16
    """)
    for u in range(8):
        a(f"ds_read_b128 v[{PF+4*u}:{PF+3+4*u}], v250 offset:{256*u}")
    a("""
    s_waitcnt lgkmcnt(8)
    v_max3_f32 v48, v40, v41, v42
    v_max_f32 v48, v48, v43
    """)
    for i in range(4): a(f"v_sub_f32 v{40+i}, v{40+i}, v48")
    for i in range(4): a(f"v_exp_f32 v{40+i}, v{40+i}")
    a("""
    v_mul_f32 v49, v40, v44
    v_fmac_f32 v49, v41, v45
    v_fmac_f32 v49, v42, v46
    v_fmac_f32 v49, v43, v47
    v_log_f32 v50, v49
    v_rcp_f32 v49, v49
    s_cmp_lg_u32 s3, 3
    s_cbranch_scc1 L_nostat
    v_add_f32 v52, v50, v48
    s_mov_b32 exec_hi, 0
    global_store_dword v118, v52, s[28:29]
    s_mov_b64 exec, -1
    L_nostat:
    s_waitcnt lgkmcnt(0)
    """)
    assert nA <= 4 and nB - nA <= 4 and 8 - nB <= 4
    for u in range(nA): rd(u)
    for i in range(4): a(f"v_mul_f32 v{AL+i}, v{40+i}, v49")
    for u in range(nA):
        a(f"s_waitcnt lgkmcnt({min(15, 4*(nA-1-u))})")
        pvm(u)
    for q in range(4):
        for e in range(2):
            d = 80 + 4 * q + 2 * e
            a(f"ds_read_b64_tr_b16 v[{d}:{d+1}], v{111+q} offset:{(4+e)*1024}")
    a("""
    s_cbranch_scc1 L_nostat1
    s_waitcnt vmcnt(1)
    s_branch L_nostat2
    L_nostat1:
    s_waitcnt vmcnt(0)
    L_nostat2:
    """)
    a(f"""
    s_mov_b32 s57, 0
    L_gcheck:
    v_perm_b32 v48, v125, v124, s58
    v_perm_b32 v49, v127, v126, s59
    v_perm_b32 v50, v13, v12, s58
    v_perm_b32 v51, v15, v14, s59
    v_or_b32 v48, v48, v49
    v_or_b32 v50, v50, v51
    v_xor_b32 v48, s39, v48
    v_xor_b32 v50, s39, v50
    v_or_b32 v48, v48, v50
    v_and_b32 v48, s61, v48
    v_cmp_ne_u32 vcc, 0, v48
    s_movk_i32 s56, 0xff00
    s_cbranch_vccnz L_gpoll
    L_gdone:
    """)
    for i in range(4): a(f"v_and_b32 v{124+i}, s56, v{124+i}")
    for i in range(4): a(f"v_and_b32 v{12+i}, s56, v{12+i}")
    a("v_pk_add_f32 v[124:125], v[124:125], v[12:13]")
    a("v_pk_add_f32 v[126:127], v[126:127], v[14:15]")
    for m in ("row_ror:4", "row_ror:8"):
        for i in range(4): dpp("v_add_f32", 124 + i, m)
    a("""
    v_cvt_pk_bf16_f32 v48, v124, v125
    v_cvt_pk_bf16_f32 v49, v126, v127
    v_lshlrev_b32 v124, 16, v48
    v_and_b32 v125, s62, v48
    v_lshlrev_b32 v126, 16, v49
    v_and_b32 v127, s62, v49
    """)
    for i in range(4): a(f"v_max_f32 v{48+i}, 0, v{124+i}")
    for i in range(4): a(f"v_mul_f32_dpp v{48+i}, v{124+i}, v{48+i} quad_perm:[2,3,0,1] {DPPM}")
    a("""
    v_cmp_eq_u32 s[44:45], 0, v1
    v_cmp_eq_u32 s[46:47], 1, v1
    v_cvt_pk_bf16_f32 v48, v48, v49
    v_cvt_pk_bf16_f32 v49, v50, v51
    v_cndmask_b32 v28, 0, v48, s[44:45]
    v_cndmask_b32 v29, 0, v49, s[44:45]
    v_cndmask_b32 v30, 0, v48, s[46:47]
    v_cndmask_b32 v31, 0, v49, s[46:47]
    s_waitcnt lgkmcnt(0)
    """)
    for q in range(4):
        a(f"v_mfma_f32_16x16x32_bf16 v[{32+4*q}:{35+4*q}], v[28:31], v[{80+4*q}:{83+4*q}], 0")
    SG = "global_load_dword v24, v110, s[28:29] @TF@"
    OG = """
    global_load_dwordx4 v[16:19], v109, s[28:29] @TF@
    global_load_dwordx4 v[20:23], v109, s[28:29] offset:2048 @TF@
    """
    for q in range(4):
        a(f"v_add_f32 v{32+4*q}, v{32+4*q}, v{33+4*q}")
    a("""
    v_mov_b32 v33, s35
    s_mov_b32 s44, 0x11111111
    s_mov_b32 s45, 0x11111111
    v_permlane32_swap_b32 v32, v36
    v_permlane32_swap_b32 v40, v44
    v_add_f32 v32, v32, v36
    v_add_f32 v40, v40, v44
    v_permlane16_swap_b32 v32, v40
    v_add_f32 v36, v32, v40
    s_barrier
    """)
    for u in range(nA, nB): rd(u)
    for u in range(nA, nB):
        a(f"s_waitcnt lgkmcnt({4*(nB-1-u)})")
        pvm(u)
    nW = nB // 2
    for i in range(8): a(f"v_mul_f32 v{AC+i}, v{AC+i}, v{AL}")
    for w_ in range(1, nW):
        for i in range(8): a(f"v_fmac_f32 v{AC+i}, v{AC+8*w_+i}, v{AL+w_}")
    a("s_cmp_eq_u32 s60, 0")
    a("s_barrier")
    stamp("BB", 8)
    for u in range(nB, 8): rd(u)
    a(SG)
    for u in range(nB, 8):
        a(f"s_waitcnt lgkmcnt({4*(7-u)})")
        pvm(u)
    a("s_mov_b64 exec, s[64:65]")
    for h in range(2):
        for w_ in range(nW, 4):
            for i in range(4 * h, 4 * h + 4): a(f"v_fmac_f32 v{AC+i}, v{AC+8*w_+i}, v{AL+w_}")
        for i in range(2 * h, 2 * h + 2):
            a(f"v_cvt_pk_bf16_f32 v{40+i}, v{AC+2*i}, v{AC+1+2*i}")
    a(f"""
    global_store_dwordx4 v251, v[40:43], s[28:29]
    s_mov_b64 exec, -1
    s_mov_b32 s57, 0
    s_cbranch_scc0 L_slow
    {'s_sleep ' + str(opt['ogsl']) if opt.get('ogsl') else ''}
    {OG if opt.get('ogpre') else ''}
    s_barrier
    L_fast2:
    """)
    stamp("BC", 10)
    if opt.get('cut'): a("s_endpgm")
    if not opt.get('ogpre'): a(OG)
    for ks in range(2):
        for q in range(4):
            for e in range(2):
                d = 48 + 16 * ks + 4 * q + 2 * e
                a(f"ds_read_b64_tr_b16 v[{d}:{d+1}], v{111+q} offset:{(2*ks+e)*1024}")
    a(f"""
    s_waitcnt vmcnt(3)
    L_schk:
    v_cmp_eq_u32 vcc, -1, v24
    v_max_f32_dpp v124, v24, v24 quad_perm:[1,0,3,2] {DPPM}
    s_cbranch_vccnz L_spoll
    L_sdone:
    """)
    dpp("v_max_f32", 124, "quad_perm:[2,3,0,1]")
    reduce_g(124, 125, "v_max_f32")
    a(f"""
    v_sub_f32 v8, v24, v124
    v_exp_f32 v8, v8
    v_add_f32_dpp v9, v8, v8 quad_perm:[1,0,3,2] {DPPM}
    """)
    dpp("v_add_f32", 9, "quad_perm:[2,3,0,1]")
    reduce_g(9, 125)
    a(f"""
    v_rcp_f32 v9, v9
    s_mov_b32 s57, 0
    v_mul_f32 v8, v8, v9
    v_mov_b32_dpp v10, v8 quad_perm:[0,0,0,0] {DPPM}
    v_mov_b32_dpp v11, v8 quad_perm:[1,1,1,1] {DPPM}
    v_mov_b32_dpp v12, v8 quad_perm:[2,2,2,2] {DPPM}
    v_mov_b32_dpp v13, v8 quad_perm:[3,3,3,3] {DPPM}
    s_branch L_ochk
    L_opoll:
    {OG}
    L_ochk:
    s_waitcnt vmcnt(0)
    v_max3_u32 v124, v16, v17, v18
    v_max3_u32 v125, v19, v20, v21
    v_max3_u32 v124, v124, v22, v23
    v_max_u32 v124, v124, v125
    v_cmp_eq_u32 vcc, -1, v124
    s_add_u32 s57, s57, 1
    s_mov_b64 exec, vcc
    s_cbranch_execz L_odone
    {'s_sleep ' + str(opt['oback']) if opt.get('oback') else ''}
    s_cmp_lt_u32 s57, {SPIN}
    s_cbranch_scc1 L_opoll
    L_odone:
    s_mov_b64 exec, -1
    s_waitcnt lgkmcnt(0)
    """)
    if stamps: a("s_mov_b32 s68, s57")
    stamp("o gathered", 11)
    def s2m(q):
        for ks in range(2):
            a(f"v_mfma_f32_16x16x32_bf16 v[{128+4*q}:{131+4*q}], v[{16+4*ks}:{19+4*ks}], v[{48+16*ks+4*q}:{51+16*ks+4*q}], {'0' if ks==0 else f'v[{128+4*q}:{131+4*q}]'}")
    def s2f(q):
        a(f"v_mul_f32 v{128+4*q}, v10, v{128+4*q}")
        for i in range(1, 4):
            a(f"v_fmac_f32 v{128+4*q}, v{10+i}, v{128+4*q+i}")
    for q in range(4): s2m(q)
    if opt.get('bd', 4) in (1, 5): a("s_barrier")
    s2f(0); s2f(1); s2f(2)
    a("v_permlane32_swap_b32 v128, v132")
    a("v_add_f32 v128, v128, v132")
    s2f(3)
    a("""
    v_permlane32_swap_b32 v136, v140
    v_add_f32 v136, v136, v140
    v_permlane16_swap_b32 v128, v136
    v_add_f32 v36, v36, v128
    v_add_f32 v36, v36, v136
    v_bfi_b32 v36, v121, v117, v36
    """)
    for i in range(1, 4):
        a(f"v_mov_b32_dpp v{36+i}, v36 quad_perm:[{i},{i},{i},{i}] {DPPM}")
    a(f"""
    s_mov_b64 exec, s[44:45]
    global_store_dwordx4 v115, v[36:39], s[30:31] {opt.get('ffs', 'sc1')}
    {'s_mov_b64 exec, -1' if stamps or opt.get('probe') else ''}
    """)
    stamp("final published")
    if opt.get('ewb'):
        a(f"""
        s_lshl_b32 s56, s5, 2
        s_add_u32 s56, s56, s3
        s_and_b32 s56, s56, {opt['ewb']}
        s_cmp_lg_u32 s56, 1
        s_cbranch_scc1 L_newb
        buffer_wbl2 sc1
        L_newb:
        """)
    if opt.get('bd', 4) == 3: a("s_barrier")
    if opt.get('bd', 4) in (4, 5):
        a("s_waitcnt vmcnt(0)")
        a("s_barrier")
    a("s_branch L_fin1" if stamps else ("s_branch L_end" if opt.get('probe') or opt.get('padto') else "s_endpgm"))
    a(f"""
    L_gpoll:
    s_add_u32 s57, s57, 1
    s_cmp_ge_u32 s57, {SPIN}
    s_cbranch_scc1 L_gdone
    s_cmp_eq_u32 s60, 0
    s_cbranch_scc1 L_gload
    buffer_inv sc1
    s_waitcnt vmcnt(0)
    L_gload:
    global_load_dwordx4 v[124:127], v108, s[28:29] offset:-2048 @LF@
    global_load_dwordx4 v[12:15], v108, s[28:29] offset:2048 @LF@
    s_waitcnt vmcnt(0)
    s_branch L_gcheck
    L_spoll:
    s_add_u32 s57, s57, 1
    s_cmp_ge_u32 s57, {SPIN}
    s_cbranch_scc1 L_sdone
    s_waitcnt vmcnt(0)
    {SG}
    {OG}
    s_waitcnt vmcnt(2)
    s_branch L_schk
    L_slow:
    s_waitcnt vmcnt(0)
    s_barrier
    s_cmp_lg_u32 s3, 0
    s_cbranch_scc1 L_slow2
    buffer_wbl2 sc1
    s_waitcnt vmcnt(0)
    v_add_u32 v34, {FL-ST}, v118
    s_mov_b64 exec, 1
    global_store_dword v34, v33, s[28:29] sc1
    s_mov_b64 exec, -1
    L_slow2:
    global_load_dword v34, v123, s[28:29] sc1
    s_waitcnt vmcnt(0)
    v_cmp_ne_u32 vcc, s35, v34
    s_add_u32 s57, s57, 1
    s_cbranch_vccz L_slow3
    s_cmp_lt_u32 s57, {SPIN}
    s_cbranch_scc1 L_slow2
    L_slow3:
    buffer_inv sc1
    s_waitcnt vmcnt(0)
    {SG}
    {OG if opt.get('ogpre') else ''}
    s_waitcnt vmcnt(0)
    s_mov_b32 s57, 0
    s_branch L_fast2
    """)
    a(f"""
    L_final:
    {'s_endpgm' if opt.get('cut') else ''}
    s_add_u32 s35, s35, {EINC}
    s_mov_b32 s58, 0x0c0c0400
    s_mov_b32 s59, 0x04000c0c
    s_mov_b32 s57, 0
    v_lshlrev_b32 v28, 16, v119
    v_mov_b32 v33, s35
    s_movk_i32 s56, 0xff00
    v_not_b32 v16, v33
    s_barrier
    {'s_barrier' if opt.get('bd', 4) == 5 else ''}
    {'s_memrealtime s[74:75]' if stamps else ''}
    {'s_memrealtime s[76:77]' if stamps else ''}
    {'s_sleep ' + str(opt['fwait']) if opt.get('fwait') else ''}
    {'global_load_dwordx4 v[16:19], v116, s[28:29] sc1' if opt.get('fdepth') else ''}
    {'s_waitcnt vmcnt(0)' if opt.get('fdepth') else ''}
    {'s_branch L_fchk' if opt.get('fdepth') else ''}
    L_fpoll:
    global_load_dwordx4 v[16:19], v116, s[28:29] {opt.get('ffl', 'sc1')}
    s_waitcnt vmcnt({opt.get('fdepth', 0)})
    {'s_sleep ' + str(opt['fsleep']) if opt.get('fsleep') else ''}
    L_fchk:
    v_perm_b32 v24, v17, v16, s58
    v_perm_b32 v25, v19, v18, s59
    v_or_b32 v24, v24, v25
    v_cmp_ne_u32 vcc, s35, v24
    s_add_u32 s57, s57, 1
    s_mov_b64 exec, vcc
    s_cbranch_execz L_fdone
    {'s_sleep ' + str(opt['fback']) if opt.get('fback') else ''}
    s_cmp_lt_u32 s57, {SPIN*8}
    s_cbranch_scc1 L_fpoll
    L_fdone:
    s_mov_b64 exec, -1
    """)
    if opt.get('fdepth'):
        a("""
        s_waitcnt vmcnt(0)
        v_perm_b32 v24, v17, v16, s58
        v_perm_b32 v25, v19, v18, s59
        v_or_b32 v24, v24, v25
        v_cmp_ne_u32 vcc, s35, v24
        """)
        a(f"s_cmp_lt_u32 s57, {SPIN*8}")
        a("s_cselect_b64 vcc, vcc, 0")
        a("s_cbranch_vccnz L_fchk")
    if stamps: a("s_mov_b32 s67, s57")
    if not stamps: stamp("fdone")
    for i in range(4): a(f"v_and_b32 v{16+i}, s56, v{16+i}")
    a("""
    v_permlane32_swap_b32 v16, v17
    v_permlane32_swap_b32 v18, v19
    v_add_f32 v16, v16, v17
    v_add_f32 v18, v18, v19
    s_mov_b32 s44, 0x00010001
    s_mov_b32 s45, 0x00010001
    v_permlane16_swap_b32 v16, v18
    v_add_f32 v16, v16, v18
    """)
    for m in ("quad_perm:[1,0,3,2]", "quad_perm:[2,3,0,1]", "row_ror:4", "row_ror:8"):
        dpp("v_add_f32", 16, m)
    if opt.get('pack'):
        PACK = f"""
        v_mov_b32 v17, v16
        v_permlane32_swap_b32 v16, v17
        v_cvt_pk_bf16_f32 v16, v16, v17
        v_mov_b32 v17, v16
        v_permlane16_swap_b32 v16, v17
        s_mov_b64 exec, 1
        global_store_dwordx2 v120, v[16:17], s[26:27] {opt.get('outf', '')}
        """
    else:
        PACK = f"""
        v_cvt_pk_bf16_f32 v16, v16, v16
        s_mov_b64 exec, s[44:45]
        global_store_short v120, v16, s[26:27] {opt.get('outf', '')}
        """
    a(f"""
    v_add_f32 v16, v16, v28
    {PACK}
    s_cmp_lg_u32 s2, 0
    """)
    a(f"s_cbranch_scc1 {'L_fin0' if stamps else 'L_end'}")
    a("""
    s_mov_b64 exec, 1
    v_mov_b32 v19, 0
    global_store_dword v19, v33, s[30:31]
    """)
    if stamps:
        a("s_branch L_fin0")
        a("L_fin1:")
        a("s_waitcnt vmcnt(0)")
        a("L_fin0:")
        a("s_mov_b64 exec, -1")
        stamp("out stored")
        a("L_fin:")
        a("s_getreg_b32 s66, hwreg(HW_REG_XCC_ID)")
        a("v_mov_b32 v32, s70")
        for i in range(14):
            a(f"v_mov_b32 v{33+i}, s{72+2*i}")
        a("v_mov_b32 v47, s66")
        a("v_mov_b32 v48, s69")
        a("v_mov_b32 v49, s68")
        a("v_mov_b32 v50, s67")
        a("v_mov_b32 v51, s100")
        a(f"""
        s_lshl_b32 s58, s2, 10
        s_lshl_b32 s59, s3, 7
        s_add_u32 s58, s58, s59
        s_add_u32 s58, s58, {STAMP}
        v_mov_b32 v3, s58
        s_mov_b64 exec, 1
        """)
        for j in range(5):
            a(f"global_store_dwordx4 v3, v[{32+4*j}:{35+4*j}], s[30:31] offset:{16*j}")
    a("L_end:")
    if opt.get('tailpad'):
        a(f"""
        s_getreg_b32 s76, hwreg(HW_REG_XCC_ID)
        s_and_b32 s76, s76, 7
        s_cmp_lg_u32 s76, {opt.get('tpx', 's76')}
        s_cbranch_scc1 L_tpd
        s_memrealtime s[74:75]
        L_tp:
        s_memrealtime s[72:73]
        s_waitcnt lgkmcnt(0)
        s_sub_u32 s72, s72, s74
        s_cmp_lt_u32 s72, {opt['tailpad']}
        s_cbranch_scc1 L_tp
        L_tpd:
        """)
    if opt.get('probe'):
        a(f"""
        s_cmp_eq_u32 s74, 0
        s_cbranch_scc1 L_padd
        s_cmp_ge_u32 s3, {opt.get('probew', 8)}
        s_cbranch_scc1 L_padd
        s_cmp_lt_u32 s3, {opt.get('probel', 0)}
        s_cbranch_scc1 L_padd
        s_sub_u32 s74, s74, s76
        {'s_sub_u32 s74, 1200, s74' if opt.get('pinv') else ''}
        s_lshl_b32 s74, s74, 3
        s_min_u32 s74, s74, 20000
        s_add_u32 s74, s74, 1200
        L_pad:
        s_memrealtime s[72:73]
        s_waitcnt lgkmcnt(0)
        s_sub_u32 s72, s72, s70
        s_cmp_lt_u32 s72, s74
        s_cbranch_scc1 L_pad
        L_padd:
        """)
    if opt.get('padto'):
        a(f"""
        L_pad:
        s_memrealtime s[72:73]
        s_waitcnt lgkmcnt(0)
        s_sub_u32 s72, s72, s70
        s_cmp_lt_u32 s72, {opt['padto']}
        s_cbranch_scc1 L_pad
        """)
    a("s_endpgm")
    a.raw('.section .rodata,"a"')
    a.raw(".p2align 6")
    a.raw(f".amdhsa_kernel {NAME}_kernel")
    a.raw("  .amdhsa_next_free_vgpr 256")
    a.raw("  .amdhsa_next_free_sgpr 102")
    a.raw("  .amdhsa_accum_offset 256")
    a.raw("  .amdhsa_group_segment_fixed_size 0")
    a.raw("  .amdhsa_kernarg_size 96")
    a.raw("  .amdhsa_user_sgpr_count 2")
    a.raw("  .amdhsa_user_sgpr_kernarg_segment_ptr 1")
    a.raw("  .amdhsa_system_sgpr_workgroup_id_x 1")
    a.raw("  .amdhsa_float_denorm_mode_32 3")
    a.raw(".end_amdhsa_kernel")
    return a.text().replace('@LF@', LF).replace('@L1@', L1F).replace('@TF@', opt.get('tf', 'sc1'))

def parse_opt(s):
    opt = {}
    for kv in s.split(","):
        if kv:
            k, _, v = kv.partition("=")
            opt[k] = (int(v) if v.lstrip('-').isdigit() else v.replace('+', ' ')) if v else 1
    return opt

if __name__ == "__main__":
    ap = argparse.ArgumentParser()
    ap.add_argument("-o", default="k.s")
    ap.add_argument("--stamps", action="store_true")
    ap.add_argument("--opt", default="")
    args = ap.parse_args()
    open(args.o, "w").write(gen(args.stamps, parse_opt(args.opt)))
```

```python
import sys, argparse
from asmgen import Asm
NAME = "parallel_sum__sliding_block_cached__glu_gated_reglu__decode"

EX = 0x40000
QP = 0x0; GP = 0x8000; OP = 0x10000; FP = 0x20000; ST = 0x28000; FL = 0x29000
STAMP = 0x1000000
LW = 131072
def R(j): return LW + 8192 * j + 6144
MLB = R(2); PB = R(3); MODEB = 512
SPIN0 = 40000
LOG2E = 0x3fb8aa3b
SCALE = 0x3db504f3
DPPM = "row_mask:0xf bank_mask:0xf"
EINC = 0x08010101

HEADER = open("cdna_kernels/%s.s.ref" % NAME).read().split("; Override launch")[0]

def gen(stamps=False, opt=None):
    opt = opt or {}
    a0 = Asm()
    class W:
        raw = a0.raw; comment = a0.comment; text = a0.text
        def __call__(self, t): a0(t.replace('@PUB@', '; ' if opt.get('nopub') else ''))
    a = W()
    SPIN = opt.get('spin', SPIN0)
    rotmul = opt.get('rotmul', 37)
    kpre = opt.get('kpre', 4)
    vpre = opt.get('vpre', 8)
    NFAST = opt.get('nfast', 12)
    thr = opt.get('thr', 6)
    LF = opt.get('lf', 'sc1 nt')
    L1F = opt.get('l1f', 'sc1 nt').replace('none', '')
    thr2 = opt.get('thr2', 8); OT = opt.get('otouch', 1); OTF = opt.get('otf', 'sc1 nt'); vthr = opt.get('vthr', 4)
    TOUCH = opt.get('touch', 0)
    nst = [0]
    par = opt.get('par', 0)
    npar = [0]
    def TW(t):
        if not par: return f"s_waitcnt vmcnt({t-1})"
        npar[0] += 1
        return f"""s_waitcnt vmcnt({t-1})
        s_cbranch_vccnz L_par{npar[0]}
        s_waitcnt vmcnt({t-1-par})
        L_par{npar[0]}:"""
    def stamp(name, i=None):
        if opt.get('probe') == name.replace(' ', '_'):
            a("s_memrealtime s[74:75]")
            a("s_waitcnt lgkmcnt(0)")
        if opt.get('probe0') == name.replace(' ', '_'):
            a("s_memrealtime s[76:77]")
            a("s_waitcnt lgkmcnt(0)")
        if not stamps: return
        if i is not None: nst[0] = i
        i = nst[0]; nst[0] += 1
        assert i < 14
        a(f"s_memrealtime s[{72+2*i}:{73+2*i}]")
        a("s_waitcnt lgkmcnt(0)")
    def dpp(op, v, m): a(f"{op}_dpp v{v}, v{v}, v{v} {m} {DPPM}")
    def reduce_g(v, t, op="v_add_f32"):
        a(f"v_mov_b32 v{t}, v{v}")
        a(f"v_permlane16_swap_b32 v{v}, v{t}")
        a(f"{op} v{v}, v{v}, v{t}")
        a(f"v_mov_b32 v{t}, v{v}")
        a(f"v_permlane32_swap_b32 v{v}, v{t}")
        a(f"{op} v{v}, v{v}, v{t}")
    def reduce5(v, t, op="v_add_f32"):
        dpp(op, v, "quad_perm:[2,3,0,1]"); dpp(op, v, "row_ror:4"); dpp(op, v, "row_ror:8")
        reduce_g(v, t, op)
    def reduce4(v, t, op="v_add_f32"):
        dpp(op, v, "row_ror:4"); dpp(op, v, "row_ror:8")
        reduce_g(v, t, op)

    a.raw(HEADER.rstrip())
    a.raw("; @launch grid=(256,1,1) block=(512,1,1) lds=163840")
    a.raw('.amdgcn_target "amdgcn-amd-amdhsa--gfx950"')
    a.raw(".text")
    a.raw(f".globl {NAME}_kernel")
    a.raw(".p2align 12")
    a.raw(".p2align 8")
    a.raw(f".type {NAME}_kernel,@function")
    a.raw(f"{NAME}_kernel:")
    if stamps or opt.get('padto'): a("s_memrealtime s[70:71]")
    if opt.get('probe'): a("s_mov_b32 s74, 0")
    if opt.get('probe'): a("s_mov_b32 s3, 99")
    if opt.get('probe'): a("s_memrealtime s[70:71]")
    if opt.get('probe') and not opt.get('probe0'): a("s_memrealtime s[76:77]")
    a(f"""
    s_cmp_ge_u32 s2, 256
    s_cbranch_scc1 L_end
    s_load_dwordx16 s[8:23], s[0:1], 0
    s_load_dwordx8 s[24:31], s[0:1], 64
    v_lshrrev_b32 v3, 6, v0
    v_and_b32 v0, 63, v0
    v_readfirstlane_b32 s3, v3
    s_getpc_b64 s[56:57]
    s_lshr_b32 s5, s2, 3
    """)
    if not opt.get('nopf'):
        a(f"""
        s_and_b32 s58, s5, 15
        s_lshl_b32 s58, s58, 3
        s_add_u32 s58, s58, s3
        s_lshl_b32 s58, s58, 6
        s_min_u32 s58, s58, L_end-{NAME}_kernel-64
        s_load_dword s39, s[56:57], s58
        """)
    a(f"""
    v_and_b32 v1, 15, v0
    v_lshrrev_b32 v2, 4, v0
    s_and_b32 s4, s2, 7
    s_lshr_b32 s6, s5, 4
    s_and_b32 s7, s5, 15
    {'s_and_b32 s32, s5, 7' if opt.get('map2') else 's_lshr_b32 s32, s5, 2'}
    {'s_lshr_b32 s33, s5, 3' if opt.get('map2') else 's_and_b32 s33, s5, 3'}
    s_lshl_b32 s34, s4, 3
    s_add_u32 s34, s34, s32
    s_lshl_b32 s66, s4, 18
    s_add_u32 s66, s66, {EX}
    v_lshrrev_b32 v6, 3, v0
    v_and_b32 v7, 1, v2
    v_lshlrev_b32 v7, 1, v7
    v_and_b32 v8, 7, v0
    v_xor_b32 v7, v7, v8
    v_lshlrev_b32 v7, 4, v7
    v_lshl_add_u32 v28, v6, 13, v7
    v_xor_b32 v29, 64, v28
    s_and_b32 s46, s32, 1
    s_lshl_b32 s57, s33, 1
    s_add_u32 s46, s46, s57
    s_lshl_b32 s57, s46, 19
    s_and_b32 s58, s3, 3
    s_lshl_b32 s58, s58, 17
    s_add_u32 s57, s57, s58
    s_and_b32 s58, s34, 0xfe
    s_lshr_b32 s60, s3, 2
    s_add_u32 s58, s58, s60
    s_lshl_b32 s58, s58, 7
    s_add_u32 s57, s57, s58
    s_add_u32 s58, s57, 0x10000
    s_lshl_b32 s60, s3, 11
    s_add_u32 s60, s60, {LW}
    s_mov_b32 s50, 0x400000
    s_mov_b32 s51, 0x20000
    s_cmp_ge_u32 s3, 4
    s_cbranch_scc1 L_loader
    """)
    WQ = """
    s_add_u32 s28, s30, s66
    s_addc_u32 s29, s31, 0
    s_mov_b32 s48, s14
    s_mov_b32 s49, s15
    s_mov_b32 m0, s60
    s_add_u32 s60, s60, 1024
    buffer_load_dwordx4 v28, s[48:51], s57 offen nt lds
    s_mov_b32 m0, s60
    s_nop 0
    buffer_load_dwordx4 v29, s[48:51], s58 offen nt lds
    """
    XL = opt.get('xlate', 1)
    XL_ = """
    global_load_dwordx4 v[8:11], v4, s[8:9]
    global_load_dwordx4 v[12:15], v4, s[8:9] offset:16
    global_load_dwordx4 v[16:19], v5, s[8:9]
    """
    FF = """
    ; unit = ((7k+1)>>1) + (rl>>1) ; f = 2*unit + (rl&1) ; valid iff (rl>>1) < 4-(k&1)
    s_mul_i32 s63, s4, 7
    s_add_u32 s63, s63, 1
    s_and_b32 s63, s63, 0xfe
    s_add_u32 s63, s63, s32
    s_lshr_b32 s59, s32, 1
    s_and_b32 s62, s4, 1
    s_add_u32 s59, s59, s62
    s_cmp_lt_u32 s59, 4
    s_cselect_b32 s54, 0x1c0000, 0
    s_lshl_b32 s61, s3, 13
    s_add_u32 s61, s61, %d
    """ % (LW + 8192)
    a(f"""
    v_and_b32 v3, 1, v0
    v_lshlrev_b32 v3, 10, v3
    v_lshrrev_b32 v4, 1, v0
    v_lshl_add_u32 v4, v4, 5, v3
    v_lshrrev_b32 v5, 3, v1
    v_lshl_add_u32 v5, v5, 6, v3
    v_lshl_add_u32 v5, v2, 4, v5
    s_lshl_b32 s61, s46, 7
    v_add_u32 v5, s61, v5
    s_lshl_b32 s59, s7, 7
    s_lshl_b32 s62, s6, 15
    s_add_u32 s62, s62, {OP}
    s_lshl_b32 s64, s6, 11
    s_add_u32 s64, s64, {ST}
    s_cmp_eq_u32 s3, 0
    s_cselect_b32 s62, s62, s64
    s_cselect_b32 s64, 60, 0
    s_add_u32 s62, s62, s59
    v_and_b32 v20, s64, v0
    v_lshlrev_b32 v20, 9, v20
    v_and_b32 v21, 3, v0
    v_lshlrev_b32 v21, 4, v21
    v_add3_u32 v144, s62, v20, v21
    v_mov_b32 v24, -1
    v_mov_b32 v25, -1
    v_mov_b32 v26, -1
    v_mov_b32 v27, -1
    s_waitcnt lgkmcnt(0)
    {'s_memrealtime s[74:75]' if opt.get('probe') == 'karg' else ''}
    {'s_memrealtime s[100:101]' if stamps else ''}
    {'s_cmp_lt_u32 s3, 2' if XL else ''}
    {'s_cbranch_scc0 L_nox' if XL else ''}
    {XL_}
    {'L_nox:' if XL else ''}
    {WQ}
    s_load_dword s35, s[30:31], 0
    s_cmp_lt_u32 s3, 2
    s_cbranch_scc1 L_sx0
    s_barrier
    {FF}
    v_mul_u32_u24 v30, 3584, v6
    v_add_u32 v31, v30, v7
    v_xor_b32 v7, 64, v7
    v_add_u32 v30, v30, v7
    s_mul_i32 s56, s46, {64*3584}
    s_lshr_b32 s59, s63, 1
    s_lshl_b32 s59, s59, 7
    s_add_u32 s56, s56, s59
    s_mov_b32 s42, s54
    s_mov_b32 s43, 0x20000
    s_cmp_eq_u32 s3, 2
    s_cselect_b32 s40, s20, s22
    s_cselect_b32 s41, s21, s23
    s_sub_u32 s60, s61, 8192
    {XL_ if XL == 1 else ''}
    L_tloop:
    s_mov_b32 m0, s60
    s_add_u32 s60, s60, 1024
    buffer_load_dwordx4 v31, s[40:43], s56 offen nt lds
    s_add_u32 s56, s56, {8*3584}
    s_mov_b32 m0, s60
    s_add_u32 s60, s60, 1024
    buffer_load_dwordx4 v30, s[40:43], s56 offen nt lds
    s_add_u32 s56, s56, {8*3584}
    s_cmp_lt_u32 s60, s61
    s_cbranch_scc1 L_tloop
    {XL_ if XL == 2 else ''}
    s_waitcnt vmcnt({11 if XL else 8})
    s_barrier
    s_branch L_service
    L_sx0:
    global_store_dwordx4 v144, v[24:27], s[28:29]
    s_barrier
    {FF}
    s_branch L_service
    """)
    a("L_loader:")
    TLB = """
    s_lshl_b32 s37, s34, 16
    s_load_dword s38, s[12:13], s36
    s_load_dword s38, s[16:17], s37
    s_load_dword s38, s[24:25], 0
    s_load_dword s38, s[26:27], 0
    s_load_dword s38, s[10:11], s36
    s_load_dword s38, s[20:21], 0
    s_load_dword s38, s[22:23], 0
    """ if opt.get('tlb') else ""
    FTCH = f"""
    s_and_b32 s62, s7, 7
    s_lshl_b32 s62, s62, 3
    s_lshl_b32 s63, s56, 1
    s_add_u32 s62, s62, s63
    s_lshl_b64 exec, 3, s62
    global_load_dword v20, v116, s[28:29] {opt.get('ftf', 'sc1 nt')}
    s_mov_b64 exec, -1
    """
    a(f"""
    s_sub_u32 s56, s3, 4
    s_lshl_b32 s36, s56, 2
    v_add_u32 v3, s36, v2
    v_xor_b32 v4, v3, v1
    v_lshlrev_b32 v4, 4, v4
    v_lshl_add_u32 v4, v2, 8, v4
    v_and_b32 v5, 7, v3
    v_lshlrev_b32 v5, 1, v5
    v_xor_b32 v5, v5, v1
    v_lshlrev_b32 v5, 4, v5
    v_lshl_add_u32 v3, v3, 10, v5
    v_lshl_add_u32 v5, v2, 8, v5
    s_lshl_b32 s36, s6, 3
    s_add_u32 s36, s36, s4
    s_lshl_b32 s36, s36, 23
    s_lshl_b32 s59, s7, 16
    s_add_u32 s36, s36, s59
    s_add_u32 s36, s36, 0x700000
    s_mul_i32 s59, s2, {rotmul}
    s_add_u32 s59, s59, s56
    s_and_b32 s59, s59, 63
    s_lshl_b32 s59, s59, 10
    s_mov_b32 s42, 0x10000
    s_mov_b32 s43, 0x20000
    s_mov_b32 s46, 0x10000
    s_mov_b32 s47, 0x20000
    s_waitcnt lgkmcnt(0)
    {WQ}
    s_add_u32 s40, s10, s36
    s_addc_u32 s41, s11, 0
    s_lshl_b32 s60, s56, 10
    {TLB}
    s_barrier
    L_kloop0:
    s_mov_b32 m0, s60
    s_add_u32 s60, s60, 4096
    buffer_load_dwordx4 v4, s[40:43], s59 offen nt lds
    s_add_u32 s59, s59, 4096
    s_and_b32 s59, s59, 0xffff
    s_cmp_lt_u32 s60, {4096*kpre}
    s_cbranch_scc1 L_kloop0
    s_add_u32 s44, s12, s36
    s_addc_u32 s45, s13, 0
    s_mov_b32 s48, s16
    s_mov_b32 s49, s17
    s_lshl_b32 s57, s33, 8
    s_lshl_b32 s61, s34, 16
    s_add_u32 s61, s61, s57
    s_load_dword s35, s[30:31], 0
    s_getreg_b32 s57, hwreg(HW_REG_XCC_ID)
    s_bitcmp1_b32 s57, 0
    s_cselect_b64 vcc, -1, 0
    s_lshl_b32 s57, s6, 14
    s_lshl_b32 s58, s7, 4
    s_add_u32 s57, s57, s58
    s_add_u32 s57, s57, {FP}
    v_lshlrev_b32 v116, 8, v0
    v_add_u32 v116, s57, v116
    v_lshrrev_b32 v120, 1, v2
    v_and_b32 v6, 1, v2
    v_lshl_add_u32 v120, v6, 1, v120
    s_lshl_b32 s57, s4, 5
    s_add_u32 s57, s57, s5
    s_lshl_b32 s57, s57, 3
    v_lshl_add_u32 v120, v120, 1, s57
    s_waitcnt vmcnt({kpre})
    s_barrier
    global_load_ushort v119, v120, s[8:9]
    {FTCH if opt.get('ftch') == 1 else ''}
    {'global_load_ushort v118, v120, s[26:27] ' + opt['otch'].replace('plain', '') if opt.get('otch') else ''}
    L_kloop:
    {TW(thr)}
    s_mov_b32 m0, s60
    s_add_u32 s60, s60, 4096
    buffer_load_dwordx4 v4, s[40:43], s59 offen nt lds
    s_add_u32 s59, s59, 4096
    s_and_b32 s59, s59, 0xffff
    s_cmp_lt_u32 s60, 65536
    s_cbranch_scc1 L_kloop
    L_vloop:
    {TW(thr)}
    s_mov_b32 m0, s60
    s_add_u32 s60, s60, 4096
    buffer_load_dwordx4 v5, s[44:47], s59 offen nt lds
    s_add_u32 s59, s59, 4096
    s_and_b32 s59, s59, 0xffff
    s_cmp_lt_u32 s60, {65536 + 4096*min(vthr, vpre)}
    s_cbranch_scc1 L_vloop
    """)
    if vthr < vpre:
        a(f"""
    L_vloop1:
    {TW(thr2)}
    s_mov_b32 m0, s60
    s_add_u32 s60, s60, 4096
    buffer_load_dwordx4 v5, s[44:47], s59 offen nt lds
    s_add_u32 s59, s59, 4096
    s_and_b32 s59, s59, 0xffff
    s_cmp_lt_u32 s60, {65536 + 4096*vpre}
    s_cbranch_scc1 L_vloop1
    """)
    stamp("L pre issue", 0)
    a(f"s_waitcnt vmcnt({vpre}) lgkmcnt(0)")
    stamp("L K landed")
    a("s_barrier")
    stamp("B1", 5)
    tp = opt.get('tp', 14)
    if opt.get('ftch') == 2: a(FTCH)
    nA = opt.get('nA', (tp - thr2) // 2)
    nB = opt.get('nB', (20 - thr2) // 2)
    def vloop(lbl, end):
        a(f"""
        {lbl}:
        {TW(thr2)}
        s_mov_b32 m0, s60
        s_add_u32 s60, s60, 4096
        buffer_load_dwordx4 v5, s[44:47], s59 offen nt lds
        s_add_u32 s59, s59, 4096
        s_and_b32 s59, s59, 0xffff
        s_cmp_lt_u32 s60, {65536 + 4096*end}
        s_cbranch_scc1 {lbl}
        """)
    vloop("L_vloop2", tp)
    a(f"s_waitcnt vmcnt({tp - 2*nA})")
    stamp("L at Bp", 2)
    a("s_barrier")
    stamp("Bp", 7)
    if tp < 16: vloop("L_vloop3", 16)
    a(f"""
    s_lshl_b32 s60, s56, 13
    s_add_u32 s60, s60, {LW}
    """)
    for t in range(4):
        a(f"""
        s_add_u32 m0, s60, {t*1024}
        {TW(thr2)}
        buffer_load_dwordx4 v3, s[48:51], s61 offen nt lds
        s_add_u32 s61, s61, 16384
        """)
    a(f"s_waitcnt vmcnt({20 - 2*nB})")
    stamp("L at Bq", 3)
    a("s_barrier")
    a("s_waitcnt vmcnt(4)")
    stamp("L V landed", 4)
    a("s_barrier")
    stamp("BB", 8)
    a("s_waitcnt vmcnt(0)")
    stamp("L wo landed", 9)
    a("s_barrier")
    a("s_cmp_eq_u32 s3, 4")
    a("s_cbranch_scc1 L_final")
    a("s_branch L_fin" if stamps else ("s_branch L_end" if opt.get('probe') else "s_endpgm"))

    a("L_service:")
    a(f"""
    s_lshl_b32 s59, s7, 7
    s_mov_b32 s62, 0xffff0000
    s_mov_b32 s64, 0x000f000f
    s_mov_b32 s65, 0x000f000f
    v_and_b32 v4, 3, v1
    v_lshrrev_b32 v5, 2, v1
    v_and_b32 v6, 1, v2
    s_lshl_b32 s57, s3, 2
    v_add_u32 v95, s57, v2
    v_and_b32 v7, 7, v95
    v_lshlrev_b32 v7, 1, v7
    v_xor_b32 v7, v7, v1
    v_lshlrev_b32 v7, 4, v7
    v_lshl_add_u32 v95, v95, 10, v7
    s_lshl_b32 s50, s63, 15
    s_lshl_b32 s57, s33, 8
    s_add_u32 s50, s50, s57
    s_mov_b32 s52, s24
    s_mov_b32 s53, s25
    s_mov_b32 s55, 0x20000
    v_lshrrev_b32 v96, 3, v1
    v_lshl_add_u32 v96, v6, 1, v96
    v_lshlrev_b32 v96, 5, v96
    v_lshl_add_u32 v96, v5, 7, v96
    v_lshl_add_u32 v96, v2, 10, v96
    v_lshl_add_u32 v96, v4, 3, v96
    s_sub_u32 s60, s61, 8192
    v_add_u32 v96, s60, v96
    v_xor_b32 v97, 32, v96
    v_xor_b32 v92, 64, v96
    v_xor_b32 v93, 0x60, v96
    s_cmp_lt_u32 s3, 2
    s_cselect_b32 s57, 14, 8
    v_and_b32 v98, 1, v1
    v_lshlrev_b32 v98, s57, v98
    v_lshrrev_b32 v7, 1, v1
    v_lshl_add_u32 v98, v7, 6, v98
    v_lshl_add_u32 v98, v2, 4, v98
    s_lshr_b32 s56, s32, 1
    s_lshl_b32 s57, s56, 9
    s_lshl_b32 s58, s3, 8
    s_add_u32 s57, s57, s58
    s_lshl_b32 s58, s46, 11
    s_add_u32 s57, s57, s58
    s_add_u32 s57, s57, {QP}
    s_lshl_b32 s63, s56, 13
    s_add_u32 s63, s63, {GP}
    s_lshl_b32 s58, s46, 10
    s_add_u32 s58, s58, s63
    s_lshl_b32 s56, s3, 9
    s_add_u32 s58, s58, s56
    s_sub_u32 s58, s58, 1024
    s_and_b32 s56, s32, 1
    s_lshl_b32 s56, s56, 7
    s_add_u32 s63, s63, s56
    s_cmp_lt_u32 s3, 2
    s_cselect_b32 s57, s57, s58
    v_add_u32 v98, s57, v98
    v_cmp_eq_u32 s[44:45], 1, v7
    v_cmp_eq_u32 s[46:47], 2, v7
    v_cmp_eq_u32 s[48:49], 3, v7
    s_lshl_b32 s57, s6, 14
    s_lshl_b32 s58, s3, 10
    s_add_u32 s57, s57, s58
    s_add_u32 s57, s57, {QP+4096}
    v_lshlrev_b32 v99, 4, v0
    v_add_u32 v99, s57, v99
    v_add_u32 v94, 0x2000, v99
    s_add_u32 s60, s60, 6144
    v_lshlrev_b32 v100, 3, v0
    v_add_u32 v100, s60, v100
    s_lshl_b32 s58, s6, 11
    s_add_u32 s58, s58, s59
    s_add_u32 s58, s58, {ST}
    v_lshlrev_b32 v118, 2, v0
    v_add_u32 v118, s58, v118
    v_mov_b32 v121, 0xff
    s_getreg_b32 s68, hwreg(HW_REG_XCC_ID)
    s_and_b32 s68, s68, 7
    s_cmp_lt_u32 s3, 2
    s_cbranch_scc1 L_ln0
    s_waitcnt vmcnt({0 if XL == 2 else 8})
    s_branch L_ln
    L_ln0:
    s_waitcnt vmcnt(3)
    L_ln:
    """)
    stamp("S x landed", 0)
    for i in range(8):
        a(f"v_lshlrev_b32 v{32+2*i}, 16, v{8+i}")
        a(f"v_and_b32 v{33+2*i}, s62, v{8+i}")
    for i in range(4):
        a(f"v_pk_add_f32 v[{48+2*i}:{49+2*i}], v[{32+4*i}:{33+4*i}], v[{34+4*i}:{35+4*i}]")
    a("v_pk_add_f32 v[48:49], v[48:49], v[50:51]")
    a("v_pk_add_f32 v[52:53], v[52:53], v[54:55]")
    a("v_pk_add_f32 v[48:49], v[48:49], v[52:53]")
    a("v_add_f32 v48, v48, v49")
    reduce5(48, 49)
    a("v_mul_f32 v48, 0xbb000000, v48")
    a("v_mov_b32 v49, v48")
    for i in range(8):
        a(f"v_pk_add_f32 v[{32+2*i}:{33+2*i}], v[{32+2*i}:{33+2*i}], v[48:49]")
    a("v_pk_mul_f32 v[50:51], v[32:33], v[32:33]")
    a("v_pk_mul_f32 v[52:53], v[34:35], v[34:35]")
    for i in range(2, 8):
        d = 50 + 2 * (i & 1)
        a(f"v_pk_fma_f32 v[{d}:{d+1}], v[{32+2*i}:{33+2*i}], v[{32+2*i}:{33+2*i}], v[{d}:{d+1}]")
    a("v_pk_add_f32 v[50:51], v[50:51], v[52:53]")
    a("v_add_f32 v50, v50, v51")
    a("""
    v_cvt_pk_bf16_f32 v48, v48, v48
    v_and_b32 v48, s62, v48
    v_mov_b32 v49, v48
    """)
    dpp("v_add_f32", 50, "quad_perm:[2,3,0,1]")
    fr = []
    for i in range(4):
        fr.append(f"v_lshlrev_b32 v{32+2*i}, 16, v{16+i}")
        fr.append(f"v_and_b32 v{33+2*i}, s62, v{16+i}")
    for i in range(4):
        fr.append(f"v_pk_add_f32 v[{32+2*i}:{33+2*i}], v[{32+2*i}:{33+2*i}], v[48:49]")
    for i in range(4):
        fr.append(f"v_cvt_pk_bf16_f32 v{16+i}, v{32+2*i}, v{33+2*i}")
    for i in range(4):
        fr.append(f"v_lshlrev_b32 v{32+2*i}, 16, v{16+i}")
        fr.append(f"v_and_b32 v{33+2*i}, s62, v{16+i}")
    ch = [f"v_add_f32_dpp v50, v50, v50 row_ror:4 {DPPM}", None, None,
          f"v_add_f32_dpp v50, v50, v50 row_ror:8 {DPPM}", "v_mov_b32 v51, v50", None, None,
          "v_permlane16_swap_b32 v50, v51", "v_add_f32 v50, v50, v51", "v_mov_b32 v51, v50", None, None,
          "v_permlane32_swap_b32 v50, v51", "v_add_f32 v50, v50, v51",
          "v_mul_f32 v50, 0x3b000000, v50", "v_cvt_pk_bf16_f32 v50, v50, v50", "v_and_b32 v50, s62, v50",
          "v_add_f32 v50, 0x3727c5ac, v50", "v_cvt_pk_bf16_f32 v50, v50, v50", "v_and_b32 v50, s62, v50",
          "v_sqrt_f32 v50, v50", None, "v_cvt_pk_bf16_f32 v50, v50, v50", "v_and_b32 v50, s62, v50",
          "v_rcp_f32 v50, v50", None]
    for c in ch:
        a(c if c else fr.pop(0))
    a("v_mov_b32 v51, v50")
    for x in fr: a(x)
    for i in range(4):
        a(f"v_pk_mul_f32 v[{32+2*i}:{33+2*i}], v[{32+2*i}:{33+2*i}], v[50:51]")
    for i in range(4):
        a(f"v_cvt_pk_bf16_f32 v{16+i}, v{32+2*i}, v{33+2*i}")
    for i in range(4):
        a(f"v_mov_b32_dpp v{20+i}, v{16+i} row_ror:8 {DPPM}")
    a(f"""
    s_waitcnt lgkmcnt(0)
    s_add_u32 s35, s35, {EINC}
    s_lshr_b32 s36, s35, 8
    s_lshr_b32 s37, s35, 16
    s_lshr_b32 s38, s35, 24
    s_and_b32 s38, s38, 0xf8
    s_or_b32 s38, s38, s68
    s_and_b32 s39, s35, 0x00ffffff
    s_lshl_b32 s57, s38, 24
    s_or_b32 s39, s39, s57
    """)
    stamp("S LN done")
    a(f"""
    s_cmp_lt_u32 s3, 2
    s_waitcnt vmcnt(0)
    s_cbranch_scc0 L_w3
    s_barrier
    L_w3:
    """)
    stamp("S tile landed")
    TA = [96, 97, 92, 93]
    for aa in range(4):
        for ss in range(2):
            for e in range(2):
                d = 48 + 8 * aa + 4 * ss + 2 * e
                a(f"ds_read_b64_tr_b16 v[{d}:{d+1}], v{TA[aa]} offset:{ss*4096+e*512}")
    def p1mfma(aa):
        for ss in range(2):
            bi = 16 + 4 * ss
            a(f"v_mfma_f32_16x16x32_bf16 v[{32+4*aa}:{35+4*aa}], v[{48+8*aa+4*ss}:{51+8*aa+4*ss}], v[{bi}:{bi+3}], {'0' if ss==0 else f'v[{32+4*aa}:{35+4*aa}]'}")
    for aa in range(4):
        a(f"s_waitcnt lgkmcnt({12-4*aa})")
        p1mfma(aa)
    a("s_mov_b32 s56, 0x00ff00ff")
    a("s_mov_b32 s57, 0x00ff00ff")
    for aa in range(1, 4):
        for i in range(4):
            a(f"v_cndmask_b32 v{32+i}, v{32+i}, v{32+4*aa+i}, s[{42+2*aa}:{43+2*aa}]")
    for i in range(4):
        a(f"v_bfi_b32 v{32+i}, v121, s{35+i}, v{32+i}")
    a(f"""
    s_mov_b64 exec, s[56:57]
    @PUB@global_store_dwordx4 v98, v[32:35], s[28:29]
    s_mov_b64 exec, -1
    """)
    stamp("S published")
    a("""
    s_sub_u32 m0, s61, 4096
    s_add_u32 s51, s50, 16384
    buffer_load_dwordx4 v95, s[52:55], s50 offen nt lds
    s_sub_u32 m0, s61, 3072
    s_nop 0
    buffer_load_dwordx4 v95, s[52:55], s51 offen nt lds
    """)
    a(f"""
    v_xor_b32 v101, v2, v1
    v_lshlrev_b32 v101, 4, v101
    v_lshl_add_u32 v101, v1, 8, v101
    s_lshl_b32 s59, s3, 14
    v_add_u32 v101, s59, v101
    v_xor_b32 v102, 64, v101
    v_xor_b32 v103, 0x80, v101
    v_xor_b32 v104, 0xc0, v101
    v_and_b32 v105, 2, v1
    v_lshlrev_b32 v105, 12, v105
    v_and_b32 v7, 1, v1
    v_lshl_add_u32 v105, v7, 8, v105
    v_lshl_add_u32 v105, v2, 4, v105
    v_add_u32 v105, {R(0)}, v105
    v_lshrrev_b32 v106, 1, v5
    v_lshlrev_b32 v106, 8, v106
    v_lshl_add_u32 v106, v2, 6, v106
    v_lshl_add_u32 v106, v4, 4, v106
    v_and_b32 v8, 1, v5
    v_lshl_add_u32 v106, v8, 3, v106
    s_lshl_b32 s59, s3, 9
    s_add_u32 s59, s59, {PB}
    v_add_u32 v106, s59, v106
    v_lshlrev_b32 v122, 5, v4
    v_add_u32 v122, {MLB}, v122
    s_lshl_b32 s59, s3, 2
    v_add_u32 v107, s59, v122
    s_and_b32 s56, s3, 1
    v_lshlrev_b32 v108, 10, v5
    v_and_b32 v8, 2, v1
    v_lshl_add_u32 v108, v8, 8, v108
    v_lshl_add_u32 v108, v7, 6, v108
    v_lshl_add_u32 v108, v2, 4, v108
    s_lshl_b32 s59, s56, 8
    s_add_u32 s59, s59, s63
    s_add_u32 s59, s59, 2048
    v_add_u32 v108, s59, v108
    s_mov_b32 s57, s56
    s_lshl_b32 s58, s57, 15
    s_lshl_b32 s59, s32, 12
    s_add_u32 s58, s58, s59
    s_add_u32 s58, s58, {OP}
    v_lshlrev_b32 v123, 7, v1
    v_lshl_add_u32 v109, v2, 4, v123
    v_add_u32 v109, s58, v109
    s_lshl_b32 s58, s57, 11
    s_add_u32 s59, s58, {FL}
    v_add_u32 v123, s59, v123
    s_lshr_b32 s59, s32, 1
    s_lshl_b32 s59, s59, 2
    s_add_u32 s58, s58, s59
    s_add_u32 s58, s58, {ST}
    v_lshl_add_u32 v110, v2, 2, v4
    v_lshlrev_b32 v110, 7, v110
    v_add_u32 v110, s58, v110
    v_lshl_add_u32 v8, v6, 2, v5
    s_lshl_b32 s58, s3, 1
    s_and_b32 s58, s58, 4
    v_xor_b32 v8, s58, v8
    v_lshlrev_b32 v8, 5, v8
    v_lshl_add_u32 v111, v5, 8, v8
    v_lshl_add_u32 v111, v4, 3, v111
    v_lshl_add_u32 v111, v2, 13, v111
    v_add_u32 v111, {LW}, v111
    v_xor_b32 v112, 32, v111
    v_xor_b32 v113, 64, v111
    v_xor_b32 v114, 0x60, v111
    v_lshrrev_b32 v115, 1, v2
    v_lshl_add_u32 v115, v6, 1, v115
    v_lshl_add_u32 v115, v115, 4, v1
    v_lshlrev_b32 v115, 2, v115
    s_lshl_b32 s58, s56, 20
    s_lshl_b32 s59, s33, 18
    s_add_u32 s58, s58, s59
    s_lshr_b32 s59, s3, 1
    s_lshl_b32 s59, s59, 14
    s_add_u32 s58, s58, s59
    s_lshl_b32 s59, s34, 8
    s_add_u32 s58, s58, s59
    s_add_u32 s58, s58, {FP+EX}
    v_add_u32 v115, s58, v115
    v_lshlrev_b32 v117, 3, v4
    v_lshrrev_b32 v117, v117, s35
    v_lshlrev_b32 v250, 4, v4
    v_lshl_add_u32 v250, v2, 6, v250
    v_add_u32 v250, {PB}, v250
    v_lshl_add_u32 v248, v2, 2, v5
    v_and_b32 v249, 7, v248
    s_lshl_b32 s58, s3, 1
    v_xor_b32 v249, s58, v249
    v_lshlrev_b32 v249, 5, v249
    v_lshl_add_u32 v248, v248, 8, v249
    v_lshl_add_u32 v248, v4, 3, v248
    v_add_u32 v248, 0x10000, v248
    v_xor_b32 v249, 32, v248
    s_lshl_b32 s58, s6, 15
    s_lshl_b32 s59, s3, 11
    s_add_u32 s58, s58, s59
    s_lshl_b32 s59, s7, 7
    s_add_u32 s58, s58, s59
    s_add_u32 s58, s58, {OP}
    v_lshlrev_b32 v251, 13, v4
    v_lshl_add_u32 v251, v2, 4, v251
    v_add_u32 v251, s58, v251
    s_mov_b32 s58, 0x0c0c0400
    s_mov_b32 s59, 0x04000c0c
    s_mov_b32 s61, 0xf8ffffff
    s_cmp_ge_u32 s3, {0 if opt.get('nogather') else 2}
    s_cbranch_scc1 L_qskip
    {'global_load_dword v144, v144, s[28:29] ' + OTF if OT == 1 else ''}
    {'s_sleep ' + str(opt['qdelay']) if opt.get('qdelay') else ''}
    {'s_waitcnt vmcnt(%d)' % (opt['qwait'] - 1) if opt.get('qwait') else ''}
    s_mov_b32 s57, 0
    """)
    a("L_qpoll:")
    for c in range(8):
        a(f"global_load_dwordx4 v[{32+4*c}:{35+4*c}], v{99 if c < 4 else 94}, s[28:29] offset:{(c&3)*2048-4096} @LF@")
    for c in range(8):
        a(f"s_waitcnt vmcnt({7-c})")
        a(f"v_perm_b32 v{64+2*c}, v{33+4*c}, v{32+4*c}, s58")
        a(f"v_perm_b32 v{65+2*c}, v{35+4*c}, v{34+4*c}, s59")
        a(f"v_or_b32 v{64+2*c}, v{64+2*c}, v{65+2*c}")
        a(f"v_xor_b32 v{64+2*c}, s39, v{64+2*c}")
    a(f"""
    v_or3_b32 v64, v64, v66, v68
    v_or3_b32 v70, v70, v72, v74
    v_or3_b32 v64, v64, v76, v78
    v_or_b32 v80, v64, v70
    v_and_b32 v64, s61, v80
    v_cmp_ne_u32 vcc, 0, v64
    s_add_u32 s57, s57, 1
    s_mov_b64 exec, vcc
    s_cbranch_execz L_qdone
    s_cmp_lt_u32 s57, {NFAST}
    s_cbranch_scc1 L_qpoll
    buffer_wbl2 sc1
    buffer_inv sc1
    s_waitcnt vmcnt(0)
    s_cmp_lt_u32 s57, {SPIN}
    s_cbranch_scc1 L_qpoll
    L_qdone:
    s_mov_b64 exec, -1
    v_cmp_ne_u32 vcc, 0, v80
    s_movk_i32 s56, 0xff00
    """)
    for i in range(32):
        a(f"v_and_b32 v{32+i}, s56, v{32+i}")
    a("s_or_b32 s56, vcc_lo, vcc_hi")
    for step in (4, 8, 16):
        for base in range(32, 64, 2 * step):
            for h in range(2):
                a(f"v_pk_add_f32 v[{base+2*h}:{base+2*h+1}], v[{base+2*h}:{base+2*h+1}], v[{base+step+2*h}:{base+step+2*h+1}]")
    a(f"""
    v_cvt_pk_bf16_f32 v32, v32, v33
    v_cvt_pk_bf16_f32 v33, v34, v35
    v_mov_b32 v34, s56
    v_mov_b32 v35, s60
    ds_write_b64 v100, v[32:33]
    ds_write_b32 v35, v34 offset:{MODEB}
    """)
    if stamps: a("s_mov_b32 s69, s57")
    stamp("S gathered")
    a(f"""
    L_qskip:
    v_mov_b32 v10, {R(0)+MODEB}
    s_waitcnt vmcnt(0) lgkmcnt(0)
    s_barrier
    """)
    stamp("B1", 5)
    a("""
    ds_read_b32 v8, v10
    ds_read_b32 v9, v10 offset:8192
    """)
    for j in range(4):
        a(f"ds_read_b128 v[{16+4*j}:{19+4*j}], v105 offset:{64*j}")
    def kread(blk):
        for j in range(4):
            d = 32 + 16 * blk + 4 * j
            a(f"ds_read_b128 v[{d}:{d+3}], v{101+j} offset:{4096*blk}")
    kread(0); kread(1)
    a("global_load_dwordx4 v[124:127], v108, s[28:29] offset:-2048 @L1@")
    a("global_load_dwordx4 v[12:15], v108, s[28:29] offset:2048 @L1@")
    for blk in range(4):
        a(f"s_waitcnt lgkmcnt({4 if blk < 3 else 0})")
        for j in range(4):
            d = 32 + 16 * blk + 4 * j
            ac = 128 + 4 * blk
            a(f"v_mfma_f32_16x16x32_bf16 v[{ac}:{ac+3}], v[{d}:{d+3}], v[{16+4*j}:{19+4*j}], {'0' if j==0 else f'v[{ac}:{ac+3}]'}")
        if blk + 2 < 4: kread(blk + 2)
        if blk == 0:
            a("v_or_b32 v8, v8, v9")
            a("v_cmp_eq_u32 s[44:45], 1, v5")
            a("v_cmp_eq_u32 s[46:47], 2, v5")
            a("v_cmp_eq_u32 s[48:49], 3, v5")
            a("v_readfirstlane_b32 s60, v8")
            if opt.get('nogather'): a("s_mov_b32 s60, 0")
    a(f"s_mov_b32 s56, {SCALE}")
    a(f"s_mov_b32 s57, {LOG2E}")
    for blk in range(1, 4):
        for i in range(4):
            a(f"v_cndmask_b32 v{128+i}, v{128+i}, v{128+4*blk+i}, s[{42+2*blk}:{43+2*blk}]")
    a("""
    v_cvt_pk_bf16_f32 v40, v128, v129
    v_cvt_pk_bf16_f32 v41, v130, v131
    v_lshlrev_b32 v32, 16, v40
    v_and_b32 v33, s62, v40
    v_lshlrev_b32 v34, 16, v41
    v_and_b32 v35, s62, v41
    """)
    for i in range(4): a(f"v_mul_f32 v{32+i}, s56, v{32+i}")
    a("""
    v_cvt_pk_bf16_f32 v40, v32, v33
    v_cvt_pk_bf16_f32 v41, v34, v35
    v_lshlrev_b32 v32, 16, v40
    v_and_b32 v33, s62, v40
    v_lshlrev_b32 v34, 16, v41
    v_and_b32 v35, s62, v41
    v_max3_f32 v40, v32, v33, v34
    v_max_f32 v40, v40, v35
    """)
    reduce4(40, 41, "v_max_f32")
    for i in range(4): a(f"v_sub_f32 v{32+i}, v{32+i}, v40")
    for i in range(4): a(f"v_mul_f32 v{32+i}, s57, v{32+i}")
    for i in range(4): a(f"v_exp_f32 v{32+i}, v{32+i}")
    a("""
    v_mul_f32 v40, s57, v40
    v_cvt_pk_bf16_f32 v44, v32, v33
    v_cvt_pk_bf16_f32 v45, v34, v35
    ds_write_b64 v106, v[44:45]
    ds_write_b32 v107, v40
    v_add_f32 v32, v32, v33
    v_add_f32 v34, v34, v35
    v_add_f32 v32, v32, v34
    """)
    reduce4(32, 33)
    a("""
    ds_write_b32 v107, v32 offset:16
    s_cmp_eq_u32 s60, 0
    s_cbranch_scc1 L_nowb
    buffer_wbl2 sc1
    L_nowb:
    """)
    stamp("S softmax done", 6)
    a("""
    s_waitcnt lgkmcnt(0)
    s_barrier
    """)
    stamp("Bp", 7)
    PF = 148; VF = 180; AC = 212; AL = 244
    def rd(u):
        for q in range(2):
            for e in range(2):
                d = VF + 8 * (u % 4) + 4 * q + 2 * e
                a(f"ds_read_b64_tr_b16 v[{d}:{d+1}], v{248+q} offset:{8192*u+4096*e}")
    def pvm(u):
        for q in range(2):
            d = VF + 8 * (u % 4) + 4 * q
            ac = AC + 8 * (u >> 1) + 4 * q
            a(f"v_mfma_f32_16x16x32_bf16 v[{ac}:{ac+3}], v[{d}:{d+3}], v[{PF+4*u}:{PF+3+4*u}], {'0' if u % 2 == 0 else f'v[{ac}:{ac+3}]'}")
    a("""
    ds_read_b128 v[40:43], v122
    ds_read_b128 v[44:47], v122 offset:16
    """)
    for u in range(8):
        a(f"ds_read_b128 v[{PF+4*u}:{PF+3+4*u}], v250 offset:{256*u}")
    a("""
    s_waitcnt lgkmcnt(8)
    v_max3_f32 v48, v40, v41, v42
    v_max_f32 v48, v48, v43
    """)
    for i in range(4): a(f"v_sub_f32 v{40+i}, v{40+i}, v48")
    for i in range(4): a(f"v_exp_f32 v{40+i}, v{40+i}")
    a("""
    v_mul_f32 v49, v40, v44
    v_fmac_f32 v49, v41, v45
    v_fmac_f32 v49, v42, v46
    v_fmac_f32 v49, v43, v47
    v_log_f32 v50, v49
    v_rcp_f32 v49, v49
    s_cmp_lg_u32 s3, 3
    s_cbranch_scc1 L_nostat
    v_add_f32 v52, v50, v48
    s_mov_b32 exec_hi, 0
    global_store_dword v118, v52, s[28:29]
    s_mov_b64 exec, -1
    L_nostat:
    s_waitcnt lgkmcnt(0)
    """)
    assert nA <= 4 and nB - nA <= 4 and 8 - nB <= 4
    for u in range(nA): rd(u)
    for i in range(4): a(f"v_mul_f32 v{AL+i}, v{40+i}, v49")
    for u in range(nA):
        a(f"s_waitcnt lgkmcnt({min(15, 4*(nA-1-u))})")
        pvm(u)
    for q in range(4):
        for e in range(2):
            d = 80 + 4 * q + 2 * e
            a(f"ds_read_b64_tr_b16 v[{d}:{d+1}], v{111+q} offset:{(4+e)*1024}")
    a("""
    s_cbranch_scc1 L_nostat1
    s_waitcnt vmcnt(1)
    s_branch L_nostat2
    L_nostat1:
    s_waitcnt vmcnt(0)
    L_nostat2:
    """)
    a(f"""
    s_mov_b32 s57, 0
    L_gcheck:
    v_perm_b32 v48, v125, v124, s58
    v_perm_b32 v49, v127, v126, s59
    v_perm_b32 v50, v13, v12, s58
    v_perm_b32 v51, v15, v14, s59
    v_or_b32 v48, v48, v49
    v_or_b32 v50, v50, v51
    v_xor_b32 v48, s39, v48
    v_xor_b32 v50, s39, v50
    v_or_b32 v48, v48, v50
    v_and_b32 v48, s61, v48
    v_cmp_ne_u32 vcc, 0, v48
    s_movk_i32 s56, 0xff00
    s_cbranch_vccnz L_gpoll
    L_gdone:
    """)
    for i in range(4): a(f"v_and_b32 v{124+i}, s56, v{124+i}")
    for i in range(4): a(f"v_and_b32 v{12+i}, s56, v{12+i}")
    a("v_pk_add_f32 v[124:125], v[124:125], v[12:13]")
    a("v_pk_add_f32 v[126:127], v[126:127], v[14:15]")
    for m in ("row_ror:4", "row_ror:8"):
        for i in range(4): dpp("v_add_f32", 124 + i, m)
    a("""
    v_cvt_pk_bf16_f32 v48, v124, v125
    v_cvt_pk_bf16_f32 v49, v126, v127
    v_lshlrev_b32 v124, 16, v48
    v_and_b32 v125, s62, v48
    v_lshlrev_b32 v126, 16, v49
    v_and_b32 v127, s62, v49
    """)
    for i in range(4): a(f"v_max_f32 v{48+i}, 0, v{124+i}")
    for i in range(4): a(f"v_mul_f32_dpp v{48+i}, v{124+i}, v{48+i} quad_perm:[2,3,0,1] {DPPM}")
    a("""
    v_cmp_eq_u32 s[44:45], 0, v1
    v_cmp_eq_u32 s[46:47], 1, v1
    v_cvt_pk_bf16_f32 v48, v48, v49
    v_cvt_pk_bf16_f32 v49, v50, v51
    v_cndmask_b32 v28, 0, v48, s[44:45]
    v_cndmask_b32 v29, 0, v49, s[44:45]
    v_cndmask_b32 v30, 0, v48, s[46:47]
    v_cndmask_b32 v31, 0, v49, s[46:47]
    s_waitcnt lgkmcnt(0)
    """)
    for q in range(4):
        a(f"v_mfma_f32_16x16x32_bf16 v[{32+4*q}:{35+4*q}], v[28:31], v[{80+4*q}:{83+4*q}], 0")
    SG = "global_load_dword v24, v110, s[28:29] @TF@"
    OG = """
    global_load_dwordx4 v[16:19], v109, s[28:29] @TF@
    global_load_dwordx4 v[20:23], v109, s[28:29] offset:2048 @TF@
    """
    for q in range(4):
        a(f"v_add_f32 v{32+4*q}, v{32+4*q}, v{33+4*q}")
    a("""
    v_mov_b32 v33, s35
    s_mov_b32 s44, 0x11111111
    s_mov_b32 s45, 0x11111111
    v_permlane32_swap_b32 v32, v36
    v_permlane32_swap_b32 v40, v44
    v_add_f32 v32, v32, v36
    v_add_f32 v40, v40, v44
    v_permlane16_swap_b32 v32, v40
    v_add_f32 v36, v32, v40
    s_barrier
    """)
    for u in range(nA, nB): rd(u)
    for u in range(nA, nB):
        a(f"s_waitcnt lgkmcnt({4*(nB-1-u)})")
        pvm(u)
    nW = nB // 2
    for i in range(8): a(f"v_mul_f32 v{AC+i}, v{AC+i}, v{AL}")
    for w_ in range(1, nW):
        for i in range(8): a(f"v_fmac_f32 v{AC+i}, v{AC+8*w_+i}, v{AL+w_}")
    a("s_cmp_eq_u32 s60, 0")
    a("s_barrier")
    stamp("BB", 8)
    for u in range(nB, 8): rd(u)
    a(SG)
    for u in range(nB, 8):
        a(f"s_waitcnt lgkmcnt({4*(7-u)})")
        pvm(u)
    a("s_mov_b64 exec, s[64:65]")
    for h in range(2):
        for w_ in range(nW, 4):
            for i in range(4 * h, 4 * h + 4): a(f"v_fmac_f32 v{AC+i}, v{AC+8*w_+i}, v{AL+w_}")
        for i in range(2 * h, 2 * h + 2):
            a(f"v_cvt_pk_bf16_f32 v{40+i}, v{AC+2*i}, v{AC+1+2*i}")
    a(f"""
    global_store_dwordx4 v251, v[40:43], s[28:29]
    s_mov_b64 exec, -1
    s_mov_b32 s57, 0
    s_cbranch_scc0 L_slow
    {'s_sleep ' + str(opt['ogsl']) if opt.get('ogsl') else ''}
    {OG if opt.get('ogpre') else ''}
    s_barrier
    L_fast2:
    """)
    stamp("BC", 10)
    if opt.get('cut'): a("s_endpgm")
    if not opt.get('ogpre'): a(OG)
    for ks in range(2):
        for q in range(4):
            for e in range(2):
                d = 48 + 16 * ks + 4 * q + 2 * e
                a(f"ds_read_b64_tr_b16 v[{d}:{d+1}], v{111+q} offset:{(2*ks+e)*1024}")
    a(f"""
    s_waitcnt vmcnt(3)
    L_schk:
    v_cmp_eq_u32 vcc, -1, v24
    v_max_f32_dpp v124, v24, v24 quad_perm:[1,0,3,2] {DPPM}
    s_cbranch_vccnz L_spoll
    L_sdone:
    """)
    dpp("v_max_f32", 124, "quad_perm:[2,3,0,1]")
    reduce_g(124, 125, "v_max_f32")
    a(f"""
    v_sub_f32 v8, v24, v124
    v_exp_f32 v8, v8
    v_add_f32_dpp v9, v8, v8 quad_perm:[1,0,3,2] {DPPM}
    """)
    dpp("v_add_f32", 9, "quad_perm:[2,3,0,1]")
    reduce_g(9, 125)
    a(f"""
    v_rcp_f32 v9, v9
    s_mov_b32 s57, 0
    v_mul_f32 v8, v8, v9
    v_mov_b32_dpp v10, v8 quad_perm:[0,0,0,0] {DPPM}
    v_mov_b32_dpp v11, v8 quad_perm:[1,1,1,1] {DPPM}
    v_mov_b32_dpp v12, v8 quad_perm:[2,2,2,2] {DPPM}
    v_mov_b32_dpp v13, v8 quad_perm:[3,3,3,3] {DPPM}
    s_branch L_ochk
    L_opoll:
    {OG}
    L_ochk:
    s_waitcnt vmcnt(0)
    v_max3_u32 v124, v16, v17, v18
    v_max3_u32 v125, v19, v20, v21
    v_max3_u32 v124, v124, v22, v23
    v_max_u32 v124, v124, v125
    v_cmp_eq_u32 vcc, -1, v124
    s_add_u32 s57, s57, 1
    s_mov_b64 exec, vcc
    s_cbranch_execz L_odone
    {'s_sleep ' + str(opt['oback']) if opt.get('oback') else ''}
    s_cmp_lt_u32 s57, {SPIN}
    s_cbranch_scc1 L_opoll
    L_odone:
    s_mov_b64 exec, -1
    s_waitcnt lgkmcnt(0)
    """)
    if stamps: a("s_mov_b32 s68, s57")
    stamp("o gathered", 11)
    def s2m(q):
        for ks in range(2):
            a(f"v_mfma_f32_16x16x32_bf16 v[{128+4*q}:{131+4*q}], v[{16+4*ks}:{19+4*ks}], v[{48+16*ks+4*q}:{51+16*ks+4*q}], {'0' if ks==0 else f'v[{128+4*q}:{131+4*q}]'}")
    def s2f(q):
        a(f"v_mul_f32 v{128+4*q}, v10, v{128+4*q}")
        for i in range(1, 4):
            a(f"v_fmac_f32 v{128+4*q}, v{10+i}, v{128+4*q+i}")
    for q in range(4): s2m(q)
    if opt.get('bd', 4) in (1, 5): a("s_barrier")
    s2f(0); s2f(1); s2f(2)
    a("v_permlane32_swap_b32 v128, v132")
    a("v_add_f32 v128, v128, v132")
    s2f(3)
    a("""
    v_permlane32_swap_b32 v136, v140
    v_add_f32 v136, v136, v140
    v_permlane16_swap_b32 v128, v136
    v_add_f32 v36, v36, v128
    v_add_f32 v36, v36, v136
    v_bfi_b32 v36, v121, v117, v36
    """)
    for i in range(1, 4):
        a(f"v_mov_b32_dpp v{36+i}, v36 quad_perm:[{i},{i},{i},{i}] {DPPM}")
    a(f"""
    s_mov_b64 exec, s[44:45]
    global_store_dwordx4 v115, v[36:39], s[30:31] {opt.get('ffs', 'sc1')}
    {'s_mov_b64 exec, -1' if stamps or opt.get('probe') else ''}
    """)
    stamp("final published")
    if opt.get('ewb'):
        a(f"""
        s_lshl_b32 s56, s5, 2
        s_add_u32 s56, s56, s3
        s_and_b32 s56, s56, {opt['ewb']}
        s_cmp_lg_u32 s56, 1
        s_cbranch_scc1 L_newb
        buffer_wbl2 sc1
        L_newb:
        """)
    if opt.get('bd', 4) == 3: a("s_barrier")
    if opt.get('bd', 4) in (4, 5):
        a("s_waitcnt vmcnt(0)")
        a("s_barrier")
    a("s_branch L_fin1" if stamps else ("s_branch L_end" if opt.get('probe') or opt.get('padto') else "s_endpgm"))
    a(f"""
    L_gpoll:
    s_add_u32 s57, s57, 1
    s_cmp_ge_u32 s57, {SPIN}
    s_cbranch_scc1 L_gdone
    s_cmp_eq_u32 s60, 0
    s_cbranch_scc1 L_gload
    buffer_inv sc1
    s_waitcnt vmcnt(0)
    L_gload:
    global_load_dwordx4 v[124:127], v108, s[28:29] offset:-2048 @LF@
    global_load_dwordx4 v[12:15], v108, s[28:29] offset:2048 @LF@
    s_waitcnt vmcnt(0)
    s_branch L_gcheck
    L_spoll:
    s_add_u32 s57, s57, 1
    s_cmp_ge_u32 s57, {SPIN}
    s_cbranch_scc1 L_sdone
    s_waitcnt vmcnt(0)
    {SG}
    {OG}
    s_waitcnt vmcnt(2)
    s_branch L_schk
    L_slow:
    s_waitcnt vmcnt(0)
    s_barrier
    s_cmp_lg_u32 s3, 0
    s_cbranch_scc1 L_slow2
    buffer_wbl2 sc1
    s_waitcnt vmcnt(0)
    v_add_u32 v34, {FL-ST}, v118
    s_mov_b64 exec, 1
    global_store_dword v34, v33, s[28:29] sc1
    s_mov_b64 exec, -1
    L_slow2:
    global_load_dword v34, v123, s[28:29] sc1
    s_waitcnt vmcnt(0)
    v_cmp_ne_u32 vcc, s35, v34
    s_add_u32 s57, s57, 1
    s_cbranch_vccz L_slow3
    s_cmp_lt_u32 s57, {SPIN}
    s_cbranch_scc1 L_slow2
    L_slow3:
    buffer_inv sc1
    s_waitcnt vmcnt(0)
    {SG}
    {OG if opt.get('ogpre') else ''}
    s_waitcnt vmcnt(0)
    s_mov_b32 s57, 0
    s_branch L_fast2
    """)
    a(f"""
    L_final:
    {'s_endpgm' if opt.get('cut') else ''}
    s_add_u32 s35, s35, {EINC}
    s_mov_b32 s58, 0x0c0c0400
    s_mov_b32 s59, 0x04000c0c
    s_mov_b32 s57, 0
    v_lshlrev_b32 v28, 16, v119
    v_mov_b32 v33, s35
    s_movk_i32 s56, 0xff00
    v_not_b32 v16, v33
    s_barrier
    {'s_barrier' if opt.get('bd', 4) == 5 else ''}
    {'s_memrealtime s[74:75]' if stamps else ''}
    {'s_memrealtime s[76:77]' if stamps else ''}
    {'s_sleep ' + str(opt['fwait']) if opt.get('fwait') else ''}
    {'global_load_dwordx4 v[16:19], v116, s[28:29] sc1' if opt.get('fdepth') else ''}
    {'s_waitcnt vmcnt(0)' if opt.get('fdepth') else ''}
    {'s_branch L_fchk' if opt.get('fdepth') else ''}
    L_fpoll:
    global_load_dwordx4 v[16:19], v116, s[28:29] {opt.get('ffl', 'sc1')}
    s_waitcnt vmcnt({opt.get('fdepth', 0)})
    {'s_sleep ' + str(opt['fsleep']) if opt.get('fsleep') else ''}
    L_fchk:
    v_perm_b32 v24, v17, v16, s58
    v_perm_b32 v25, v19, v18, s59
    v_or_b32 v24, v24, v25
    v_cmp_ne_u32 vcc, s35, v24
    s_add_u32 s57, s57, 1
    s_mov_b64 exec, vcc
    s_cbranch_execz L_fdone
    {'s_sleep ' + str(opt['fback']) if opt.get('fback') else ''}
    s_cmp_lt_u32 s57, {SPIN*8}
    s_cbranch_scc1 L_fpoll
    L_fdone:
    s_mov_b64 exec, -1
    """)
    if opt.get('fdepth'):
        a("""
        s_waitcnt vmcnt(0)
        v_perm_b32 v24, v17, v16, s58
        v_perm_b32 v25, v19, v18, s59
        v_or_b32 v24, v24, v25
        v_cmp_ne_u32 vcc, s35, v24
        """)
        a(f"s_cmp_lt_u32 s57, {SPIN*8}")
        a("s_cselect_b64 vcc, vcc, 0")
        a("s_cbranch_vccnz L_fchk")
    if stamps: a("s_mov_b32 s67, s57")
    if not stamps: stamp("fdone")
    for i in range(4): a(f"v_and_b32 v{16+i}, s56, v{16+i}")
    a("""
    v_permlane32_swap_b32 v16, v17
    v_permlane32_swap_b32 v18, v19
    v_add_f32 v16, v16, v17
    v_add_f32 v18, v18, v19
    s_mov_b32 s44, 0x00010001
    s_mov_b32 s45, 0x00010001
    v_permlane16_swap_b32 v16, v18
    v_add_f32 v16, v16, v18
    """)
    for m in ("quad_perm:[1,0,3,2]", "quad_perm:[2,3,0,1]", "row_ror:4", "row_ror:8"):
        dpp("v_add_f32", 16, m)
    if opt.get('pack'):
        PACK = f"""
        v_mov_b32 v17, v16
        v_permlane32_swap_b32 v16, v17
        v_cvt_pk_bf16_f32 v16, v16, v17
        v_mov_b32 v17, v16
        v_permlane16_swap_b32 v16, v17
        s_mov_b64 exec, 1
        global_store_dwordx2 v120, v[16:17], s[26:27] {opt.get('outf', '')}
        """
    else:
        PACK = f"""
        v_cvt_pk_bf16_f32 v16, v16, v16
        s_mov_b64 exec, s[44:45]
        global_store_short v120, v16, s[26:27] {opt.get('outf', '')}
        """
    a(f"""
    v_add_f32 v16, v16, v28
    {PACK}
    s_cmp_lg_u32 s2, 0
    """)
    a(f"s_cbranch_scc1 {'L_fin0' if stamps else 'L_end'}")
    a("""
    s_mov_b64 exec, 1
    v_mov_b32 v19, 0
    global_store_dword v19, v33, s[30:31]
    """)
    if stamps:
        a("s_branch L_fin0")
        a("L_fin1:")
        a("s_waitcnt vmcnt(0)")
        a("L_fin0:")
        a("s_mov_b64 exec, -1")
        stamp("out stored")
        a("L_fin:")
        a("s_getreg_b32 s66, hwreg(HW_REG_XCC_ID)")
        a("v_mov_b32 v32, s70")
        for i in range(14):
            a(f"v_mov_b32 v{33+i}, s{72+2*i}")
        a("v_mov_b32 v47, s66")
        a("v_mov_b32 v48, s69")
        a("v_mov_b32 v49, s68")
        a("v_mov_b32 v50, s67")
        a("v_mov_b32 v51, s100")
        a(f"""
        s_lshl_b32 s58, s2, 10
        s_lshl_b32 s59, s3, 7
        s_add_u32 s58, s58, s59
        s_add_u32 s58, s58, {STAMP}
        v_mov_b32 v3, s58
        s_mov_b64 exec, 1
        """)
        for j in range(5):
            a(f"global_store_dwordx4 v3, v[{32+4*j}:{35+4*j}], s[30:31] offset:{16*j}")
    a("L_end:")
    if opt.get('tailpad'):
        a(f"""
        s_getreg_b32 s76, hwreg(HW_REG_XCC_ID)
        s_and_b32 s76, s76, 7
        s_cmp_lg_u32 s76, {opt.get('tpx', 's76')}
        s_cbranch_scc1 L_tpd
        s_memrealtime s[74:75]
        L_tp:
        s_memrealtime s[72:73]
        s_waitcnt lgkmcnt(0)
        s_sub_u32 s72, s72, s74
        s_cmp_lt_u32 s72, {opt['tailpad']}
        s_cbranch_scc1 L_tp
        L_tpd:
        """)
    if opt.get('probe'):
        a(f"""
        s_cmp_eq_u32 s74, 0
        s_cbranch_scc1 L_padd
        s_cmp_ge_u32 s3, {opt.get('probew', 8)}
        s_cbranch_scc1 L_padd
        s_cmp_lt_u32 s3, {opt.get('probel', 0)}
        s_cbranch_scc1 L_padd
        s_cmp_lg_u32 s5, {opt.get('pi', 's5')}
        s_cbranch_scc1 L_padd
        s_getreg_b32 s78, hwreg(HW_REG_XCC_ID)
        s_and_b32 s78, s78, 7
        s_cmp_lg_u32 s78, {opt.get('px', 's78')}
        s_cbranch_scc1 L_padd
        s_sub_u32 s74, s74, s76
        {'s_sub_u32 s74, 1200, s74' if opt.get('pinv') else ''}
        s_lshl_b32 s74, s74, 3
        s_min_u32 s74, s74, 20000
        s_add_u32 s74, s74, 1200
        L_pad:
        s_memrealtime s[72:73]
        s_waitcnt lgkmcnt(0)
        s_sub_u32 s72, s72, s70
        s_cmp_lt_u32 s72, s74
        s_cbranch_scc1 L_pad
        L_padd:
        """)
    if opt.get('padto'):
        a(f"""
        L_pad:
        s_memrealtime s[72:73]
        s_waitcnt lgkmcnt(0)
        s_sub_u32 s72, s72, s70
        s_cmp_lt_u32 s72, {opt['padto']}
        s_cbranch_scc1 L_pad
        """)
    a("s_endpgm")
    a.raw('.section .rodata,"a"')
    a.raw(".p2align 6")
    a.raw(f".amdhsa_kernel {NAME}_kernel")
    a.raw("  .amdhsa_next_free_vgpr 256")
    a.raw("  .amdhsa_next_free_sgpr 102")
    a.raw("  .amdhsa_accum_offset 256")
    a.raw("  .amdhsa_group_segment_fixed_size 0")
    a.raw("  .amdhsa_kernarg_size 96")
    a.raw("  .amdhsa_user_sgpr_count 2")
    a.raw("  .amdhsa_user_sgpr_kernarg_segment_ptr 1")
    a.raw("  .amdhsa_system_sgpr_workgroup_id_x 1")
    a.raw("  .amdhsa_float_denorm_mode_32 3")
    a.raw(".end_amdhsa_kernel")
    return a.text().replace('@LF@', LF).replace('@L1@', L1F).replace('@TF@', opt.get('tf', 'sc1'))

def parse_opt(s):
    opt = {}
    for kv in s.split(","):
        if kv:
            k, _, v = kv.partition("=")
            opt[k] = (int(v) if v.lstrip('-').isdigit() else v.replace('+', ' ')) if v else 1
    return opt

if __name__ == "__main__":
    ap = argparse.ArgumentParser()
    ap.add_argument("-o", default="k.s")
    ap.add_argument("--stamps", action="store_true")
    ap.add_argument("--opt", default="")
    args = ap.parse_args()
    open(args.o, "w").write(gen(args.stamps, parse_opt(args.opt)))
```

```python
import sys, argparse
from asmgen import Asm
NAME = "parallel_sum__sliding_block_cached__glu_gated_reglu__decode"

EX = 0x40000
QP = 0x0; GP = 0x8000; OP = 0x10000; FP = 0x20000; ST = 0x28000; FL = 0x29000
STAMP = 0x1000000
LW = 131072
def R(j): return LW + 8192 * j + 6144
MLB = R(2); PB = R(3); MODEB = 512
SPIN0 = 40000
LOG2E = 0x3fb8aa3b
SCALE = 0x3db504f3
DPPM = "row_mask:0xf bank_mask:0xf"
EINC = 0x08010101

HEADER = open("cdna_kernels/%s.s.ref" % NAME).read().split("; Override launch")[0]

def gen(stamps=False, opt=None):
    opt = opt or {}
    a = Asm()
    G = opt.get
    SPIN = G('spin', SPIN0); NFAST = G('nfast', 12)
    rotmul = G('rotmul', 37)
    kpre = G('kpre', 4); gpre = G('gpre', 2)
    vpre = G('vpre', 9); tp = G('tp', 13); nA = G('nA', 4); nB = G('nB', 6); sgp = G('sgp', 4)
    kc = G('kc', 10)
    ADAPT = G('adapt', 1)
    WK = (G('kb', 7), G('km', 6), G('ks', 5)); WV = (G('vb', 8), G('vm', 7), G('vs', 5))
    LF = G('lf', 'sc1 nt'); TF = G('tf', 'sc1')
    diag = stamps or G('probe') or G('padto')
    nst = [0]; ntw = [0]
    def stamp(name, i=None):
        for key, reg in (('probe', 74), ('probe0', 76)):
            if G(key) == name.replace(' ', '_'):
                a(f"s_memrealtime s[{reg}:{reg+1}]"); a("s_waitcnt lgkmcnt(0)")
        if not stamps or i is None: return
        a(f"s_memrealtime s[{72+2*i}:{73+2*i}]")
        a("s_waitcnt lgkmcnt(0)")
    def TW(w):
        if not ADAPT: return f"s_waitcnt vmcnt({w[1]-1})"
        ntw[0] += 1
        return f"""s_waitcnt vmcnt({w[0]-1})
        s_bitcmp1_b32 s68, 0
        s_cbranch_scc0 L_tw{ntw[0]}
        s_waitcnt vmcnt({w[1]-1})
        s_bitcmp1_b32 s68, 1
        s_cbranch_scc0 L_tw{ntw[0]}
        s_waitcnt vmcnt({w[2]-1})
        L_tw{ntw[0]}:"""
    def dpp(op, v, m): a(f"{op}_dpp v{v}, v{v}, v{v} {m} {DPPM}")
    def reduce_g(v, t, op="v_add_f32"):
        a(f"v_mov_b32 v{t}, v{v}")
        a(f"v_permlane16_swap_b32 v{v}, v{t}")
        a(f"{op} v{v}, v{v}, v{t}")
        a(f"v_mov_b32 v{t}, v{v}")
        a(f"v_permlane32_swap_b32 v{v}, v{t}")
        a(f"{op} v{v}, v{v}, v{t}")
    def reduce5(v, t, op="v_add_f32"):
        dpp(op, v, "quad_perm:[2,3,0,1]"); dpp(op, v, "row_ror:4"); dpp(op, v, "row_ror:8")
        reduce_g(v, t, op)
    def reduce4(v, t, op="v_add_f32"):
        dpp(op, v, "row_ror:4"); dpp(op, v, "row_ror:8")
        reduce_g(v, t, op)
    EXIT = "s_branch L_fin" if stamps else ("s_branch L_end" if diag else "s_endpgm")

    a.raw(HEADER.rstrip())
    a.raw("; @launch grid=(256,1,1) block=(512,1,1) lds=163840")
    a.raw('.amdgcn_target "amdgcn-amd-amdhsa--gfx950"')
    a.raw(".text")
    a.raw(f".globl {NAME}_kernel")
    a.raw(".p2align 12")
    a.raw(".p2align 8")
    a.raw(f".type {NAME}_kernel,@function")
    a.raw(f"{NAME}_kernel:")
    if G('late'):
        a(f"""
        s_getreg_b32 s4, hwreg(HW_REG_XCC_ID)
        s_and_b32 s4, s4, 7
        s_cmp_lg_u32 s4, {G('latex', 2)}
        s_cbranch_scc1 L_nolate
        s_memrealtime s[6:7]
        L_late:
        s_memrealtime s[4:5]
        s_waitcnt lgkmcnt(0)
        s_sub_u32 s4, s4, s6
        s_cmp_lt_u32 s4, {G('late')}
        s_cbranch_scc1 L_late
        L_nolate:
        """)
    if diag: a("s_memrealtime s[70:71]")
    if G('probe'):
        a("s_mov_b32 s74, 0"); a("s_mov_b32 s3, 99")
        if not G('probe0'): a("s_memrealtime s[76:77]")
    a(f"""
    s_cmp_ge_u32 s2, 256
    s_cbranch_scc1 L_end
    {'s_memrealtime s[52:53]' if ADAPT else ''}
    s_load_dwordx16 s[8:23], s[0:1], 0
    s_load_dwordx8 s[24:31], s[0:1], 64
    v_lshrrev_b32 v3, 6, v0
    v_and_b32 v0, 63, v0
    v_readfirstlane_b32 s3, v3
    s_getpc_b64 s[56:57]
    s_lshr_b32 s5, s2, 3
    s_and_b32 s7, s5, 15
    s_lshl_b32 s58, s5, 3
    s_add_u32 s58, s58, s3
    s_lshl_b32 s58, s58, 6
    s_min_u32 s58, s58, L_end-{NAME}_kernel-128
    s_load_dword s39, s[56:57], s58
    v_and_b32 v1, 15, v0
    v_lshrrev_b32 v2, 4, v0
    s_and_b32 s4, s2, 7
    s_lshr_b32 s6, s5, 4
    s_lshr_b32 s32, s5, 2
    s_and_b32 s33, s5, 3
    s_lshl_b32 s34, s4, 3
    s_add_u32 s34, s34, s32
    s_lshl_b32 s66, s4, 18
    s_add_u32 s66, s66, {EX}
    v_lshrrev_b32 v6, 3, v0
    v_and_b32 v7, 1, v2
    v_lshlrev_b32 v7, 1, v7
    v_and_b32 v8, 7, v0
    v_xor_b32 v7, v7, v8
    v_lshlrev_b32 v7, 4, v7
    v_lshl_add_u32 v28, v6, 13, v7
    v_xor_b32 v29, 64, v28
    s_and_b32 s46, s32, 1
    s_lshl_b32 s57, s33, 1
    s_add_u32 s46, s46, s57
    s_lshl_b32 s57, s46, 19
    s_and_b32 s56, s3, 3
    s_lshl_b32 s58, s56, 17
    s_add_u32 s57, s57, s58
    s_and_b32 s58, s34, 0xfe
    s_lshr_b32 s60, s3, 2
    s_add_u32 s58, s58, s60
    s_lshl_b32 s58, s58, 7
    s_add_u32 s57, s57, s58
    s_add_u32 s58, s57, 0x10000
    s_lshl_b32 s60, s3, 11
    s_add_u32 s60, s60, {LW}
    s_mov_b32 s50, 0x400000
    s_mov_b32 s51, 0x20000
    s_mov_b32 s43, 0x20000
    s_cmp_ge_u32 s3, 4
    s_cbranch_scc1 L_loader
    """)
    WQ = """
    s_add_u32 s28, s30, s66
    s_addc_u32 s29, s31, 0
    s_mov_b32 s48, s14
    s_mov_b32 s49, s15
    s_mov_b32 m0, s60
    s_add_u32 s60, s60, 1024
    buffer_load_dwordx4 v28, s[48:51], s57 offen nt lds
    s_mov_b32 m0, s60
    s_nop 0
    buffer_load_dwordx4 v29, s[48:51], s58 offen nt lds
    """
    FF = """
    s_mul_i32 s63, s4, 7
    s_add_u32 s63, s63, 1
    s_and_b32 s63, s63, 0xfe
    s_add_u32 s63, s63, s32
    s_lshr_b32 s57, s32, 1
    s_and_b32 s62, s4, 1
    s_add_u32 s57, s57, s62
    s_cmp_lt_u32 s57, 4
    s_cselect_b32 s54, 0x1c0000, 0
    """
    XL = """
    global_load_dwordx4 v[8:11], v4, s[8:9]
    global_load_dwordx4 v[12:15], v4, s[8:9] offset:16
    global_load_dwordx4 v[16:19], v5, s[8:9]
    """
    GUP = f"""
    s_mov_b32 m0, s60
    s_add_u32 s60, s60, 1024
    buffer_load_dwordx4 v31, s[40:43], s56 offen nt lds
    s_add_u32 s56, s56, {8*3584}
    s_mov_b32 m0, s60
    s_add_u32 s60, s60, 1024
    buffer_load_dwordx4 v30, s[40:43], s56 offen nt lds
    s_add_u32 s56, s56, {8*3584}
    """
    LEAD = """
    s_lshl_b32 s62, s5, 2
    s_add_u32 s62, s62, s3
    s_cmp_lg_u32 s62, 3
    s_cbranch_scc1 L_nolead
    s_lshl_b32 s62, s4, 5
    s_or_b32 s52, s52, 1
    v_mov_b32 v20, s62
    v_mov_b32 v21, s52
    global_store_dword v20, v21, s[28:29] sc1
    L_nolead:
    """ if ADAPT else ""
    a(f"""
    v_and_b32 v3, 1, v0
    v_lshlrev_b32 v3, 10, v3
    v_lshrrev_b32 v4, 1, v0
    v_lshl_add_u32 v4, v4, 5, v3
    v_lshrrev_b32 v5, 3, v1
    v_lshl_add_u32 v5, v5, 6, v3
    v_lshl_add_u32 v5, v2, 4, v5
    s_lshl_b32 s61, s46, 7
    v_add_u32 v5, s61, v5
    s_lshl_b32 s59, s7, 7
    s_lshl_b32 s62, s6, 15
    s_add_u32 s62, s62, {OP}
    s_lshl_b32 s64, s6, 11
    s_add_u32 s64, s64, {ST}
    s_cmp_eq_u32 s3, 0
    s_cselect_b32 s62, s62, s64
    s_cselect_b32 s64, 60, 0
    s_add_u32 s62, s62, s59
    v_and_b32 v20, s64, v0
    v_lshlrev_b32 v20, 9, v20
    v_and_b32 v21, 3, v0
    v_lshlrev_b32 v21, 4, v21
    v_add3_u32 v144, s62, v20, v21
    v_mov_b32 v24, -1
    v_mov_b32 v25, -1
    v_mov_b32 v26, -1
    v_mov_b32 v27, -1
    s_lshl_b32 s61, s3, 13
    s_add_u32 s61, s61, {LW+8192}
    s_cmp_lt_u32 s3, 2
    s_waitcnt lgkmcnt(0)
    {'s_memrealtime s[100:101]' if stamps else ''}
    s_cbranch_scc0 L_s23
    {XL}
    {WQ}
    global_store_dwordx4 v144, v[24:27], s[28:29]
    s_load_dword s35, s[30:31], 0
    s_barrier
    s_branch L_service
    L_s23:
    {LEAD}
    {WQ}
    s_load_dword s35, s[30:31], 0
    s_barrier
    {FF}
    v_mul_u32_u24 v30, 3584, v6
    v_add_u32 v31, v30, v7
    v_xor_b32 v7, 64, v7
    v_add_u32 v30, v30, v7
    s_mul_i32 s56, s46, {64*3584}
    s_lshr_b32 s59, s63, 1
    s_lshl_b32 s59, s59, 7
    s_add_u32 s56, s56, s59
    s_mov_b32 s42, s54
    s_cmp_eq_u32 s3, 2
    s_cselect_b32 s40, s20, s22
    s_cselect_b32 s41, s21, s23
    s_sub_u32 s60, s61, 8192
    {XL}
    s_add_u32 s62, s60, {2048*gpre}
    L_tloop:
    {GUP}
    s_cmp_lt_u32 s60, s62
    s_cbranch_scc1 L_tloop
    s_waitcnt vmcnt({3 + 2*gpre})
    s_barrier
    """)
    if gpre < 4:
        a(f"""
        L_tloop2:
        s_waitcnt vmcnt({2*gpre-2})
        {GUP}
        s_cmp_lt_u32 s60, s61
        s_cbranch_scc1 L_tloop2
        """)
    a("s_branch L_service")

    a("L_loader:")
    def kvloop(lbl, vreg, srd, end, w):
        a(f"""
        {lbl}:
        {TW(w) if w else ''}
        s_mov_b32 m0, s60
        s_add_u32 s60, s60, 4096
        buffer_load_dwordx4 v{vreg}, s[{srd}:{srd+3}], s59 offen nt lds
        s_add_u32 s59, s59, 4096
        s_and_b32 s59, s59, 0xffff
        s_cmp_lt_u32 s60, {end}
        s_cbranch_scc1 {lbl}
        """)
    a(f"""
    s_lshl_b32 s36, s56, 2
    v_add_u32 v3, s36, v2
    v_xor_b32 v4, v3, v1
    v_lshlrev_b32 v4, 4, v4
    v_lshl_add_u32 v4, v2, 8, v4
    s_lshl_b32 s36, s6, 3
    s_add_u32 s36, s36, s4
    s_lshl_b32 s36, s36, 23
    s_lshl_b32 s59, s7, 16
    s_add_u32 s36, s36, s59
    s_add_u32 s36, s36, 0x700000
    s_mul_i32 s59, s2, {rotmul}
    s_add_u32 s59, s59, s56
    s_and_b32 s59, s59, 63
    s_lshl_b32 s59, s59, 10
    s_mov_b32 s42, 0x10000
    v_lshlrev_b32 v9, 5, v8
    s_waitcnt lgkmcnt(0)
    s_mov_b64 s[64:65], s[28:29]
    s_mov_b32 s67, s52
    """)
    a(f"""
    {WQ}
    s_add_u32 s40, s10, s36
    s_addc_u32 s41, s11, 0
    s_lshl_b32 s60, s56, 10
    s_barrier
    """)
    kvloop("L_kloop0", 4, 40, 4096 * kpre, None)
    a(f"""
    s_load_dword s35, s[30:31], 0
    s_add_u32 s44, s12, s36
    s_addc_u32 s45, s13, 0
    s_mov_b32 s46, 0x10000
    s_mov_b32 s47, 0x20000
    s_mov_b32 s48, s16
    s_mov_b32 s49, s17
    s_mov_b32 s52, s24
    s_mov_b32 s53, s25
    s_mov_b32 s55, 0x20000
    {FF}
    v_and_b32 v5, 7, v3
    v_lshlrev_b32 v5, 1, v5
    v_xor_b32 v5, v5, v1
    v_lshlrev_b32 v5, 4, v5
    v_lshl_add_u32 v3, v3, 10, v5
    v_lshl_add_u32 v5, v2, 8, v5
    s_lshl_b32 s57, s33, 8
    s_lshl_b32 s61, s34, 16
    s_add_u32 s61, s61, s57
    s_lshl_b32 s63, s63, 15
    s_add_u32 s63, s63, s57
    v_and_b32 v13, 3, v1
    v_lshrrev_b32 v14, 2, v1
    v_and_b32 v15, 1, v2
    v_and_b32 v7, 1, v1
    s_and_b32 s36, s56, 1
    v_lshlrev_b32 v108, 10, v14
    v_and_b32 v8, 2, v1
    v_lshl_add_u32 v108, v8, 8, v108
    v_lshl_add_u32 v108, v7, 6, v108
    v_lshl_add_u32 v108, v2, 4, v108
    s_lshr_b32 s37, s32, 1
    s_lshl_b32 s57, s37, 13
    s_and_b32 s58, s32, 1
    s_lshl_b32 s58, s58, 7
    s_add_u32 s57, s57, s58
    s_lshl_b32 s58, s36, 8
    s_add_u32 s57, s57, s58
    s_add_u32 s57, s57, {GP+2048}
    v_add_u32 v108, s57, v108
    s_lshl_b32 s58, s36, 15
    s_lshl_b32 s57, s32, 12
    s_add_u32 s58, s58, s57
    s_add_u32 s58, s58, {OP}
    v_lshlrev_b32 v123, 7, v1
    v_lshl_add_u32 v109, v2, 4, v123
    v_add_u32 v109, s58, v109
    s_lshl_b32 s58, s36, 11
    s_add_u32 s57, s58, {FL}
    v_add_u32 v123, s57, v123
    s_lshl_b32 s57, s37, 2
    s_add_u32 s58, s58, s57
    s_add_u32 s58, s58, {ST}
    v_lshl_add_u32 v110, v2, 2, v13
    v_lshlrev_b32 v110, 7, v110
    v_add_u32 v110, s58, v110
    s_lshl_b32 s58, s5, 7
    s_add_u32 s58, s58, {FL}
    v_mov_b32 v118, s58
    v_lshl_add_u32 v8, v15, 2, v14
    s_lshl_b32 s58, s56, 1
    s_and_b32 s58, s58, 4
    v_xor_b32 v8, s58, v8
    v_lshlrev_b32 v8, 5, v8
    v_lshl_add_u32 v111, v14, 8, v8
    v_lshl_add_u32 v111, v13, 3, v111
    v_lshl_add_u32 v111, v2, 13, v111
    v_add_u32 v111, {LW}, v111
    v_xor_b32 v112, 32, v111
    v_xor_b32 v113, 64, v111
    v_xor_b32 v114, 0x60, v111
    v_lshrrev_b32 v115, 1, v2
    v_lshl_add_u32 v115, v15, 1, v115
    v_lshl_add_u32 v115, v115, 4, v1
    v_lshlrev_b32 v115, 2, v115
    s_lshl_b32 s58, s36, 20
    s_lshl_b32 s57, s33, 18
    s_add_u32 s58, s58, s57
    s_lshr_b32 s57, s56, 1
    s_lshl_b32 s57, s57, 14
    s_add_u32 s58, s58, s57
    s_lshl_b32 s57, s34, 8
    s_add_u32 s58, s58, s57
    s_add_u32 s58, s58, {FP+EX}
    v_add_u32 v115, s58, v115
    v_lshlrev_b32 v117, 3, v13
    v_mov_b32 v121, 0xff
    v_mov_b32 v10, {R(0)+MODEB}
    s_mov_b32 s36, 0x0c0c0400
    s_mov_b32 s37, 0x04000c0c
    s_mov_b32 s38, 0xf8ffffff
    s_mov_b32 s62, 0xffff0000
    s_waitcnt vmcnt({kpre})
    """)
    if ADAPT:
        a(f"""
        global_load_dword v12, v9, s[64:65] sc1
        s_mov_b32 s68, 1
        s_barrier
        """)
        kvloop("L_kloop1", 4, 40, 4096 * kc, WK)
        TH = G('th', 60)
        a(f"""
        s_waitcnt vmcnt({kc - kpre})
        v_subrev_u32 v11, s67, v12
        v_cmp_eq_u32 vcc, 0, v12
        v_cmp_lt_i32 s[14:15], {TH}, v11
        v_add_u32 v11, {TH}, v11
        v_cmp_gt_i32 s[18:19], 0, v11
        s_or_b32 s57, s14, vcc_lo
        s_andn2_b32 s58, s18, vcc_lo
        s_and_b32 s57, s57, 0xff
        s_cselect_b32 s68, 3, 1
        s_and_b32 s58, s58, 0xff
        s_bcnt1_i32_b32 s58, s58
        s_cmp_lt_u32 s58, {G('c1', 4)}
        s_cbranch_scc1 L_mode
        s_lshr_b32 s68, s68, 1
        L_mode:
        """)
        if G('oracle'):
            a(f"""
            s_getreg_b32 s57, hwreg(HW_REG_XCC_ID)
            s_and_b32 s57, s57, 7
            s_cmp_eq_u32 s57, {G('latex', 2)}
            s_cselect_b32 s68, 0, 3
            """)
    else:
        a("s_barrier")
    kvloop("L_kloop", 4, 40, 65536, WK)
    kvloop("L_vloop", 5, 44, 65536 + 4096 * vpre, WV)
    stamp("L pre issue", 0)
    a(f"""
    s_waitcnt vmcnt({vpre}) lgkmcnt(0)
    s_add_u32 s35, s35, {EINC}
    s_lshl_b32 s57, s56, 13
    s_add_u32 s57, s57, {LW}
    v_lshrrev_b32 v117, v117, s35
    v_mov_b32 v33, s35
    """)
    stamp("L K landed", 1)
    a("s_barrier")
    stamp("B1", 5)
    log = [f"V{t}" for t in range(vpre)]
    def younger(name): return len(log) - 1 - log.index(name)
    GG = f"""
    global_load_dwordx4 v[124:127], v108, s[28:29] offset:-2048 {LF}
    global_load_dwordx4 v[28:31], v108, s[28:29] offset:2048 {LF}
    """
    SG = f"global_load_dword v24, v110, s[28:29] {TF}"
    OG = f"""
    global_load_dwordx4 v[16:19], v109, s[28:29] {TF}
    global_load_dwordx4 v[20:23], v109, s[28:29] offset:2048 {TF}
    """
    a("""
    ds_read_b32 v8, v10
    ds_read_b32 v9, v10 offset:8192
    """)
    for t in range(2):
        a(f"""
        s_add_u32 m0, s57, {(4+t)*1024}
        {TW(WV)}
        buffer_load_dwordx4 v3, s[52:55], s63 offen nt lds
        s_add_u32 s63, s63, 16384
        """)
        log.append(f"D{t}")
    gv = G('gv', vpre + 1)
    if gv > vpre:
        kvloop("L_vloop1", 5, 44, 65536 + 4096 * gv, WV); log += [f"V{t}" for t in range(vpre, gv)]
    a(GG); log += ["G0", "G1"]
    kvloop("L_vloop2", 5, 44, 65536 + 4096 * tp, WV); log += [f"V{t}" for t in range(gv, tp)]
    a(f"s_waitcnt vmcnt({younger(f'V{2*nA-1}')}) lgkmcnt(0)")
    a("v_or_b32 v8, v8, v9")
    stamp("L at Bp", 2)
    a("s_barrier")
    stamp("Bp", 7)
    a("v_readfirstlane_b32 s69, v8")
    if tp < 16:
        kvloop("L_vloop3", 5, 44, 131072, WV); log += [f"V{t}" for t in range(tp, 16)]
    for t in range(4):
        if t == sgp: a(SG); log.append("S")
        a(f"""
        s_add_u32 m0, s57, {t*1024}
        {TW(WV)}
        buffer_load_dwordx4 v3, s[48:51], s61 offen nt lds
        s_add_u32 s61, s61, 16384
        """)
        log.append(f"W{t}")
    if sgp == 4: a(SG); log.append("S")
    assert log.index(f"V{2*nB-1}") > log.index("G1")
    a(f"s_waitcnt vmcnt({younger(f'V{2*nB-1}')})")
    stamp("L at Bq", 3)
    a("s_barrier")
    for q in range(4):
        for e in range(2):
            d = 80 + 4 * q + 2 * e
            a(f"ds_read_b64_tr_b16 v[{d}:{d+1}], v{111+q} offset:{(4+e)*1024}")
    a(f"""
    s_mov_b32 s63, 0
    L_gcheck:
    v_perm_b32 v48, v125, v124, s36
    v_perm_b32 v49, v127, v126, s37
    v_perm_b32 v50, v29, v28, s36
    v_perm_b32 v51, v31, v30, s37
    v_or_b32 v48, v48, v49
    v_or_b32 v50, v50, v51
    v_xor_b32 v48, s35, v48
    v_xor_b32 v50, s35, v50
    v_or_b32 v48, v48, v50
    v_and_b32 v48, s38, v48
    v_cmp_ne_u32 vcc, 0, v48
    s_movk_i32 s58, 0xff00
    s_cbranch_vccnz L_gpoll
    L_gdone:
    """)
    for i in range(4): a(f"v_and_b32 v{124+i}, s58, v{124+i}")
    for i in range(4): a(f"v_and_b32 v{28+i}, s58, v{28+i}")
    a("v_pk_add_f32 v[124:125], v[124:125], v[28:29]")
    a("v_pk_add_f32 v[126:127], v[126:127], v[30:31]")
    a("v_cmp_eq_u32 s[44:45], 0, v1")
    a("v_cmp_eq_u32 s[46:47], 1, v1")
    for m in ("row_ror:4", "row_ror:8"):
        for i in range(4): dpp("v_add_f32", 124 + i, m)
    a("""
    v_cvt_pk_bf16_f32 v48, v124, v125
    v_cvt_pk_bf16_f32 v49, v126, v127
    v_lshlrev_b32 v124, 16, v48
    v_and_b32 v125, s62, v48
    v_lshlrev_b32 v126, 16, v49
    v_and_b32 v127, s62, v49
    """)
    for i in range(4): a(f"v_max_f32 v{48+i}, 0, v{124+i}")
    for i in range(4): a(f"v_mul_f32_dpp v{48+i}, v{124+i}, v{48+i} quad_perm:[2,3,0,1] {DPPM}")
    a("""
    v_cvt_pk_bf16_f32 v48, v48, v49
    v_cvt_pk_bf16_f32 v49, v50, v51
    v_cndmask_b32 v28, 0, v48, s[44:45]
    v_cndmask_b32 v29, 0, v49, s[44:45]
    v_cndmask_b32 v30, 0, v48, s[46:47]
    v_cndmask_b32 v31, 0, v49, s[46:47]
    s_waitcnt lgkmcnt(0)
    """)
    for q in range(4):
        a(f"v_mfma_f32_16x16x32_bf16 v[{128+4*q}:{131+4*q}], v[28:31], v[{80+4*q}:{83+4*q}], 0")
    a(f"s_waitcnt vmcnt({younger('V15')})")
    stamp("L V landed", 4)
    a("s_barrier")
    stamp("BB", 8)
    a("s_mov_b32 s44, 0x11111111")
    a("s_mov_b32 s45, 0x11111111")
    for q in range(4):
        a(f"v_add_f32 v{128+4*q}, v{128+4*q}, v{129+4*q}")
    a(f"""
    v_permlane32_swap_b32 v128, v132
    v_permlane32_swap_b32 v136, v140
    v_add_f32 v128, v128, v132
    v_add_f32 v136, v136, v140
    s_mov_b32 s63, 0
    v_permlane16_swap_b32 v128, v136
    v_add_f32 v36, v128, v136
    s_waitcnt vmcnt({younger('S')})
    """)
    def weights():
        a(f"v_max_f32_dpp v124, v24, v24 quad_perm:[1,0,3,2] {DPPM}")
        dpp("v_max_f32", 124, "quad_perm:[2,3,0,1]")
        reduce_g(124, 125, "v_max_f32")
        a(f"""
        v_sub_f32 v8, v24, v124
        v_exp_f32 v8, v8
        v_add_f32_dpp v9, v8, v8 quad_perm:[1,0,3,2] {DPPM}
        """)
        dpp("v_add_f32", 9, "quad_perm:[2,3,0,1]")
        reduce_g(9, 125)
        a("v_rcp_f32 v9, v9")
        a("v_mul_f32 v8, v8, v9")
        for i in range(4): a(f"v_mov_b32_dpp v{10+i}, v8 quad_perm:[{i},{i},{i},{i}] {DPPM}")
    WPRE = G('wpre', 0)
    a("v_cmp_eq_u32 vcc, -1, v24")
    if WPRE: weights()
    a("s_cmp_eq_u32 s69, 0")
    a("s_waitcnt vmcnt(0)")
    stamp("L wo landed", 9)
    a("""
    s_barrier
    s_cbranch_scc0 L_slow
    """)
    stamp("BC", 10)
    if G('cut'): a("s_endpgm")
    a("L_fast2:")
    a("s_cbranch_vccz L_nosg")
    a(SG)
    a("L_nosg:")
    a(OG)
    for ks in range(2):
        for q in range(4):
            for e in range(2):
                d = 48 + 16 * ks + 4 * q + 2 * e
                a(f"ds_read_b64_tr_b16 v[{d}:{d+1}], v{111+q} offset:{(2*ks+e)*1024}")
    a("s_cbranch_vccnz L_spoll1")
    if not WPRE:
        a("L_sdone:")
        weights()
    a(f"""
    s_branch L_ochk
    L_opoll:
    {OG}
    L_ochk:
    s_waitcnt vmcnt(0)
    v_max3_u32 v124, v16, v17, v18
    v_max3_u32 v125, v19, v20, v21
    v_max3_u32 v124, v124, v22, v23
    v_max_u32 v124, v124, v125
    v_cmp_eq_u32 vcc, -1, v124
    s_add_u32 s63, s63, 1
    s_mov_b64 exec, vcc
    s_cbranch_execz L_odone
    s_cmp_lt_u32 s63, {SPIN}
    s_cbranch_scc1 L_opoll
    L_odone:
    s_mov_b64 exec, -1
    s_waitcnt lgkmcnt(0)
    """)
    if stamps: a("s_mov_b32 s67, s63")
    stamp("o gathered", 11)
    for q in range(4):
        for ks in range(2):
            a(f"v_mfma_f32_16x16x32_bf16 v[{128+4*q}:{131+4*q}], v[{16+4*ks}:{19+4*ks}], v[{48+16*ks+4*q}:{51+16*ks+4*q}], {'0' if ks==0 else f'v[{128+4*q}:{131+4*q}]'}")
    def s2f(q):
        a(f"v_mul_f32 v{128+4*q}, v10, v{128+4*q}")
        for i in range(1, 4):
            a(f"v_fmac_f32 v{128+4*q}, v{10+i}, v{128+4*q+i}")
    s2f(0); s2f(1); s2f(2)
    a("v_permlane32_swap_b32 v128, v132")
    a("v_add_f32 v128, v128, v132")
    s2f(3)
    a("""
    v_permlane32_swap_b32 v136, v140
    v_add_f32 v136, v136, v140
    v_permlane16_swap_b32 v128, v136
    v_add_f32 v36, v36, v128
    v_add_f32 v36, v36, v136
    v_bfi_b32 v36, v121, v117, v36
    """)
    for i in range(1, 4):
        a(f"v_mov_b32_dpp v{36+i}, v36 quad_perm:[{i},{i},{i},{i}] {DPPM}")
    a("""
    s_mov_b64 exec, s[44:45]
    global_store_dwordx4 v115, v[36:39], s[30:31] sc1
    """)
    if diag: a("s_mov_b64 exec, -1")
    stamp("final published", 12)
    a("s_waitcnt vmcnt(0)")
    stamp("final acked", 13)
    a("s_barrier")
    a(EXIT)
    a(f"""
    L_gpoll:
    s_add_u32 s63, s63, 1
    s_cmp_ge_u32 s63, {SPIN}
    s_cbranch_scc1 L_gdone
    s_cmp_eq_u32 s69, 0
    s_cbranch_scc1 L_gload
    buffer_inv sc1
    s_waitcnt vmcnt(0)
    L_gload:
    {GG}
    s_waitcnt vmcnt(0)
    s_branch L_gcheck
    L_spoll:
    s_waitcnt vmcnt(0)
    {SG}
    {OG}
    L_spoll1:
    s_waitcnt vmcnt(2)
    v_cmp_eq_u32 vcc, -1, v24
    s_add_u32 s63, s63, 1
    s_cbranch_vccz L_sdone
    s_cmp_lt_u32 s63, {SPIN}
    s_cbranch_scc1 L_spoll
    """)
    if WPRE:
        a("L_sdone:")
        weights()
        a("s_branch L_ochk")
    else:
        a("s_branch L_sdone")
    a(f"""
    L_slow:
    s_cmp_lg_u32 s3, 4
    s_cbranch_scc1 L_slow2
    buffer_wbl2 sc1
    s_waitcnt vmcnt(0)
    s_mov_b64 exec, 1
    global_store_dword v118, v33, s[28:29] sc1
    s_mov_b64 exec, -1
    L_slow2:
    global_load_dword v34, v123, s[28:29] sc1
    s_waitcnt vmcnt(0)
    v_cmp_ne_u32 vcc, s35, v34
    s_add_u32 s63, s63, 1
    s_cbranch_vccz L_slow3
    s_cmp_lt_u32 s63, {SPIN}
    s_cbranch_scc1 L_slow2
    L_slow3:
    buffer_inv sc1
    s_waitcnt vmcnt(0)
    s_mov_b32 s63, 0
    s_mov_b64 vcc, -1
    s_branch L_fast2
    """)

    a("L_service:")
    a(f"""
    s_mov_b32 s62, 0xffff0000
    s_mov_b32 s64, 0x000f000f
    s_mov_b32 s65, 0x000f000f
    v_and_b32 v4, 3, v1
    v_lshrrev_b32 v5, 2, v1
    v_and_b32 v6, 1, v2
    v_lshrrev_b32 v96, 3, v1
    v_lshl_add_u32 v96, v6, 1, v96
    v_lshlrev_b32 v96, 5, v96
    v_lshl_add_u32 v96, v5, 7, v96
    v_lshl_add_u32 v96, v2, 10, v96
    v_lshl_add_u32 v96, v4, 3, v96
    s_sub_u32 s60, s61, 8192
    v_add_u32 v96, s60, v96
    v_xor_b32 v97, 32, v96
    v_xor_b32 v92, 64, v96
    v_xor_b32 v93, 0x60, v96
    s_cmp_lt_u32 s3, 2
    s_cselect_b32 s57, 14, 8
    v_and_b32 v3, 1, v1
    v_lshlrev_b32 v98, s57, v3
    v_lshrrev_b32 v7, 1, v1
    v_lshl_add_u32 v98, v7, 6, v98
    v_lshl_add_u32 v98, v2, 4, v98
    s_lshr_b32 s56, s32, 1
    s_lshl_b32 s57, s56, 9
    s_lshl_b32 s58, s3, 8
    s_add_u32 s57, s57, s58
    s_lshl_b32 s58, s46, 11
    s_add_u32 s57, s57, s58
    s_lshl_b32 s63, s56, 13
    s_lshl_b32 s58, s46, 10
    s_add_u32 s58, s58, s63
    s_lshl_b32 s56, s3, 9
    s_add_u32 s58, s58, s56
    s_add_u32 s58, s58, {GP-1024}
    s_cmp_lt_u32 s3, 2
    s_cselect_b32 s57, s57, s58
    v_add_u32 v98, s57, v98
    v_cmp_eq_u32 s[44:45], 1, v7
    v_cmp_eq_u32 s[46:47], 2, v7
    v_cmp_eq_u32 s[48:49], 3, v7
    s_lshl_b32 s57, s6, 14
    s_lshl_b32 s58, s3, 10
    s_add_u32 s57, s57, s58
    s_add_u32 s57, s57, {QP+4096}
    v_lshlrev_b32 v99, 4, v0
    v_add_u32 v99, s57, v99
    v_add_u32 v94, 0x2000, v99
    s_add_u32 s60, s60, 6144
    v_lshlrev_b32 v100, 3, v0
    v_add_u32 v100, s60, v100
    v_mov_b32 v121, 0xff
    v_xor_b32 v101, v2, v1
    v_lshlrev_b32 v101, 4, v101
    v_lshl_add_u32 v101, v1, 8, v101
    s_lshl_b32 s59, s3, 14
    v_add_u32 v101, s59, v101
    v_xor_b32 v102, 64, v101
    v_xor_b32 v103, 0x80, v101
    v_xor_b32 v104, 0xc0, v101
    v_and_b32 v105, 2, v1
    v_lshlrev_b32 v105, 12, v105
    v_lshl_add_u32 v105, v3, 8, v105
    v_lshl_add_u32 v105, v2, 4, v105
    v_add_u32 v105, {R(0)}, v105
    s_getreg_b32 s68, hwreg(HW_REG_XCC_ID)
    s_and_b32 s68, s68, 7
    s_cmp_lt_u32 s3, 2
    s_cbranch_scc1 L_ln0
    s_waitcnt vmcnt(8)
    s_branch L_ln
    L_ln0:
    s_waitcnt vmcnt(3)
    L_ln:
    """)
    stamp("S x landed", 0)
    for i in range(8):
        a(f"v_lshlrev_b32 v{32+2*i}, 16, v{8+i}")
        a(f"v_and_b32 v{33+2*i}, s62, v{8+i}")
    for i in range(4):
        a(f"v_pk_add_f32 v[{48+2*i}:{49+2*i}], v[{32+4*i}:{33+4*i}], v[{34+4*i}:{35+4*i}]")
    a("v_pk_add_f32 v[48:49], v[48:49], v[50:51]")
    a("v_pk_add_f32 v[52:53], v[52:53], v[54:55]")
    a("v_pk_add_f32 v[48:49], v[48:49], v[52:53]")
    a("v_add_f32 v48, v48, v49")
    reduce5(48, 49)
    a("v_mul_f32 v48, 0xbb000000, v48")
    a("v_mov_b32 v49, v48")
    for i in range(8):
        a(f"v_pk_add_f32 v[{32+2*i}:{33+2*i}], v[{32+2*i}:{33+2*i}], v[48:49]")
    a("v_pk_mul_f32 v[50:51], v[32:33], v[32:33]")
    a("v_pk_mul_f32 v[52:53], v[34:35], v[34:35]")
    for i in range(2, 8):
        d = 50 + 2 * (i & 1)
        a(f"v_pk_fma_f32 v[{d}:{d+1}], v[{32+2*i}:{33+2*i}], v[{32+2*i}:{33+2*i}], v[{d}:{d+1}]")
    a("v_pk_add_f32 v[50:51], v[50:51], v[52:53]")
    a("v_add_f32 v50, v50, v51")
    a("""
    v_cvt_pk_bf16_f32 v48, v48, v48
    v_and_b32 v48, s62, v48
    v_mov_b32 v49, v48
    """)
    fr = []
    for i in range(4):
        fr.append(f"v_lshlrev_b32 v{32+2*i}, 16, v{16+i}")
        fr.append(f"v_and_b32 v{33+2*i}, s62, v{16+i}")
    for i in range(4):
        fr.append(f"v_pk_add_f32 v[{32+2*i}:{33+2*i}], v[{32+2*i}:{33+2*i}], v[48:49]")
    for i in range(4):
        fr.append(f"v_cvt_pk_bf16_f32 v{16+i}, v{32+2*i}, v{33+2*i}")
    for i in range(4):
        fr.append(f"v_lshlrev_b32 v{32+2*i}, 16, v{16+i}")
        fr.append(f"v_and_b32 v{33+2*i}, s62, v{16+i}")
    ch = [f"v_add_f32_dpp v50, v50, v50 quad_perm:[2,3,0,1] {DPPM}", None, None,
          f"v_add_f32_dpp v50, v50, v50 row_ror:4 {DPPM}", None, None,
          f"v_add_f32_dpp v50, v50, v50 row_ror:8 {DPPM}", "v_mov_b32 v51, v50", None, None,
          "v_permlane16_swap_b32 v50, v51", "v_add_f32 v50, v50, v51", "v_mov_b32 v51, v50", None, None,
          "v_permlane32_swap_b32 v50, v51", "v_add_f32 v50, v50, v51",
          "v_mul_f32 v50, 0x3b000000, v50", "v_cvt_pk_bf16_f32 v50, v50, v50", "v_and_b32 v50, s62, v50",
          "v_add_f32 v50, 0x3727c5ac, v50", "v_cvt_pk_bf16_f32 v50, v50, v50", "v_and_b32 v50, s62, v50",
          "v_sqrt_f32 v50, v50", None, "v_cvt_pk_bf16_f32 v50, v50, v50", "v_and_b32 v50, s62, v50",
          "v_rcp_f32 v50, v50", None]
    for c in ch:
        a(c if c else fr.pop(0))
    a("v_mov_b32 v51, v50")
    for x in fr: a(x)
    for i in range(4):
        a(f"v_pk_mul_f32 v[{32+2*i}:{33+2*i}], v[{32+2*i}:{33+2*i}], v[50:51]")
    for i in range(4):
        a(f"v_cvt_pk_bf16_f32 v{16+i}, v{32+2*i}, v{33+2*i}")
    for i in range(4):
        a(f"v_mov_b32_dpp v{20+i}, v{16+i} row_ror:8 {DPPM}")
    a(f"""
    s_waitcnt lgkmcnt(0)
    s_add_u32 s35, s35, {EINC}
    s_lshr_b32 s36, s35, 8
    s_lshr_b32 s37, s35, 16
    s_lshr_b32 s38, s35, 24
    s_and_b32 s38, s38, 0xf8
    s_or_b32 s38, s38, s68
    s_and_b32 s39, s35, 0x00ffffff
    s_lshl_b32 s57, s38, 24
    s_or_b32 s39, s39, s57
    s_mov_b32 s56, 0x00ff00ff
    s_mov_b32 s57, 0x00ff00ff
    """)
    stamp("S LN done", 1)
    a("""
    s_cmp_lt_u32 s3, 2
    s_waitcnt vmcnt(0)
    s_cbranch_scc0 L_w3
    s_barrier
    L_w3:
    """)
    stamp("S tile landed", 2)
    TA = [96, 97, 92, 93]
    for aa in range(4):
        for ss in range(2):
            for e in range(2):
                d = 48 + 8 * aa + 4 * ss + 2 * e
                a(f"ds_read_b64_tr_b16 v[{d}:{d+1}], v{TA[aa]} offset:{ss*4096+e*512}")
    for aa in range(4):
        a(f"s_waitcnt lgkmcnt({12-4*aa})")
        for ss in range(2):
            a(f"v_mfma_f32_16x16x32_bf16 v[{32+4*aa}:{35+4*aa}], v[{48+8*aa+4*ss}:{51+8*aa+4*ss}], v[{16+4*ss}:{19+4*ss}], {'0' if ss==0 else f'v[{32+4*aa}:{35+4*aa}]'}")
    for aa in range(1, 4):
        for i in range(4):
            a(f"v_cndmask_b32 v{32+i}, v{32+i}, v{32+4*aa+i}, s[{42+2*aa}:{43+2*aa}]")
    for i in range(4):
        a(f"v_bfi_b32 v{32+i}, v121, s{35+i}, v{32+i}")
    a("""
    s_mov_b64 exec, s[56:57]
    global_store_dwordx4 v98, v[32:35], s[28:29]
    s_mov_b64 exec, -1
    """)
    stamp("S published", 3)
    a(f"""
    v_lshlrev_b32 v250, 4, v4
    v_lshl_add_u32 v250, v2, 6, v250
    v_add_u32 v250, {PB}, v250
    v_lshrrev_b32 v106, 1, v5
    v_lshl_add_u32 v106, v106, 8, v250
    v_and_b32 v8, 1, v5
    v_lshl_add_u32 v106, v8, 3, v106
    s_lshl_b32 s59, s3, 9
    v_add_u32 v106, s59, v106
    v_lshlrev_b32 v122, 5, v4
    v_add_u32 v122, {MLB}, v122
    s_lshl_b32 s59, s3, 2
    v_add_u32 v107, s59, v122
    v_lshl_add_u32 v248, v2, 2, v5
    v_and_b32 v249, 7, v248
    s_lshl_b32 s58, s3, 1
    v_xor_b32 v249, s58, v249
    v_lshlrev_b32 v249, 5, v249
    v_lshl_add_u32 v248, v248, 8, v249
    v_lshl_add_u32 v248, v4, 3, v248
    v_add_u32 v248, 0x10000, v248
    v_xor_b32 v249, 32, v248
    s_lshl_b32 s58, s6, 15
    s_lshl_b32 s59, s3, 11
    s_add_u32 s58, s58, s59
    s_lshl_b32 s59, s7, 7
    s_add_u32 s58, s58, s59
    s_add_u32 s58, s58, {OP}
    v_lshlrev_b32 v251, 13, v4
    v_lshl_add_u32 v251, v2, 4, v251
    v_add_u32 v251, s58, v251
    s_lshl_b32 s58, s5, 7
    s_add_u32 s58, s58, {ST}
    v_lshl_add_u32 v118, v0, 2, s58
    s_lshl_b32 s57, s6, 14
    s_lshl_b32 s58, s7, 4
    s_add_u32 s57, s57, s58
    s_add_u32 s57, s57, {FP}
    v_lshlrev_b32 v116, 8, v0
    v_add_u32 v116, s57, v116
    v_lshrrev_b32 v120, 1, v2
    v_lshl_add_u32 v120, v6, 1, v120
    s_lshl_b32 s57, s4, 5
    s_add_u32 s57, s57, s5
    s_lshl_b32 s57, s57, 3
    v_lshl_add_u32 v120, v120, 1, s57
    v_cmp_eq_u32 s[44:45], 1, v5
    v_cmp_eq_u32 s[46:47], 2, v5
    v_cmp_eq_u32 s[48:49], 3, v5
    v_mov_b32 v10, {R(0)+MODEB}
    s_mov_b32 s58, 0x0c0c0400
    s_mov_b32 s59, 0x04000c0c
    s_mov_b32 s61, 0xf8ffffff
    s_cmp_ge_u32 s3, 2
    s_cbranch_scc1 L_qskip
    global_load_dword v144, v144, s[28:29] sc1 nt
    global_load_ushort v119, v120, s[8:9]
    {'s_waitcnt vmcnt(%d)' % (G('qwait') - 1) if G('qwait') else ''}
    {'s_sleep %d' % G('qdelay') if G('qdelay') else ''}
    s_mov_b32 s57, 0
    L_qpoll:
    """)
    for c in range(8):
        a(f"global_load_dwordx4 v[{32+4*c}:{35+4*c}], v{99 if c < 4 else 94}, s[28:29] offset:{(c&3)*2048-4096} {LF}")
    for c in range(8):
        a(f"s_waitcnt vmcnt({7-c})")
        a(f"v_perm_b32 v{64+2*c}, v{33+4*c}, v{32+4*c}, s58")
        a(f"v_perm_b32 v{65+2*c}, v{35+4*c}, v{34+4*c}, s59")
        a(f"v_bitop3_b32 v{64+2*c}, v{64+2*c}, v{65+2*c}, s39 bitop3:0x56")
    a(f"""
    v_or3_b32 v64, v64, v66, v68
    v_or3_b32 v70, v70, v72, v74
    v_or3_b32 v64, v64, v76, v78
    v_or_b32 v80, v64, v70
    v_and_b32 v64, s61, v80
    v_cmp_ne_u32 vcc, 0, v64
    s_add_u32 s57, s57, 1
    s_mov_b64 exec, vcc
    s_cbranch_execz L_qdone
    s_cmp_lt_u32 s57, {NFAST}
    s_cbranch_scc1 L_qpoll
    buffer_wbl2 sc1
    buffer_inv sc1
    s_waitcnt vmcnt(0)
    s_cmp_lt_u32 s57, {SPIN}
    s_cbranch_scc1 L_qpoll
    L_qdone:
    s_mov_b64 exec, -1
    v_cmp_ne_u32 vcc, 0, v80
    s_movk_i32 s56, 0xff00
    """)
    for i in range(32):
        a(f"v_and_b32 v{32+i}, s56, v{32+i}")
    a("s_or_b32 s56, vcc_lo, vcc_hi")
    for step in (4, 8, 16):
        for base in range(32, 64, 2 * step):
            for h in range(2):
                a(f"v_pk_add_f32 v[{base+2*h}:{base+2*h+1}], v[{base+2*h}:{base+2*h+1}], v[{base+step+2*h}:{base+step+2*h+1}]")
    a(f"""
    v_cvt_pk_bf16_f32 v32, v32, v33
    v_cvt_pk_bf16_f32 v33, v34, v35
    v_mov_b32 v34, s56
    v_mov_b32 v35, s60
    ds_write_b64 v100, v[32:33]
    ds_write_b32 v35, v34 offset:{MODEB}
    """)
    if stamps: a("s_mov_b32 s69, s57")
    stamp("S gathered", 4)
    a(f"""
    L_qskip:
    s_mov_b32 s56, {SCALE}
    s_mov_b32 s57, {LOG2E}
    s_waitcnt lgkmcnt(0)
    s_barrier
    """)
    stamp("B1", 5)
    for j in range(4):
        a(f"ds_read_b128 v[{16+4*j}:{19+4*j}], v105 offset:{64*j}")
    def kread(blk):
        for j in range(4):
            d = 32 + 16 * blk + 4 * j
            a(f"ds_read_b128 v[{d}:{d+3}], v{101+j} offset:{4096*blk}")
    kread(0); kread(1)
    for blk in range(4):
        a(f"s_waitcnt lgkmcnt({[4, 4, 6, 2][blk]})")
        for j in range(4):
            d = 32 + 16 * blk + 4 * j
            ac = 128 + 4 * blk
            a(f"v_mfma_f32_16x16x32_bf16 v[{ac}:{ac+3}], v[{d}:{d+3}], v[{16+4*j}:{19+4*j}], {'0' if j==0 else f'v[{ac}:{ac+3}]'}")
        if blk + 2 < 4: kread(blk + 2)
        if blk == 1:
            a("ds_read_b32 v8, v10")
            a("ds_read_b32 v9, v10 offset:8192")
    for blk in range(1, 4):
        for i in range(4):
            a(f"v_cndmask_b32 v{128+i}, v{128+i}, v{128+4*blk+i}, s[{42+2*blk}:{43+2*blk}]")
    a("""
    v_cvt_pk_bf16_f32 v40, v128, v129
    v_cvt_pk_bf16_f32 v41, v130, v131
    v_lshlrev_b32 v32, 16, v40
    v_and_b32 v33, s62, v40
    v_lshlrev_b32 v34, 16, v41
    v_and_b32 v35, s62, v41
    """)
    for i in range(4): a(f"v_mul_f32 v{32+i}, s56, v{32+i}")
    a("""
    v_cvt_pk_bf16_f32 v40, v32, v33
    v_cvt_pk_bf16_f32 v41, v34, v35
    v_lshlrev_b32 v32, 16, v40
    v_and_b32 v33, s62, v40
    v_lshlrev_b32 v34, 16, v41
    v_and_b32 v35, s62, v41
    v_max3_f32 v40, v32, v33, v34
    v_max_f32 v40, v40, v35
    s_waitcnt lgkmcnt(0)
    v_or_b32 v8, v8, v9
    """)
    reduce4(40, 41, "v_max_f32")
    a("v_readfirstlane_b32 s60, v8")
    for i in range(4): a(f"v_sub_f32 v{32+i}, v{32+i}, v40")
    for i in range(4): a(f"v_mul_f32 v{32+i}, s57, v{32+i}")
    for i in range(4): a(f"v_exp_f32 v{32+i}, v{32+i}")
    a("""
    v_mul_f32 v40, s57, v40
    v_cvt_pk_bf16_f32 v44, v32, v33
    v_cvt_pk_bf16_f32 v45, v34, v35
    ds_write_b64 v106, v[44:45]
    ds_write_b32 v107, v40
    v_add_f32 v32, v32, v33
    v_add_f32 v34, v34, v35
    v_add_f32 v32, v32, v34
    """)
    reduce4(32, 33)
    a("""
    ds_write_b32 v107, v32 offset:16
    s_cmp_eq_u32 s60, 0
    s_cbranch_scc1 L_nowb
    s_waitcnt vmcnt(0)
    buffer_wbl2 sc1
    L_nowb:
    """)
    stamp("S softmax done", 6)
    a("""
    s_waitcnt lgkmcnt(0)
    s_barrier
    """)
    stamp("Bp", 7)
    PF = 148; VF = 180; AC = 212; AL = 244
    def rd(u):
        for q in range(2):
            for e in range(2):
                d = VF + 8 * (u % 4) + 4 * q + 2 * e
                a(f"ds_read_b64_tr_b16 v[{d}:{d+1}], v{248+q} offset:{8192*u+4096*e}")
    def pvm(u):
        for q in range(2):
            d = VF + 8 * (u % 4) + 4 * q
            ac = AC + 8 * (u >> 1) + 4 * q
            a(f"v_mfma_f32_16x16x32_bf16 v[{ac}:{ac+3}], v[{d}:{d+3}], v[{PF+4*u}:{PF+3+4*u}], {'0' if u % 2 == 0 else f'v[{ac}:{ac+3}]'}")
    a("""
    ds_read_b128 v[40:43], v122
    ds_read_b128 v[44:47], v122 offset:16
    """)
    for u in range(8):
        a(f"ds_read_b128 v[{PF+4*u}:{PF+3+4*u}], v250 offset:{256*u}")
    a("""
    s_waitcnt lgkmcnt(8)
    v_max3_f32 v48, v40, v41, v42
    v_max_f32 v48, v48, v43
    """)
    for i in range(4): a(f"v_sub_f32 v{40+i}, v{40+i}, v48")
    for i in range(4): a(f"v_exp_f32 v{40+i}, v{40+i}")
    a("""
    v_mul_f32 v49, v40, v44
    v_fmac_f32 v49, v41, v45
    v_fmac_f32 v49, v42, v46
    v_fmac_f32 v49, v43, v47
    v_log_f32 v50, v49
    v_rcp_f32 v49, v49
    s_cmp_lg_u32 s3, 3
    s_cbranch_scc1 L_nostat
    v_add_f32 v52, v50, v48
    s_mov_b64 exec, 15
    global_store_dword v118, v52, s[28:29]
    s_mov_b64 exec, -1
    L_nostat:
    s_waitcnt lgkmcnt(0)
    """)
    assert nA <= 4 and nB - nA <= 4 and 8 - nB <= 4 and nA >= 2
    for u in range(nA): rd(u)
    for i in range(4): a(f"v_mul_f32 v{AL+i}, v{40+i}, v49")
    for u in range(nA):
        a(f"s_waitcnt lgkmcnt({4*(nA-1-u)})")
        pvm(u)
    done = 0
    def combine(upto):
        nonlocal done
        for w_ in range(done, upto):
            for i in range(8):
                a(f"v_mul_f32 v{AC+i}, v{AC+i}, v{AL}" if w_ == 0 else f"v_fmac_f32 v{AC+i}, v{AC+8*w_+i}, v{AL+w_}")
        done = upto
    combine(nA // 2)
    a("s_barrier")
    for u in range(nA, nB): rd(u)
    for u in range(nA, nB):
        a(f"s_waitcnt lgkmcnt({4*(nB-1-u)})")
        pvm(u)
    combine(nB // 2)
    a("s_cmp_eq_u32 s60, 0")
    a("s_barrier")
    stamp("BB", 8)
    for u in range(nB, 8): rd(u)
    for u in range(nB, 8):
        a(f"s_waitcnt lgkmcnt({4*(7-u)})")
        pvm(u)
    a("s_mov_b64 exec, s[64:65]")
    for h in range(2):
        for w_ in range(done, 4):
            for i in range(4 * h, 4 * h + 4): a(f"v_fmac_f32 v{AC+i}, v{AC+8*w_+i}, v{AL+w_}")
        for i in range(2 * h, 2 * h + 2):
            a(f"v_cvt_pk_bf16_f32 v{40+i}, v{AC+2*i}, v{AC+1+2*i}")
    a("""
    global_store_dwordx4 v251, v[40:43], s[28:29]
    s_mov_b64 exec, -1
    """)
    stamp("o published", 9)
    a("""
    s_cbranch_scc1 L_sbc
    s_waitcnt vmcnt(0)
    L_sbc:
    s_barrier
    s_cmp_eq_u32 s3, 0
    s_cbranch_scc1 L_final
    """)
    a(EXIT)
    a(f"""
    L_final:
    {'s_endpgm' if G('cut') else ''}
    s_mov_b32 s57, 0
    v_lshlrev_b32 v28, 16, v119
    v_mov_b32 v33, s35
    s_movk_i32 s56, 0xff00
    s_mov_b32 s44, 0x00010001
    s_mov_b32 s45, 0x00010001
    s_barrier
    """)
    stamp("fpoll start", 11)
    a(f"""
    L_fpoll:
    global_load_dwordx4 v[16:19], v116, s[28:29] sc1
    s_waitcnt vmcnt(0)
    v_perm_b32 v24, v17, v16, s58
    v_perm_b32 v25, v19, v18, s59
    v_or_b32 v24, v24, v25
    v_cmp_ne_u32 vcc, s35, v24
    s_add_u32 s57, s57, 1
    s_mov_b64 exec, vcc
    s_cbranch_execz L_fdone
    s_cmp_lt_u32 s57, {SPIN}
    s_cbranch_scc1 L_fpoll
    L_fdone:
    s_mov_b64 exec, -1
    """)
    if stamps: a("s_mov_b32 s67, s57")
    stamp("fdone")
    for i in range(4): a(f"v_and_b32 v{16+i}, s56, v{16+i}")
    a("""
    v_permlane32_swap_b32 v16, v17
    v_permlane32_swap_b32 v18, v19
    v_add_f32 v16, v16, v17
    v_add_f32 v18, v18, v19
    v_permlane16_swap_b32 v16, v18
    v_add_f32 v16, v16, v18
    """)
    for m in ("quad_perm:[1,0,3,2]", "quad_perm:[2,3,0,1]", "row_ror:4", "row_ror:8"):
        dpp("v_add_f32", 16, m)
    a(f"""
    v_add_f32 v16, v16, v28
    v_cvt_pk_bf16_f32 v16, v16, v16
    s_mov_b64 exec, s[44:45]
    global_store_short v120, v16, s[26:27]
    s_cmp_lg_u32 s2, 0
    s_cbranch_scc1 {'L_fin0' if stamps else 'L_end'}
    s_mov_b64 exec, 1
    v_mov_b32 v19, 0
    global_store_dword v19, v33, s[30:31]
    """)
    if stamps:
        a("L_fin0:")
        a("s_mov_b64 exec, -1")
        stamp("out stored", 13)
        a("L_fin:")
        a("s_getreg_b32 s66, hwreg(HW_REG_XCC_ID)")
        a("v_mov_b32 v32, s70")
        for i in range(14):
            a(f"v_mov_b32 v{33+i}, s{72+2*i}")
        a("v_mov_b32 v47, s66")
        a("v_mov_b32 v48, s69")
        a("v_mov_b32 v49, s68")
        a("v_mov_b32 v50, s67")
        a("v_mov_b32 v51, s100")
        a(f"""
        s_lshl_b32 s58, s2, 10
        s_lshl_b32 s59, s3, 7
        s_add_u32 s58, s58, s59
        s_add_u32 s58, s58, {STAMP}
        v_mov_b32 v3, s58
        s_mov_b64 exec, 1
        """)
        for j in range(5):
            a(f"global_store_dwordx4 v3, v[{32+4*j}:{35+4*j}], s[30:31] offset:{16*j}")
    a("L_end:")
    if G('probe'):
        a(f"""
        s_cmp_eq_u32 s74, 0
        s_cbranch_scc1 L_padd
        s_cmp_ge_u32 s3, {G('probew', 8)}
        s_cbranch_scc1 L_padd
        s_cmp_lt_u32 s3, {G('probel', 0)}
        s_cbranch_scc1 L_padd
        s_sub_u32 s74, s74, s76
        {'s_sub_u32 s74, 1200, s74' if G('pinv') else ''}
        s_lshl_b32 s74, s74, 3
        s_min_u32 s74, s74, 20000
        s_add_u32 s74, s74, 1200
        L_pad:
        s_memrealtime s[72:73]
        s_waitcnt lgkmcnt(0)
        s_sub_u32 s72, s72, s70
        s_cmp_lt_u32 s72, s74
        s_cbranch_scc1 L_pad
        L_padd:
        """)
    a("s_endpgm")
    a.raw('.section .rodata,"a"')
    a.raw(".p2align 6")
    a.raw(f".amdhsa_kernel {NAME}_kernel")
    a.raw("  .amdhsa_next_free_vgpr 256")
    a.raw("  .amdhsa_next_free_sgpr 102")
    a.raw("  .amdhsa_accum_offset 256")
    a.raw("  .amdhsa_group_segment_fixed_size 0")
    a.raw("  .amdhsa_kernarg_size 96")
    a.raw("  .amdhsa_user_sgpr_count 2")
    a.raw("  .amdhsa_user_sgpr_kernarg_segment_ptr 1")
    a.raw("  .amdhsa_system_sgpr_workgroup_id_x 1")
    a.raw("  .amdhsa_float_denorm_mode_32 3")
    a.raw(".end_amdhsa_kernel")
    return a.text()

def parse_opt(s):
    opt = {}
    for kv in s.split(","):
        if kv:
            k, _, v = kv.partition("=")
            opt[k] = (int(v) if v.lstrip('-').isdigit() else v.replace('+', ' ')) if v else 1
    return opt

if __name__ == "__main__":
    ap = argparse.ArgumentParser()
    ap.add_argument("-o", default="k.s")
    ap.add_argument("--stamps", action="store_true")
    ap.add_argument("--opt", default="")
    args = ap.parse_args()
    open(args.o, "w").write(gen(args.stamps, parse_opt(args.opt)))
```

```python
import sys, argparse
from asmgen import Asm
NAME = "parallel_sum__sliding_block_cached__glu_gated_reglu__decode"

EX = 0x40000
QP = 0x0; GP = 0x8000; OP = 0x10000; FP = 0x20000; ST = 0x28000; FL = 0x29000
STAMP = 0x1000000
LW = 131072
def R(j): return LW + 8192 * j + 6144
MLB = R(2); PB = R(3); MODEB = 512
SPIN0 = 40000
LOG2E = 0x3fb8aa3b
SCALE = 0x3db504f3
DPPM = "row_mask:0xf bank_mask:0xf"
EINC = 0x08010101

HEADER = open("cdna_kernels/%s.s.ref" % NAME).read().split("; Override launch")[0]

def gen(stamps=False, opt=None):
    opt = opt or {}
    a = Asm()
    G = opt.get
    SPIN = G('spin', SPIN0); NFAST = G('nfast', 12)
    rotmul = G('rotmul', 37)
    kpre = G('kpre', 4); gpre = G('gpre', 2)
    vpre = G('vpre', 9); tp = G('tp', 13); nA = G('nA', 4); nB = G('nB', 6); sgp = G('sgp', 4)
    kc = G('kc', 10)
    ADAPT = G('adapt', 1)
    WK = (G('kb', 7), G('km', 6), G('ks', 5)); WV = (G('vb', 8), G('vm', 7), G('vs', 5))
    LF = G('lf', 'sc1 nt'); TF = G('tf', 'sc1')
    diag = stamps or G('probe') or G('padto')
    nst = [0]; ntw = [0]
    def stamp(name, i=None):
        for key, reg in (('probe', 74), ('probe0', 76)):
            if G(key) == name.replace(' ', '_'):
                a(f"s_memrealtime s[{reg}:{reg+1}]"); a("s_waitcnt lgkmcnt(0)")
        if not stamps or i is None: return
        a(f"s_memrealtime s[{72+2*i}:{73+2*i}]")
        a("s_waitcnt lgkmcnt(0)")
    def TW(w):
        if not ADAPT: return f"s_waitcnt vmcnt({w[1]-1})"
        ntw[0] += 1
        return f"""s_waitcnt vmcnt({w[0]-1})
        s_bitcmp1_b32 s68, 0
        s_cbranch_scc0 L_tw{ntw[0]}
        s_waitcnt vmcnt({w[1]-1})
        s_bitcmp1_b32 s68, 1
        s_cbranch_scc0 L_tw{ntw[0]}
        s_waitcnt vmcnt({w[2]-1})
        L_tw{ntw[0]}:"""
    def dpp(op, v, m): a(f"{op}_dpp v{v}, v{v}, v{v} {m} {DPPM}")
    def reduce_g(v, t, op="v_add_f32"):
        a(f"v_mov_b32 v{t}, v{v}")
        a(f"v_permlane16_swap_b32 v{v}, v{t}")
        a(f"{op} v{v}, v{v}, v{t}")
        a(f"v_mov_b32 v{t}, v{v}")
        a(f"v_permlane32_swap_b32 v{v}, v{t}")
        a(f"{op} v{v}, v{v}, v{t}")
    def reduce5(v, t, op="v_add_f32"):
        dpp(op, v, "quad_perm:[2,3,0,1]"); dpp(op, v, "row_ror:4"); dpp(op, v, "row_ror:8")
        reduce_g(v, t, op)
    def reduce4(v, t, op="v_add_f32"):
        dpp(op, v, "row_ror:4"); dpp(op, v, "row_ror:8")
        reduce_g(v, t, op)
    EXIT = "s_branch L_fin" if stamps else ("s_branch L_end" if diag else "s_endpgm")

    a.raw(HEADER.rstrip())
    a.raw("; @launch grid=(256,1,1) block=(512,1,1) lds=163840")
    a.raw('.amdgcn_target "amdgcn-amd-amdhsa--gfx950"')
    a.raw(".text")
    a.raw(f".globl {NAME}_kernel")
    a.raw(".p2align 12")
    a.raw(".p2align 8")
    a.raw(f".type {NAME}_kernel,@function")
    a.raw(f"{NAME}_kernel:")
    if G('late'):
        a(f"""
        s_getreg_b32 s4, hwreg(HW_REG_XCC_ID)
        s_and_b32 s4, s4, 7
        s_cmp_lg_u32 s4, {G('latex', 2)}
        s_cbranch_scc1 L_nolate
        s_memrealtime s[6:7]
        L_late:
        s_memrealtime s[4:5]
        s_waitcnt lgkmcnt(0)
        s_sub_u32 s4, s4, s6
        s_cmp_lt_u32 s4, {G('late')}
        s_cbranch_scc1 L_late
        L_nolate:
        """)
    if diag: a("s_memrealtime s[70:71]")
    if G('probe'):
        a("s_mov_b32 s74, 0"); a("s_mov_b32 s3, 99")
        if not G('probe0'): a("s_memrealtime s[76:77]")
    a(f"""
    s_cmp_ge_u32 s2, 256
    s_cbranch_scc1 L_end
    {'s_memrealtime s[52:53]' if ADAPT else ''}
    s_load_dwordx16 s[8:23], s[0:1], 0
    s_load_dwordx8 s[24:31], s[0:1], 64
    v_lshrrev_b32 v3, 6, v0
    v_and_b32 v0, 63, v0
    v_readfirstlane_b32 s3, v3
    s_getpc_b64 s[56:57]
    s_lshr_b32 s5, s2, 3
    s_and_b32 s7, s5, 15
    s_lshl_b32 s58, s5, 3
    s_add_u32 s58, s58, s3
    s_lshl_b32 s58, s58, 6
    s_min_u32 s58, s58, L_end-{NAME}_kernel-128
    s_load_dword s39, s[56:57], s58
    v_and_b32 v1, 15, v0
    v_lshrrev_b32 v2, 4, v0
    s_and_b32 s4, s2, 7
    s_lshr_b32 s6, s5, 4
    s_lshr_b32 s32, s5, 2
    s_and_b32 s33, s5, 3
    s_lshl_b32 s34, s4, 3
    s_add_u32 s34, s34, s32
    s_lshl_b32 s66, s4, 18
    s_add_u32 s66, s66, {EX}
    v_lshrrev_b32 v6, 3, v0
    v_and_b32 v7, 1, v2
    v_lshlrev_b32 v7, 1, v7
    v_and_b32 v8, 7, v0
    v_xor_b32 v7, v7, v8
    v_lshlrev_b32 v7, 4, v7
    v_lshl_add_u32 v28, v6, 13, v7
    v_xor_b32 v29, 64, v28
    s_and_b32 s46, s32, 1
    s_lshl_b32 s57, s33, 1
    s_add_u32 s46, s46, s57
    s_lshl_b32 s57, s46, 19
    s_and_b32 s56, s3, 3
    s_lshl_b32 s58, s56, 17
    s_add_u32 s57, s57, s58
    s_and_b32 s58, s34, 0xfe
    s_lshr_b32 s60, s3, 2
    s_add_u32 s58, s58, s60
    s_lshl_b32 s58, s58, 7
    s_add_u32 s57, s57, s58
    s_add_u32 s58, s57, 0x10000
    s_lshl_b32 s60, s3, 11
    s_add_u32 s60, s60, {LW}
    s_mov_b32 s50, 0x400000
    s_mov_b32 s51, 0x20000
    s_mov_b32 s43, 0x20000
    s_cmp_ge_u32 s3, 4
    s_cbranch_scc1 L_loader
    """)
    WQ = """
    s_add_u32 s28, s30, s66
    s_addc_u32 s29, s31, 0
    s_mov_b32 s48, s14
    s_mov_b32 s49, s15
    s_mov_b32 m0, s60
    s_add_u32 s60, s60, 1024
    buffer_load_dwordx4 v28, s[48:51], s57 offen nt lds
    s_mov_b32 m0, s60
    s_nop 0
    buffer_load_dwordx4 v29, s[48:51], s58 offen nt lds
    """
    FF = """
    s_mul_i32 s63, s4, 7
    s_add_u32 s63, s63, 1
    s_and_b32 s63, s63, 0xfe
    s_add_u32 s63, s63, s32
    s_lshr_b32 s57, s32, 1
    s_and_b32 s62, s4, 1
    s_add_u32 s57, s57, s62
    s_cmp_lt_u32 s57, 4
    s_cselect_b32 s54, 0x1c0000, 0
    """
    XL = """
    global_load_dwordx4 v[8:11], v4, s[8:9]
    global_load_dwordx4 v[12:15], v4, s[8:9] offset:16
    global_load_dwordx4 v[16:19], v5, s[8:9]
    """
    GUP = f"""
    s_mov_b32 m0, s60
    s_add_u32 s60, s60, 1024
    buffer_load_dwordx4 v31, s[40:43], s56 offen nt lds
    s_add_u32 s56, s56, {8*3584}
    s_mov_b32 m0, s60
    s_add_u32 s60, s60, 1024
    buffer_load_dwordx4 v30, s[40:43], s56 offen nt lds
    s_add_u32 s56, s56, {8*3584}
    """
    LEAD = """
    s_lshl_b32 s62, s5, 2
    s_add_u32 s62, s62, s3
    s_cmp_lg_u32 s62, 3
    s_cbranch_scc1 L_nolead
    s_lshl_b32 s62, s4, 5
    s_or_b32 s52, s52, 1
    v_mov_b32 v20, s62
    v_mov_b32 v21, s52
    global_store_dword v20, v21, s[28:29] sc1
    L_nolead:
    """ if ADAPT else ""
    a(f"""
    v_and_b32 v3, 1, v0
    v_lshlrev_b32 v3, 10, v3
    v_lshrrev_b32 v4, 1, v0
    v_lshl_add_u32 v4, v4, 5, v3
    v_lshrrev_b32 v5, 3, v1
    v_lshl_add_u32 v5, v5, 6, v3
    v_lshl_add_u32 v5, v2, 4, v5
    s_lshl_b32 s61, s46, 7
    v_add_u32 v5, s61, v5
    s_lshl_b32 s59, s7, 7
    s_lshl_b32 s62, s6, 15
    s_add_u32 s62, s62, {OP}
    s_lshl_b32 s64, s6, 11
    s_add_u32 s64, s64, {ST}
    s_cmp_eq_u32 s3, 0
    s_cselect_b32 s62, s62, s64
    s_cselect_b32 s64, 60, 0
    s_add_u32 s62, s62, s59
    v_and_b32 v20, s64, v0
    v_lshlrev_b32 v20, 9, v20
    v_and_b32 v21, 3, v0
    v_lshlrev_b32 v21, 4, v21
    v_add3_u32 v144, s62, v20, v21
    v_mov_b32 v24, -1
    v_mov_b32 v25, -1
    v_mov_b32 v26, -1
    v_mov_b32 v27, -1
    s_lshl_b32 s61, s3, 13
    s_add_u32 s61, s61, {LW+8192}
    s_cmp_lt_u32 s3, 2
    s_waitcnt lgkmcnt(0)
    {'s_memrealtime s[100:101]' if stamps else ''}
    s_cbranch_scc0 L_s23
    {XL}
    {WQ}
    global_store_dwordx4 v144, v[24:27], s[28:29]
    s_load_dword s35, s[30:31], 0
    s_barrier
    s_branch L_service
    L_s23:
    {LEAD}
    {WQ}
    s_load_dword s35, s[30:31], 0
    s_barrier
    {FF}
    v_mul_u32_u24 v30, 3584, v6
    v_add_u32 v31, v30, v7
    v_xor_b32 v7, 64, v7
    v_add_u32 v30, v30, v7
    s_mul_i32 s56, s46, {64*3584}
    s_lshr_b32 s59, s63, 1
    s_lshl_b32 s59, s59, 7
    s_add_u32 s56, s56, s59
    s_mov_b32 s42, s54
    s_cmp_eq_u32 s3, 2
    s_cselect_b32 s40, s20, s22
    s_cselect_b32 s41, s21, s23
    s_sub_u32 s60, s61, 8192
    {XL}
    s_add_u32 s62, s60, {2048*gpre}
    L_tloop:
    {GUP}
    s_cmp_lt_u32 s60, s62
    s_cbranch_scc1 L_tloop
    s_waitcnt vmcnt({3 + 2*gpre})
    s_barrier
    """)
    if gpre < 4:
        a(f"""
        L_tloop2:
        s_waitcnt vmcnt({2*gpre-2})
        {GUP}
        s_cmp_lt_u32 s60, s61
        s_cbranch_scc1 L_tloop2
        """)
    a("s_branch L_service")

    a("L_loader:")
    def kvloop(lbl, vreg, srd, end, w):
        a(f"""
        {lbl}:
        {TW(w) if w else ''}
        s_mov_b32 m0, s60
        s_add_u32 s60, s60, 4096
        buffer_load_dwordx4 v{vreg}, s[{srd}:{srd+3}], s59 offen nt lds
        s_add_u32 s59, s59, 4096
        s_and_b32 s59, s59, 0xffff
        s_cmp_lt_u32 s60, {end}
        s_cbranch_scc1 {lbl}
        """)
    a(f"""
    s_lshl_b32 s36, s56, 2
    v_add_u32 v3, s36, v2
    v_xor_b32 v4, v3, v1
    v_lshlrev_b32 v4, 4, v4
    v_lshl_add_u32 v4, v2, 8, v4
    s_lshl_b32 s36, s6, 3
    s_add_u32 s36, s36, s4
    s_lshl_b32 s36, s36, 23
    s_lshl_b32 s59, s7, 16
    s_add_u32 s36, s36, s59
    s_add_u32 s36, s36, 0x700000
    s_mul_i32 s59, s2, {rotmul}
    s_add_u32 s59, s59, s56
    s_and_b32 s59, s59, 63
    s_lshl_b32 s59, s59, 10
    s_mov_b32 s42, 0x10000
    v_lshlrev_b32 v9, 5, v8
    s_waitcnt lgkmcnt(0)
    s_mov_b64 s[64:65], s[28:29]
    s_mov_b32 s67, s52
    """)
    a(f"""
    {WQ}
    s_add_u32 s40, s10, s36
    s_addc_u32 s41, s11, 0
    s_lshl_b32 s60, s56, 10
    s_barrier
    """)
    kvloop("L_kloop0", 4, 40, 4096 * kpre, None)
    a(f"""
    s_load_dword s35, s[30:31], 0
    s_add_u32 s44, s12, s36
    s_addc_u32 s45, s13, 0
    s_mov_b32 s46, 0x10000
    s_mov_b32 s47, 0x20000
    s_mov_b32 s48, s16
    s_mov_b32 s49, s17
    s_mov_b32 s52, s24
    s_mov_b32 s53, s25
    s_mov_b32 s55, 0x20000
    {FF}
    v_and_b32 v5, 7, v3
    v_lshlrev_b32 v5, 1, v5
    v_xor_b32 v5, v5, v1
    v_lshlrev_b32 v5, 4, v5
    v_lshl_add_u32 v3, v3, 10, v5
    v_lshl_add_u32 v5, v2, 8, v5
    s_lshl_b32 s57, s33, 8
    s_lshl_b32 s61, s34, 16
    s_add_u32 s61, s61, s57
    s_lshl_b32 s63, s63, 15
    s_add_u32 s63, s63, s57
    v_and_b32 v13, 3, v1
    v_lshrrev_b32 v14, 2, v1
    v_and_b32 v15, 1, v2
    v_and_b32 v7, 1, v1
    s_and_b32 s36, s56, 1
    v_lshlrev_b32 v108, 10, v14
    v_and_b32 v8, 2, v1
    v_lshl_add_u32 v108, v8, 8, v108
    v_lshl_add_u32 v108, v7, 6, v108
    v_lshl_add_u32 v108, v2, 4, v108
    s_lshr_b32 s37, s32, 1
    s_lshl_b32 s57, s37, 13
    s_and_b32 s58, s32, 1
    s_lshl_b32 s58, s58, 7
    s_add_u32 s57, s57, s58
    s_lshl_b32 s58, s36, 8
    s_add_u32 s57, s57, s58
    s_add_u32 s57, s57, {GP+2048}
    v_add_u32 v108, s57, v108
    s_lshl_b32 s58, s36, 15
    s_lshl_b32 s57, s32, 12
    s_add_u32 s58, s58, s57
    s_add_u32 s58, s58, {OP}
    v_lshlrev_b32 v123, 7, v1
    v_lshl_add_u32 v109, v2, 4, v123
    v_add_u32 v109, s58, v109
    s_lshl_b32 s58, s36, 11
    s_add_u32 s57, s58, {FL}
    v_add_u32 v123, s57, v123
    s_lshl_b32 s57, s37, 2
    s_add_u32 s58, s58, s57
    s_add_u32 s58, s58, {ST}
    v_lshl_add_u32 v110, v2, 2, v13
    v_lshlrev_b32 v110, 7, v110
    v_add_u32 v110, s58, v110
    s_lshl_b32 s58, s5, 7
    s_add_u32 s58, s58, {FL}
    v_mov_b32 v118, s58
    v_lshl_add_u32 v8, v15, 2, v14
    s_lshl_b32 s58, s56, 1
    s_and_b32 s58, s58, 4
    v_xor_b32 v8, s58, v8
    v_lshlrev_b32 v8, 5, v8
    v_lshl_add_u32 v111, v14, 8, v8
    v_lshl_add_u32 v111, v13, 3, v111
    v_lshl_add_u32 v111, v2, 13, v111
    v_add_u32 v111, {LW}, v111
    v_xor_b32 v112, 32, v111
    v_xor_b32 v113, 64, v111
    v_xor_b32 v114, 0x60, v111
    v_lshrrev_b32 v115, 1, v2
    v_lshl_add_u32 v115, v15, 1, v115
    v_lshl_add_u32 v115, v115, 4, v1
    v_lshlrev_b32 v115, 2, v115
    s_lshl_b32 s58, s36, 20
    s_lshl_b32 s57, s33, 18
    s_add_u32 s58, s58, s57
    s_lshr_b32 s57, s56, 1
    s_lshl_b32 s57, s57, 14
    s_add_u32 s58, s58, s57
    s_lshl_b32 s57, s34, 8
    s_add_u32 s58, s58, s57
    s_add_u32 s58, s58, {FP+EX}
    v_add_u32 v115, s58, v115
    v_lshlrev_b32 v117, 3, v13
    v_mov_b32 v121, 0xff
    v_mov_b32 v10, {R(0)+MODEB}
    s_mov_b32 s36, 0x0c0c0400
    s_mov_b32 s37, 0x04000c0c
    s_mov_b32 s38, 0xf8ffffff
    s_mov_b32 s62, 0xffff0000
    s_waitcnt vmcnt({kpre})
    """)
    if ADAPT:
        a(f"""
        global_load_dword v12, v9, s[64:65] sc1
        s_mov_b32 s68, 1
        s_barrier
        """)
        kvloop("L_kloop1", 4, 40, 4096 * kc, WK)
        TH = G('th', 60)
        a(f"""
        s_waitcnt vmcnt({kc - kpre})
        v_subrev_u32 v11, s67, v12
        v_cmp_eq_u32 vcc, 0, v12
        v_cmp_lt_i32 s[14:15], {TH}, v11
        v_add_u32 v11, {TH}, v11
        v_cmp_gt_i32 s[18:19], 0, v11
        s_or_b32 s57, s14, vcc_lo
        s_andn2_b32 s58, s18, vcc_lo
        s_and_b32 s57, s57, 0xff
        s_cselect_b32 s68, 3, 1
        s_and_b32 s58, s58, 0xff
        s_bcnt1_i32_b32 s58, s58
        s_cmp_lt_u32 s58, {G('c1', 4)}
        s_cbranch_scc1 L_mode
        s_lshr_b32 s68, s68, 1
        L_mode:
        """)
        if G('oracle'):
            a(f"""
            s_getreg_b32 s57, hwreg(HW_REG_XCC_ID)
            s_and_b32 s57, s57, 7
            s_cmp_eq_u32 s57, {G('latex', 2)}
            s_cselect_b32 s68, 0, 3
            """)
    else:
        a("s_barrier")
    kvloop("L_kloop", 4, 40, 65536, WK)
    kvloop("L_vloop", 5, 44, 65536 + 4096 * vpre, WV)
    stamp("L pre issue", 0)
    a(f"""
    s_waitcnt vmcnt({vpre}) lgkmcnt(0)
    s_add_u32 s35, s35, {EINC}
    s_lshl_b32 s57, s56, 13
    s_add_u32 s57, s57, {LW}
    v_lshrrev_b32 v117, v117, s35
    v_mov_b32 v33, s35
    """)
    stamp("L K landed", 1)
    a("s_barrier")
    stamp("B1", 5)
    log = [f"V{t}" for t in range(vpre)]
    def younger(name): return len(log) - 1 - log.index(name)
    GG = f"""
    global_load_dwordx4 v[124:127], v108, s[28:29] offset:-2048 {LF}
    global_load_dwordx4 v[28:31], v108, s[28:29] offset:2048 {LF}
    """
    SG = f"global_load_dword v24, v110, s[28:29] {TF}"
    OG = f"""
    global_load_dwordx4 v[16:19], v109, s[28:29] {TF}
    global_load_dwordx4 v[20:23], v109, s[28:29] offset:2048 {TF}
    """
    a("""
    ds_read_b32 v8, v10
    ds_read_b32 v9, v10 offset:8192
    """)
    for t in range(2):
        a(f"""
        s_add_u32 m0, s57, {(4+t)*1024}
        {TW(WV)}
        buffer_load_dwordx4 v3, s[52:55], s63 offen nt lds
        s_add_u32 s63, s63, 16384
        """)
        log.append(f"D{t}")
    gv = G('gv', vpre + 1)
    if gv > vpre:
        kvloop("L_vloop1", 5, 44, 65536 + 4096 * gv, WV); log += [f"V{t}" for t in range(vpre, gv)]
    a(GG); log += ["G0", "G1"]
    kvloop("L_vloop2", 5, 44, 65536 + 4096 * tp, WV); log += [f"V{t}" for t in range(gv, tp)]
    a(f"s_waitcnt vmcnt({younger(f'V{2*nA-1}')}) lgkmcnt(0)")
    a("v_or_b32 v8, v8, v9")
    stamp("L at Bp", 2)
    a("s_barrier")
    stamp("Bp", 7)
    a("v_readfirstlane_b32 s69, v8")
    if tp < 16:
        kvloop("L_vloop3", 5, 44, 131072, WV); log += [f"V{t}" for t in range(tp, 16)]
    for t in range(4):
        if t == sgp: a(SG); log.append("S")
        a(f"""
        s_add_u32 m0, s57, {t*1024}
        {TW(WV)}
        buffer_load_dwordx4 v3, s[48:51], s61 offen nt lds
        s_add_u32 s61, s61, 16384
        """)
        log.append(f"W{t}")
    if sgp == 4: a(SG); log.append("S")
    assert log.index(f"V{2*nB-1}") > log.index("G1")
    a(f"s_waitcnt vmcnt({younger(f'V{2*nB-1}')})")
    stamp("L at Bq", 3)
    a("s_barrier")
    for q in range(4):
        for e in range(2):
            d = 80 + 4 * q + 2 * e
            a(f"ds_read_b64_tr_b16 v[{d}:{d+1}], v{111+q} offset:{(4+e)*1024}")
    a(f"""
    s_mov_b32 s63, 0
    L_gcheck:
    v_perm_b32 v48, v125, v124, s36
    v_perm_b32 v49, v127, v126, s37
    v_perm_b32 v50, v29, v28, s36
    v_perm_b32 v51, v31, v30, s37
    v_or_b32 v48, v48, v49
    v_or_b32 v50, v50, v51
    v_xor_b32 v48, s35, v48
    v_xor_b32 v50, s35, v50
    v_or_b32 v48, v48, v50
    v_and_b32 v48, s38, v48
    v_cmp_ne_u32 vcc, 0, v48
    s_movk_i32 s58, 0xff00
    s_cbranch_vccnz L_gpoll
    L_gdone:
    """)
    for i in range(4): a(f"v_and_b32 v{124+i}, s58, v{124+i}")
    for i in range(4): a(f"v_and_b32 v{28+i}, s58, v{28+i}")
    a("v_pk_add_f32 v[124:125], v[124:125], v[28:29]")
    a("v_pk_add_f32 v[126:127], v[126:127], v[30:31]")
    a("v_cmp_eq_u32 s[44:45], 0, v1")
    a("v_cmp_eq_u32 s[46:47], 1, v1")
    for m in ("row_ror:4", "row_ror:8"):
        for i in range(4): dpp("v_add_f32", 124 + i, m)
    a("""
    v_cvt_pk_bf16_f32 v48, v124, v125
    v_cvt_pk_bf16_f32 v49, v126, v127
    v_lshlrev_b32 v124, 16, v48
    v_and_b32 v125, s62, v48
    v_lshlrev_b32 v126, 16, v49
    v_and_b32 v127, s62, v49
    """)
    for i in range(4): a(f"v_max_f32 v{48+i}, 0, v{124+i}")
    for i in range(4): a(f"v_mul_f32_dpp v{48+i}, v{124+i}, v{48+i} quad_perm:[2,3,0,1] {DPPM}")
    a("""
    v_cvt_pk_bf16_f32 v48, v48, v49
    v_cvt_pk_bf16_f32 v49, v50, v51
    v_cndmask_b32 v28, 0, v48, s[44:45]
    v_cndmask_b32 v29, 0, v49, s[44:45]
    v_cndmask_b32 v30, 0, v48, s[46:47]
    v_cndmask_b32 v31, 0, v49, s[46:47]
    s_waitcnt lgkmcnt(0)
    """)
    for q in range(4):
        a(f"v_mfma_f32_16x16x32_bf16 v[{128+4*q}:{131+4*q}], v[28:31], v[{80+4*q}:{83+4*q}], 0")
    a(f"s_waitcnt vmcnt({younger('V15')})")
    stamp("L V landed", 4)
    a("s_barrier")
    stamp("BB", 8)
    a("s_mov_b32 s44, 0x11111111")
    a("s_mov_b32 s45, 0x11111111")
    for q in range(4):
        a(f"v_add_f32 v{128+4*q}, v{128+4*q}, v{129+4*q}")
    a(f"""
    v_permlane32_swap_b32 v128, v132
    v_permlane32_swap_b32 v136, v140
    v_add_f32 v128, v128, v132
    v_add_f32 v136, v136, v140
    s_mov_b32 s63, 0
    v_permlane16_swap_b32 v128, v136
    v_add_f32 v36, v128, v136
    s_waitcnt vmcnt({younger('S')})
    """)
    def weights():
        a(f"v_max_f32_dpp v124, v24, v24 quad_perm:[1,0,3,2] {DPPM}")
        dpp("v_max_f32", 124, "quad_perm:[2,3,0,1]")
        reduce_g(124, 125, "v_max_f32")
        a(f"""
        v_sub_f32 v8, v24, v124
        v_exp_f32 v8, v8
        v_add_f32_dpp v9, v8, v8 quad_perm:[1,0,3,2] {DPPM}
        """)
        dpp("v_add_f32", 9, "quad_perm:[2,3,0,1]")
        reduce_g(9, 125)
        a("v_rcp_f32 v9, v9")
        a("v_mul_f32 v8, v8, v9")
        for i in range(4): a(f"v_mov_b32_dpp v{10+i}, v8 quad_perm:[{i},{i},{i},{i}] {DPPM}")
    WPRE = G('wpre', 0)
    a("v_cmp_eq_u32 vcc, -1, v24")
    if WPRE: weights()
    a("s_cmp_eq_u32 s69, 0")
    a("s_waitcnt vmcnt(0)")
    stamp("L wo landed", 9)
    a("""
    s_barrier
    s_cbranch_scc0 L_slow
    """)
    stamp("BC", 10)
    if G('cut'): a("s_endpgm")
    a("L_fast2:")
    a("s_cbranch_vccz L_nosg")
    a(SG)
    a("L_nosg:")
    a(OG)
    for ks in range(2):
        for q in range(4):
            for e in range(2):
                d = 48 + 16 * ks + 4 * q + 2 * e
                a(f"ds_read_b64_tr_b16 v[{d}:{d+1}], v{111+q} offset:{(2*ks+e)*1024}")
    a("s_cbranch_vccnz L_spoll1")
    if not WPRE:
        a("L_sdone:")
        weights()
    a(f"""
    s_branch L_ochk
    L_opoll:
    {OG}
    L_ochk:
    s_waitcnt vmcnt(0)
    v_max3_u32 v124, v16, v17, v18
    v_max3_u32 v125, v19, v20, v21
    v_max3_u32 v124, v124, v22, v23
    v_max_u32 v124, v124, v125
    v_cmp_eq_u32 vcc, -1, v124
    s_add_u32 s63, s63, 1
    s_mov_b64 exec, vcc
    s_cbranch_execz L_odone
    s_cmp_lt_u32 s63, {SPIN}
    s_cbranch_scc1 L_opoll
    L_odone:
    s_mov_b64 exec, -1
    s_waitcnt lgkmcnt(0)
    """)
    if stamps: a("s_mov_b32 s67, s63")
    stamp("o gathered", 11)
    for q in range(4):
        for ks in range(2):
            a(f"v_mfma_f32_16x16x32_bf16 v[{128+4*q}:{131+4*q}], v[{16+4*ks}:{19+4*ks}], v[{48+16*ks+4*q}:{51+16*ks+4*q}], {'0' if ks==0 else f'v[{128+4*q}:{131+4*q}]'}")
    def s2f(q):
        a(f"v_mul_f32 v{128+4*q}, v10, v{128+4*q}")
        for i in range(1, 4):
            a(f"v_fmac_f32 v{128+4*q}, v{10+i}, v{128+4*q+i}")
    s2f(0); s2f(1); s2f(2)
    a("v_permlane32_swap_b32 v128, v132")
    a("v_add_f32 v128, v128, v132")
    s2f(3)
    a("""
    v_permlane32_swap_b32 v136, v140
    v_add_f32 v136, v136, v140
    v_permlane16_swap_b32 v128, v136
    v_add_f32 v36, v36, v128
    v_add_f32 v36, v36, v136
    v_bfi_b32 v36, v121, v117, v36
    """)
    for i in range(1, 4):
        a(f"v_mov_b32_dpp v{36+i}, v36 quad_perm:[{i},{i},{i},{i}] {DPPM}")
    a("""
    s_mov_b64 exec, s[44:45]
    global_store_dwordx4 v115, v[36:39], s[30:31] sc1
    """)
    if diag: a("s_mov_b64 exec, -1")
    stamp("final published", 12)
    a("s_waitcnt vmcnt(0)")
    stamp("final acked", 13)
    a("s_barrier")
    a(EXIT)
    a(f"""
    L_gpoll:
    s_add_u32 s63, s63, 1
    s_cmp_ge_u32 s63, {SPIN}
    s_cbranch_scc1 L_gdone
    s_cmp_eq_u32 s69, 0
    s_cbranch_scc1 L_gload
    buffer_inv sc1
    s_waitcnt vmcnt(0)
    L_gload:
    {GG}
    s_waitcnt vmcnt(0)
    s_branch L_gcheck
    L_spoll:
    s_waitcnt vmcnt(0)
    {SG}
    {OG}
    L_spoll1:
    s_waitcnt vmcnt(2)
    v_cmp_eq_u32 vcc, -1, v24
    s_add_u32 s63, s63, 1
    s_cbranch_vccz L_sdone
    s_cmp_lt_u32 s63, {SPIN}
    s_cbranch_scc1 L_spoll
    """)
    if WPRE:
        a("L_sdone:")
        weights()
        a("s_branch L_ochk")
    else:
        a("s_branch L_sdone")
    a(f"""
    L_slow:
    s_cmp_lg_u32 s3, 4
    s_cbranch_scc1 L_slow2
    buffer_wbl2 sc1
    s_waitcnt vmcnt(0)
    s_mov_b64 exec, 1
    global_store_dword v118, v33, s[28:29] sc1
    s_mov_b64 exec, -1
    L_slow2:
    global_load_dword v34, v123, s[28:29] sc1
    s_waitcnt vmcnt(0)
    v_cmp_ne_u32 vcc, s35, v34
    s_add_u32 s63, s63, 1
    s_cbranch_vccz L_slow3
    s_cmp_lt_u32 s63, {SPIN}
    s_cbranch_scc1 L_slow2
    L_slow3:
    buffer_inv sc1
    s_waitcnt vmcnt(0)
    s_mov_b32 s63, 0
    s_mov_b64 vcc, -1
    s_branch L_fast2
    """)

    a("L_service:")
    a(f"""
    s_mov_b32 s62, 0xffff0000
    s_mov_b32 s64, 0x000f000f
    s_mov_b32 s65, 0x000f000f
    v_and_b32 v4, 3, v1
    v_lshrrev_b32 v5, 2, v1
    v_and_b32 v6, 1, v2
    v_lshrrev_b32 v96, 3, v1
    v_lshl_add_u32 v96, v6, 1, v96
    v_lshlrev_b32 v96, 5, v96
    v_lshl_add_u32 v96, v5, 7, v96
    v_lshl_add_u32 v96, v2, 10, v96
    v_lshl_add_u32 v96, v4, 3, v96
    s_sub_u32 s60, s61, 8192
    v_add_u32 v96, s60, v96
    v_xor_b32 v97, 32, v96
    v_xor_b32 v92, 64, v96
    v_xor_b32 v93, 0x60, v96
    s_cmp_lt_u32 s3, 2
    s_cselect_b32 s57, 14, 8
    v_and_b32 v3, 1, v1
    v_lshlrev_b32 v98, s57, v3
    v_lshrrev_b32 v7, 1, v1
    v_lshl_add_u32 v98, v7, 6, v98
    v_lshl_add_u32 v98, v2, 4, v98
    s_lshr_b32 s56, s32, 1
    s_lshl_b32 s57, s56, 9
    s_lshl_b32 s58, s3, 8
    s_add_u32 s57, s57, s58
    s_lshl_b32 s58, s46, 11
    s_add_u32 s57, s57, s58
    s_lshl_b32 s63, s56, 13
    s_lshl_b32 s58, s46, 10
    s_add_u32 s58, s58, s63
    s_lshl_b32 s56, s3, 9
    s_add_u32 s58, s58, s56
    s_add_u32 s58, s58, {GP-1024}
    s_cmp_lt_u32 s3, 2
    s_cselect_b32 s57, s57, s58
    v_add_u32 v98, s57, v98
    v_cmp_eq_u32 s[44:45], 1, v7
    v_cmp_eq_u32 s[46:47], 2, v7
    v_cmp_eq_u32 s[48:49], 3, v7
    s_lshl_b32 s57, s6, 14
    s_lshl_b32 s58, s3, 10
    s_add_u32 s57, s57, s58
    s_add_u32 s57, s57, {QP+4096}
    v_lshlrev_b32 v99, 4, v0
    v_add_u32 v99, s57, v99
    v_add_u32 v94, 0x2000, v99
    s_add_u32 s60, s60, 6144
    v_lshlrev_b32 v100, 3, v0
    v_add_u32 v100, s60, v100
    v_mov_b32 v121, 0xff
    v_xor_b32 v101, v2, v1
    v_lshlrev_b32 v101, 4, v101
    v_lshl_add_u32 v101, v1, 8, v101
    s_lshl_b32 s59, s3, 14
    v_add_u32 v101, s59, v101
    v_xor_b32 v102, 64, v101
    v_xor_b32 v103, 0x80, v101
    v_xor_b32 v104, 0xc0, v101
    v_and_b32 v105, 2, v1
    v_lshlrev_b32 v105, 12, v105
    v_lshl_add_u32 v105, v3, 8, v105
    v_lshl_add_u32 v105, v2, 4, v105
    v_add_u32 v105, {R(0)}, v105
    s_getreg_b32 s68, hwreg(HW_REG_XCC_ID)
    s_and_b32 s68, s68, 7
    s_cmp_lt_u32 s3, 2
    s_cbranch_scc1 L_ln0
    s_waitcnt vmcnt(8)
    s_branch L_ln
    L_ln0:
    s_waitcnt vmcnt(3)
    L_ln:
    """)
    stamp("S x landed", 0)
    for i in range(8):
        a(f"v_lshlrev_b32 v{32+2*i}, 16, v{8+i}")
        a(f"v_and_b32 v{33+2*i}, s62, v{8+i}")
    for i in range(4):
        a(f"v_pk_add_f32 v[{48+2*i}:{49+2*i}], v[{32+4*i}:{33+4*i}], v[{34+4*i}:{35+4*i}]")
    a("v_pk_add_f32 v[48:49], v[48:49], v[50:51]")
    a("v_pk_add_f32 v[52:53], v[52:53], v[54:55]")
    a("v_pk_add_f32 v[48:49], v[48:49], v[52:53]")
    a("v_add_f32 v48, v48, v49")
    reduce5(48, 49)
    a("v_mul_f32 v48, 0xbb000000, v48")
    a("v_mov_b32 v49, v48")
    for i in range(8):
        a(f"v_pk_add_f32 v[{32+2*i}:{33+2*i}], v[{32+2*i}:{33+2*i}], v[48:49]")
    a("v_pk_mul_f32 v[50:51], v[32:33], v[32:33]")
    a("v_pk_mul_f32 v[52:53], v[34:35], v[34:35]")
    for i in range(2, 8):
        d = 50 + 2 * (i & 1)
        a(f"v_pk_fma_f32 v[{d}:{d+1}], v[{32+2*i}:{33+2*i}], v[{32+2*i}:{33+2*i}], v[{d}:{d+1}]")
    a("v_pk_add_f32 v[50:51], v[50:51], v[52:53]")
    a("v_add_f32 v50, v50, v51")
    a("""
    v_cvt_pk_bf16_f32 v48, v48, v48
    v_and_b32 v48, s62, v48
    v_mov_b32 v49, v48
    """)
    fr = []
    for i in range(4):
        fr.append(f"v_lshlrev_b32 v{32+2*i}, 16, v{16+i}")
        fr.append(f"v_and_b32 v{33+2*i}, s62, v{16+i}")
    for i in range(4):
        fr.append(f"v_pk_add_f32 v[{32+2*i}:{33+2*i}], v[{32+2*i}:{33+2*i}], v[48:49]")
    for i in range(4):
        fr.append(f"v_cvt_pk_bf16_f32 v{16+i}, v{32+2*i}, v{33+2*i}")
    for i in range(4):
        fr.append(f"v_lshlrev_b32 v{32+2*i}, 16, v{16+i}")
        fr.append(f"v_and_b32 v{33+2*i}, s62, v{16+i}")
    ch = [f"v_add_f32_dpp v50, v50, v50 quad_perm:[2,3,0,1] {DPPM}", None, None,
          f"v_add_f32_dpp v50, v50, v50 row_ror:4 {DPPM}", None, None,
          f"v_add_f32_dpp v50, v50, v50 row_ror:8 {DPPM}", "v_mov_b32 v51, v50", None, None,
          "v_permlane16_swap_b32 v50, v51", "v_add_f32 v50, v50, v51", "v_mov_b32 v51, v50", None, None,
          "v_permlane32_swap_b32 v50, v51", "v_add_f32 v50, v50, v51",
          "v_mul_f32 v50, 0x3b000000, v50", "v_cvt_pk_bf16_f32 v50, v50, v50", "v_and_b32 v50, s62, v50",
          "v_add_f32 v50, 0x3727c5ac, v50", "v_cvt_pk_bf16_f32 v50, v50, v50", "v_and_b32 v50, s62, v50",
          "v_sqrt_f32 v50, v50", None, "v_cvt_pk_bf16_f32 v50, v50, v50", "v_and_b32 v50, s62, v50",
          "v_rcp_f32 v50, v50", None]
    for c in ch:
        a(c if c else fr.pop(0))
    a("v_mov_b32 v51, v50")
    for x in fr: a(x)
    for i in range(4):
        a(f"v_pk_mul_f32 v[{32+2*i}:{33+2*i}], v[{32+2*i}:{33+2*i}], v[50:51]")
    for i in range(4):
        a(f"v_cvt_pk_bf16_f32 v{16+i}, v{32+2*i}, v{33+2*i}")
    for i in range(4):
        a(f"v_mov_b32_dpp v{20+i}, v{16+i} row_ror:8 {DPPM}")
    a(f"""
    s_waitcnt lgkmcnt(0)
    s_add_u32 s35, s35, {EINC}
    s_lshr_b32 s36, s35, 8
    s_lshr_b32 s37, s35, 16
    s_lshr_b32 s38, s35, 24
    s_and_b32 s38, s38, 0xf8
    s_or_b32 s38, s38, s68
    s_and_b32 s39, s35, 0x00ffffff
    s_lshl_b32 s57, s38, 24
    s_or_b32 s39, s39, s57
    s_mov_b32 s56, 0x00ff00ff
    s_mov_b32 s57, 0x00ff00ff
    """)
    stamp("S LN done", 1)
    a("""
    s_cmp_lt_u32 s3, 2
    s_waitcnt vmcnt(0)
    s_cbranch_scc0 L_w3
    s_barrier
    L_w3:
    """)
    stamp("S tile landed", 2)
    TA = [96, 97, 92, 93]
    for aa in range(4):
        for ss in range(2):
            for e in range(2):
                d = 48 + 8 * aa + 4 * ss + 2 * e
                a(f"ds_read_b64_tr_b16 v[{d}:{d+1}], v{TA[aa]} offset:{ss*4096+e*512}")
    for aa in range(4):
        a(f"s_waitcnt lgkmcnt({12-4*aa})")
        for ss in range(2):
            a(f"v_mfma_f32_16x16x32_bf16 v[{32+4*aa}:{35+4*aa}], v[{48+8*aa+4*ss}:{51+8*aa+4*ss}], v[{16+4*ss}:{19+4*ss}], {'0' if ss==0 else f'v[{32+4*aa}:{35+4*aa}]'}")
    for aa in range(1, 4):
        for i in range(4):
            a(f"v_cndmask_b32 v{32+i}, v{32+i}, v{32+4*aa+i}, s[{42+2*aa}:{43+2*aa}]")
    for i in range(4):
        a(f"v_bfi_b32 v{32+i}, v121, s{35+i}, v{32+i}")
    a("""
    s_mov_b64 exec, s[56:57]
    global_store_dwordx4 v98, v[32:35], s[28:29]
    s_mov_b64 exec, -1
    """)
    stamp("S published", 3)
    a(f"""
    v_lshlrev_b32 v250, 4, v4
    v_lshl_add_u32 v250, v2, 6, v250
    v_add_u32 v250, {PB}, v250
    v_lshrrev_b32 v106, 1, v5
    v_lshl_add_u32 v106, v106, 8, v250
    v_and_b32 v8, 1, v5
    v_lshl_add_u32 v106, v8, 3, v106
    s_lshl_b32 s59, s3, 9
    v_add_u32 v106, s59, v106
    v_lshlrev_b32 v122, 5, v4
    v_add_u32 v122, {MLB}, v122
    s_lshl_b32 s59, s3, 2
    v_add_u32 v107, s59, v122
    v_lshl_add_u32 v248, v2, 2, v5
    v_and_b32 v249, 7, v248
    s_lshl_b32 s58, s3, 1
    v_xor_b32 v249, s58, v249
    v_lshlrev_b32 v249, 5, v249
    v_lshl_add_u32 v248, v248, 8, v249
    v_lshl_add_u32 v248, v4, 3, v248
    v_add_u32 v248, 0x10000, v248
    v_xor_b32 v249, 32, v248
    s_lshl_b32 s58, s6, 15
    s_lshl_b32 s59, s3, 11
    s_add_u32 s58, s58, s59
    s_lshl_b32 s59, s7, 7
    s_add_u32 s58, s58, s59
    s_add_u32 s58, s58, {OP}
    v_lshlrev_b32 v251, 13, v4
    v_lshl_add_u32 v251, v2, 4, v251
    v_add_u32 v251, s58, v251
    s_lshl_b32 s58, s5, 7
    s_add_u32 s58, s58, {ST}
    v_lshl_add_u32 v118, v0, 2, s58
    s_lshl_b32 s57, s6, 14
    s_lshl_b32 s58, s7, 4
    s_add_u32 s57, s57, s58
    s_add_u32 s57, s57, {FP}
    v_lshlrev_b32 v116, 8, v0
    v_add_u32 v116, s57, v116
    v_lshrrev_b32 v120, 1, v2
    v_lshl_add_u32 v120, v6, 1, v120
    s_lshl_b32 s57, s4, 5
    s_add_u32 s57, s57, s5
    s_lshl_b32 s57, s57, 3
    v_lshl_add_u32 v120, v120, 1, s57
    v_cmp_eq_u32 s[44:45], 1, v5
    v_cmp_eq_u32 s[46:47], 2, v5
    v_cmp_eq_u32 s[48:49], 3, v5
    v_mov_b32 v10, {R(0)+MODEB}
    s_mov_b32 s58, 0x0c0c0400
    s_mov_b32 s59, 0x04000c0c
    s_mov_b32 s61, 0xf8ffffff
    s_cmp_ge_u32 s3, 2
    s_cbranch_scc1 L_qskip
    global_load_dword v144, v144, s[28:29] sc1 nt
    global_load_ushort v119, v120, s[8:9]
    {'s_waitcnt vmcnt(%d)' % (G('qwait') - 1) if G('qwait') else ''}
    {'s_sleep %d' % G('qdelay') if G('qdelay') else ''}
    s_mov_b32 s57, 0
    L_qpoll:
    """)
    for c in range(8):
        a(f"global_load_dwordx4 v[{32+4*c}:{35+4*c}], v{99 if c < 4 else 94}, s[28:29] offset:{(c&3)*2048-4096} {LF}")
    for c in range(8):
        a(f"s_waitcnt vmcnt({7-c})")
        a(f"v_perm_b32 v{64+2*c}, v{33+4*c}, v{32+4*c}, s58")
        a(f"v_perm_b32 v{65+2*c}, v{35+4*c}, v{34+4*c}, s59")
        a(f"v_bitop3_b32 v{64+2*c}, v{64+2*c}, v{65+2*c}, s39 bitop3:0x56")
    a(f"""
    v_or3_b32 v64, v64, v66, v68
    v_or3_b32 v70, v70, v72, v74
    v_or3_b32 v64, v64, v76, v78
    v_or_b32 v80, v64, v70
    v_and_b32 v64, s61, v80
    v_cmp_ne_u32 vcc, 0, v64
    s_add_u32 s57, s57, 1
    s_mov_b64 exec, vcc
    s_cbranch_execz L_qdone
    s_cmp_lt_u32 s57, {NFAST}
    s_cbranch_scc1 L_qpoll
    buffer_wbl2 sc1
    buffer_inv sc1
    s_waitcnt vmcnt(0)
    s_cmp_lt_u32 s57, {SPIN}
    s_cbranch_scc1 L_qpoll
    L_qdone:
    s_mov_b64 exec, -1
    v_cmp_ne_u32 vcc, 0, v80
    s_movk_i32 s56, 0xff00
    """)
    for i in range(32):
        a(f"v_and_b32 v{32+i}, s56, v{32+i}")
    a("s_or_b32 s56, vcc_lo, vcc_hi")
    for step in (4, 8, 16):
        for base in range(32, 64, 2 * step):
            for h in range(2):
                a(f"v_pk_add_f32 v[{base+2*h}:{base+2*h+1}], v[{base+2*h}:{base+2*h+1}], v[{base+step+2*h}:{base+step+2*h+1}]")
    a(f"""
    v_cvt_pk_bf16_f32 v32, v32, v33
    v_cvt_pk_bf16_f32 v33, v34, v35
    v_mov_b32 v34, s56
    v_mov_b32 v35, s60
    ds_write_b64 v100, v[32:33]
    ds_write_b32 v35, v34 offset:{MODEB}
    """)
    if stamps: a("s_mov_b32 s69, s57")
    stamp("S gathered", 4)
    a(f"""
    L_qskip:
    s_mov_b32 s56, {SCALE}
    s_mov_b32 s57, {LOG2E}
    s_waitcnt lgkmcnt(0)
    s_barrier
    """)
    stamp("B1", 5)
    for j in range(4):
        a(f"ds_read_b128 v[{16+4*j}:{19+4*j}], v105 offset:{64*j}")
    def kread(blk):
        for j in range(4):
            d = 32 + 16 * blk + 4 * j
            a(f"ds_read_b128 v[{d}:{d+3}], v{101+j} offset:{4096*blk}")
    kread(0); kread(1)
    for blk in range(4):
        a(f"s_waitcnt lgkmcnt({[4, 4, 6, 2][blk]})")
        for j in range(4):
            d = 32 + 16 * blk + 4 * j
            ac = 128 + 4 * blk
            a(f"v_mfma_f32_16x16x32_bf16 v[{ac}:{ac+3}], v[{d}:{d+3}], v[{16+4*j}:{19+4*j}], {'0' if j==0 else f'v[{ac}:{ac+3}]'}")
        if blk + 2 < 4: kread(blk + 2)
        if blk == 1:
            a("ds_read_b32 v8, v10")
            a("ds_read_b32 v9, v10 offset:8192")
    for blk in range(1, 4):
        for i in range(4):
            a(f"v_cndmask_b32 v{128+i}, v{128+i}, v{128+4*blk+i}, s[{42+2*blk}:{43+2*blk}]")
    a("""
    v_cvt_pk_bf16_f32 v40, v128, v129
    v_cvt_pk_bf16_f32 v41, v130, v131
    v_lshlrev_b32 v32, 16, v40
    v_and_b32 v33, s62, v40
    v_lshlrev_b32 v34, 16, v41
    v_and_b32 v35, s62, v41
    """)
    for i in range(4): a(f"v_mul_f32 v{32+i}, s56, v{32+i}")
    a("""
    v_cvt_pk_bf16_f32 v40, v32, v33
    v_cvt_pk_bf16_f32 v41, v34, v35
    v_lshlrev_b32 v32, 16, v40
    v_and_b32 v33, s62, v40
    v_lshlrev_b32 v34, 16, v41
    v_and_b32 v35, s62, v41
    v_max3_f32 v40, v32, v33, v34
    v_max_f32 v40, v40, v35
    s_waitcnt lgkmcnt(0)
    v_or_b32 v8, v8, v9
    """)
    reduce4(40, 41, "v_max_f32")
    a("v_readfirstlane_b32 s60, v8")
    for i in range(4): a(f"v_sub_f32 v{32+i}, v{32+i}, v40")
    for i in range(4): a(f"v_mul_f32 v{32+i}, s57, v{32+i}")
    for i in range(4): a(f"v_exp_f32 v{32+i}, v{32+i}")
    a("""
    v_mul_f32 v40, s57, v40
    v_cvt_pk_bf16_f32 v44, v32, v33
    v_cvt_pk_bf16_f32 v45, v34, v35
    ds_write_b64 v106, v[44:45]
    ds_write_b32 v107, v40
    v_add_f32 v32, v32, v33
    v_add_f32 v34, v34, v35
    v_add_f32 v32, v32, v34
    """)
    reduce4(32, 33)
    a("""
    ds_write_b32 v107, v32 offset:16
    s_cmp_eq_u32 s60, 0
    s_cbranch_scc1 L_nowb
    s_waitcnt vmcnt(0)
    buffer_wbl2 sc1
    L_nowb:
    """)
    stamp("S softmax done", 6)
    a("""
    s_waitcnt lgkmcnt(0)
    s_barrier
    """)
    stamp("Bp", 7)
    PF = 148; VF = 180; AC = 212; AL = 244
    def rd(u):
        for q in range(2):
            for e in range(2):
                d = VF + 8 * (u % 4) + 4 * q + 2 * e
                a(f"ds_read_b64_tr_b16 v[{d}:{d+1}], v{248+q} offset:{8192*u+4096*e}")
    def pvm(u):
        for q in range(2):
            d = VF + 8 * (u % 4) + 4 * q
            ac = AC + 8 * (u >> 1) + 4 * q
            a(f"v_mfma_f32_16x16x32_bf16 v[{ac}:{ac+3}], v[{d}:{d+3}], v[{PF+4*u}:{PF+3+4*u}], {'0' if u % 2 == 0 else f'v[{ac}:{ac+3}]'}")
    a("""
    ds_read_b128 v[40:43], v122
    ds_read_b128 v[44:47], v122 offset:16
    """)
    for u in range(8):
        a(f"ds_read_b128 v[{PF+4*u}:{PF+3+4*u}], v250 offset:{256*u}")
    a("""
    s_waitcnt lgkmcnt(8)
    v_max3_f32 v48, v40, v41, v42
    v_max_f32 v48, v48, v43
    """)
    for i in range(4): a(f"v_sub_f32 v{40+i}, v{40+i}, v48")
    for i in range(4): a(f"v_exp_f32 v{40+i}, v{40+i}")
    a("""
    v_mul_f32 v49, v40, v44
    v_fmac_f32 v49, v41, v45
    v_fmac_f32 v49, v42, v46
    v_fmac_f32 v49, v43, v47
    v_log_f32 v50, v49
    v_rcp_f32 v49, v49
    s_cmp_lg_u32 s3, 3
    s_cbranch_scc1 L_nostat
    v_add_f32 v52, v50, v48
    s_mov_b64 exec, 15
    global_store_dword v118, v52, s[28:29]
    s_mov_b64 exec, -1
    L_nostat:
    s_waitcnt lgkmcnt(0)
    """)
    assert nA <= 4 and nB - nA <= 4 and 8 - nB <= 4 and nA >= 2
    for u in range(nA): rd(u)
    for i in range(4): a(f"v_mul_f32 v{AL+i}, v{40+i}, v49")
    for u in range(nA):
        a(f"s_waitcnt lgkmcnt({4*(nA-1-u)})")
        pvm(u)
    done = 0
    def combine(upto):
        nonlocal done
        for w_ in range(done, upto):
            for i in range(8):
                a(f"v_mul_f32 v{AC+i}, v{AC+i}, v{AL}" if w_ == 0 else f"v_fmac_f32 v{AC+i}, v{AC+8*w_+i}, v{AL+w_}")
        done = upto
    combine(nA // 2)
    a("s_barrier")
    for u in range(nA, nB): rd(u)
    for u in range(nA, nB):
        a(f"s_waitcnt lgkmcnt({4*(nB-1-u)})")
        pvm(u)
    combine(nB // 2)
    a("s_cmp_eq_u32 s60, 0")
    a("s_barrier")
    stamp("BB", 8)
    for u in range(nB, 8): rd(u)
    for u in range(nB, 8):
        a(f"s_waitcnt lgkmcnt({4*(7-u)})")
        pvm(u)
    a("s_mov_b64 exec, s[64:65]")
    for h in range(2):
        for w_ in range(done, 4):
            for i in range(4 * h, 4 * h + 4): a(f"v_fmac_f32 v{AC+i}, v{AC+8*w_+i}, v{AL+w_}")
        for i in range(2 * h, 2 * h + 2):
            a(f"v_cvt_pk_bf16_f32 v{40+i}, v{AC+2*i}, v{AC+1+2*i}")
    a("""
    global_store_dwordx4 v251, v[40:43], s[28:29]
    s_mov_b64 exec, -1
    """)
    stamp("o published", 9)
    a("""
    s_cbranch_scc1 L_sbc
    s_waitcnt vmcnt(0)
    L_sbc:
    s_barrier
    s_cmp_eq_u32 s3, 0
    s_cbranch_scc1 L_final
    """)
    a(EXIT)
    a(f"""
    L_final:
    {'s_endpgm' if G('cut') else ''}
    s_mov_b32 s57, 0
    v_lshlrev_b32 v28, 16, v119
    v_mov_b32 v33, s35
    s_movk_i32 s56, 0xff00
    s_mov_b32 s44, 0x00010001
    s_mov_b32 s45, 0x00010001
    s_barrier
    """)
    stamp("fpoll start", 11)
    a(f"""
    L_fpoll:
    global_load_dwordx4 v[16:19], v116, s[28:29] sc1
    s_waitcnt vmcnt(0)
    v_perm_b32 v24, v17, v16, s58
    v_perm_b32 v25, v19, v18, s59
    v_or_b32 v24, v24, v25
    v_cmp_ne_u32 vcc, s35, v24
    s_add_u32 s57, s57, 1
    s_mov_b64 exec, vcc
    s_cbranch_execz L_fdone
    s_cmp_lt_u32 s57, {SPIN}
    s_cbranch_scc1 L_fpoll
    L_fdone:
    s_mov_b64 exec, -1
    """)
    if stamps: a("s_mov_b32 s67, s57")
    stamp("fdone")
    for i in range(4): a(f"v_and_b32 v{16+i}, s56, v{16+i}")
    a("""
    v_permlane32_swap_b32 v16, v17
    v_permlane32_swap_b32 v18, v19
    v_add_f32 v16, v16, v17
    v_add_f32 v18, v18, v19
    v_permlane16_swap_b32 v16, v18
    v_add_f32 v16, v16, v18
    """)
    for m in ("quad_perm:[1,0,3,2]", "quad_perm:[2,3,0,1]", "row_ror:4", "row_ror:8"):
        dpp("v_add_f32", 16, m)
    a(f"""
    v_add_f32 v16, v16, v28
    v_cvt_pk_bf16_f32 v16, v16, v16
    s_mov_b64 exec, s[44:45]
    global_store_short v120, v16, s[26:27]
    s_cmp_lg_u32 s2, 0
    s_cbranch_scc1 {'L_fin0' if stamps else 'L_end'}
    s_mov_b64 exec, 1
    v_mov_b32 v19, 0
    global_store_dword v19, v33, s[30:31]
    """)
    if G('skew'):
        a("s_load_dwordx2 s[40:41], s[0:1], 80")
        a("s_waitcnt lgkmcnt(0)")
        for j in range(8): a(f"s_load_dword s{80+j}, s[40:41], {32*j} glc")
        a("s_waitcnt lgkmcnt(0)")
        a("s_mov_b32 s90, s80")
        for j in range(1, 8): a(f"s_min_u32 s90, s90, s{80+j}")
        for j in range(8): a(f"s_sub_u32 s{80+j}, s{80+j}, s90")
        for p_ in range(8):
            for j in range(7 - p_):
                a(f"s_min_u32 s91, s{80+j}, s{81+j}")
                a(f"s_max_u32 s{81+j}, s{80+j}, s{81+j}")
                a(f"s_mov_b32 s{80+j}, s91")
        a(f"""
        s_lshl_b32 s74, s{80+G('skew')}, 4
        s_min_u32 s74, s74, 20000
        s_add_u32 s74, s74, 1200
        s_add_u32 s74, s74, s90
        L_skp:
        s_memrealtime s[72:73]
        s_waitcnt lgkmcnt(0)
        s_sub_u32 s72, s72, s74
        s_cmp_lt_i32 s72, 0
        s_cbranch_scc1 L_skp
        """)
    if stamps:
        a("L_fin0:")
        a("s_mov_b64 exec, -1")
        stamp("out stored", 13)
        a("L_fin:")
        a("s_getreg_b32 s66, hwreg(HW_REG_XCC_ID)")
        a("v_mov_b32 v32, s70")
        for i in range(14):
            a(f"v_mov_b32 v{33+i}, s{72+2*i}")
        a("v_mov_b32 v47, s66")
        a("v_mov_b32 v48, s69")
        a("v_mov_b32 v49, s68")
        a("v_mov_b32 v50, s67")
        a("v_mov_b32 v51, s100")
        a(f"""
        s_lshl_b32 s58, s2, 10
        s_lshl_b32 s59, s3, 7
        s_add_u32 s58, s58, s59
        s_add_u32 s58, s58, {STAMP}
        v_mov_b32 v3, s58
        s_mov_b64 exec, 1
        """)
        for j in range(5):
            a(f"global_store_dwordx4 v3, v[{32+4*j}:{35+4*j}], s[30:31] offset:{16*j}")
    a("L_end:")
    if G('probe'):
        a(f"""
        s_cmp_eq_u32 s74, 0
        s_cbranch_scc1 L_padd
        s_cmp_ge_u32 s3, {G('probew', 8)}
        s_cbranch_scc1 L_padd
        s_cmp_lt_u32 s3, {G('probel', 0)}
        s_cbranch_scc1 L_padd
        s_sub_u32 s74, s74, s76
        {'s_sub_u32 s74, 1200, s74' if G('pinv') else ''}
        s_lshl_b32 s74, s74, 3
        s_min_u32 s74, s74, 20000
        s_add_u32 s74, s74, 1200
        L_pad:
        s_memrealtime s[72:73]
        s_waitcnt lgkmcnt(0)
        s_sub_u32 s72, s72, s70
        s_cmp_lt_u32 s72, s74
        s_cbranch_scc1 L_pad
        L_padd:
        """)
    a("s_endpgm")
    a.raw('.section .rodata,"a"')
    a.raw(".p2align 6")
    a.raw(f".amdhsa_kernel {NAME}_kernel")
    a.raw("  .amdhsa_next_free_vgpr 256")
    a.raw("  .amdhsa_next_free_sgpr 102")
    a.raw("  .amdhsa_accum_offset 256")
    a.raw("  .amdhsa_group_segment_fixed_size 0")
    a.raw("  .amdhsa_kernarg_size 96")
    a.raw("  .amdhsa_user_sgpr_count 2")
    a.raw("  .amdhsa_user_sgpr_kernarg_segment_ptr 1")
    a.raw("  .amdhsa_system_sgpr_workgroup_id_x 1")
    a.raw("  .amdhsa_float_denorm_mode_32 3")
    a.raw(".end_amdhsa_kernel")
    return a.text()

def parse_opt(s):
    opt = {}
    for kv in s.split(","):
        if kv:
            k, _, v = kv.partition("=")
            opt[k] = (int(v) if v.lstrip('-').isdigit() else v.replace('+', ' ')) if v else 1
    return opt

if __name__ == "__main__":
    ap = argparse.ArgumentParser()
    ap.add_argument("-o", default="k.s")
    ap.add_argument("--stamps", action="store_true")
    ap.add_argument("--opt", default="")
    args = ap.parse_args()
    open(args.o, "w").write(gen(args.stamps, parse_opt(args.opt)))
```
